```python
import torch

def _softmax(x, axis=-1):
    return torch.softmax(x, dim=axis)
def _gelu(x):
    return torch.nn.functional.gelu(x, approximate="tanh")
def _silu(x):
    return torch.nn.functional.silu(x)
def _sigmoid(x):
    return torch.sigmoid(x)
def _layernorm(x, axis=-1, eps=1e-5):
    m = x.mean(dim=axis, keepdim=True)
    v = x.var(dim=axis, keepdim=True, unbiased=False)
    return (x - m) / torch.sqrt(v + eps)
def _scatter_add(tgt, idx, src, axis=0):
    return tgt.clone().index_add_(axis, idx, src)
def _segment_sum(src, seg, n):
    out = torch.zeros((n,) + src.shape[1:], dtype=src.dtype)
    return out.index_add_(0, seg, src)
def _pad(x, pw):
    flat = tuple(v for pair in reversed(pw) for v in pair)
    return torch.nn.functional.pad(x, flat)

kernel_name = 'concat_heads__mha_block__linear_attn_block__prompt'

def setup_inputs():

    _w = (lambda a: (lambda t: t.to(torch.bfloat16) if t.is_floating_point() else t)(torch.as_tensor(a)))
    def _A_setup():
        B, S, D, H = 1, 2048, 1024, 32
        return {
            "x": _w((lambda *s: torch.randn(*s, dtype=torch.bfloat16) * 0.2)(B, S, D)),
            "wqkv": _w((lambda *s: torch.randn(*s, dtype=torch.bfloat16) * 0.2)(D, 3 * D)),
            "wo": _w((lambda *s: torch.randn(*s, dtype=torch.bfloat16) * 0.05)(D, D)),
        }
    _A_in = _A_setup()

    def _B_setup():
        B, S, D = 1, 2048, 1024
        return {
            "x": _w((lambda *s: torch.randn(*s, dtype=torch.bfloat16) * 0.05)(B, S, D)),
            "wqkv": _w((lambda *s: torch.randn(*s, dtype=torch.bfloat16) * 1.6)(D, 3 * D)),
            "wo": _w((lambda *s: torch.randn(*s, dtype=torch.bfloat16) * 0.1)(D, D)),
        }
    _B_in = _B_setup()

    return {
        "A_x": _A_in["x"],
        "A_wqkv": _A_in["wqkv"],
        "A_wo": _A_in["wo"],
        "B_x": _B_in["x"],
        "B_wqkv": _B_in["wqkv"],
        "B_wo": _B_in["wo"],
    }

def reference(A_x, A_wqkv, A_wo, B_x, B_wqkv, B_wo):
    def _A_ref(x, wqkv, wo):
        B, S, D = x.shape
        H = 32
        Dh = D // H
        qkv = (lambda x, *d: x.permute(*d))((x @ wqkv).reshape(B, S, 3, H, Dh), 2, 0, 3, 1, 4)
        q, k, v = qkv[0], qkv[1], qkv[2]
        scores = torch.einsum("bhqd,bhkd->bhqk", q, k) * (Dh ** -0.5)
        p = _softmax(scores, axis=-1)
        o = torch.einsum("bhqk,bhkd->bhqd", p, v)
        return (lambda x, *d: x.permute(*d))(o, 0, 2, 1, 3).reshape(B, S, D) @ wo

    def _B_ref(x, wqkv, wo):
        B, S, D = x.shape
        H = 32; Dh = D // H
        qkv = (lambda x, *d: x.permute(*d))((x @ wqkv).reshape(B, S, 3, H, Dh), 2, 0, 3, 1, 4)
        q, k, v = qkv[0], qkv[1], qkv[2]
        phi = lambda t: torch.where(t > 0, t + 1, torch.exp(t)) + 1e-6
        pq, pk = phi(q), phi(k)
        kv = torch.einsum("bhsd,bhse->bhde", pk, v)
        z = torch.einsum("bhsd->bhd", pk)
        num = torch.einsum("bhqd,bhde->bhqe", pq, kv)
        den = torch.einsum("bhqd,bhd->bhq", pq, z)[..., None] + 1e-6
        o = num / den
        return (lambda x, *d: x.permute(*d))(o, 0, 2, 1, 3).reshape(B, S, D) @ wo

    a = _A_ref(A_x, A_wqkv, A_wo)
    b = _B_ref(B_x, B_wqkv, B_wo)
    return torch.concatenate([a, b], axis=-1)
```

```python
class Asm:
    def __init__(self):
        self.lines = []
        self.uid = 0
    def __call__(self, s):
        for ln in s.strip("\n").split("\n"):
            self.lines.append("    " + ln.strip())
    def label(self, name):
        self.lines.append(name + ":")
    def raw(self, s):
        self.lines.append(s)
    def newlabel(self, p="L"):
        self.uid += 1
        return f"{p}_{self.uid}"
    def text(self):
        return "\n".join(self.lines) + "\n"

def vr(base, n):
    return f"v[{base}:{base+n-1}]" if n > 1 else f"v{base}"
def sr(base, n):
    return f"s[{base}:{base+n-1}]" if n > 1 else f"s{base}"

def kd(name, nvgpr, nsgpr=102, accum=None):
    if accum is None:
        accum = (nvgpr + 3) // 4 * 4
    return f""".amdhsa_kernel {name}
  .amdhsa_next_free_vgpr {nvgpr}
  .amdhsa_next_free_sgpr {nsgpr}
  .amdhsa_accum_offset {accum}
  .amdhsa_group_segment_fixed_size 0
  .amdhsa_kernarg_size 72
  .amdhsa_user_sgpr_count 2
  .amdhsa_user_sgpr_kernarg_segment_ptr 1
  .amdhsa_system_sgpr_workgroup_id_x 1
.end_amdhsa_kernel
"""

def kernel_head(a, name):
    a.raw(f".globl {name}")
    a.raw(".p2align 8")
    a.raw(f".type {name},@function")
    a.label(name)

MB = 1 << 20
WS_QA = 0
WS_KV = 4 * MB
WS_QB = 12 * MB
WS_KVP = 16 * MB
WS_O = 18 * MB
WS_WO = 26 * MB
WS_SIZE = 268435456
```

```python
from asmlib import *
import struct

def f2u(x):
    return struct.unpack("<I", struct.pack("<f", x))[0]

LOG2E = 1.4426950408889634
QSCALE = (32 ** -0.5) * LOG2E

XSLOT = 32768
NXS = 3
WBASE = XSLOT * NXS
WSLOT = 12288
NWS = 5
K1_LDS = WBASE + WSLOT * NWS

import os
DBG = os.environ.get('K1DBG', '')
PFP = int(os.environ.get('PFP', '0'))
PFT = int(os.environ.get('PFT', '0'))
PFS = int(os.environ.get('PFS', '2'))
def gen_k1(a):
    name = "qkv_kernel"
    kernel_head(a, name)
    vLane, vTmp, vTmp2 = 1, 2, 3
    vLd = 4
    vXb0, vLd2, vWb = 5, 6, 7
    vXa0, vXa1, vWa = 8, 9, 10
    vSt = 11
    vPfA, vPfB, vPfD = 12, 13, 14
    sPf, sPfInc = 37, 38
    F = 16
    def XF(s, mb, kk): return F + s * 40 + (mb * 2 + kk) * 4
    def WF(s, t, kk): return F + s * 40 + 16 + (t * 2 + kk) * 4
    ACC = 96
    def AC(mb, t): return ACC + (mb * 3 + t) * 16
    NV = 192
    sLd = 4
    sWS = 12
    sSo = 62
    sXr, sXw, sM0off2 = 16, 17, 18
    sInc, sRd, sWr, sM0off, sI, sSize = 20, 21, 22, 23, 24, 25
    sPart, sMt, sNt, sW, sWm, sWn, sH = 26, 27, 28, 29, 30, 31, 32
    t0, t1, t2, t3 = 33, 34, 35, 36
    end = "k1_end"
    a(f"""
    s_cmp_ge_u32 s2, 256
    s_cbranch_scc1 {end}
    {'s_memtime s[50:51]' if 'stamp' in DBG else ''}
    {'s_memrealtime s[58:59]' if 'stamp' in DBG else ''}
    s_load_dwordx4 s[40:43], s[0:1], 0
    s_load_dwordx4 s[44:47], s[0:1], 24
    s_load_dwordx2 s[12:13], s[0:1], 64
    v_and_b32 v{vLane}, 63, v0
    v_lshrrev_b32 v{vTmp}, 6, v0
    s_and_b32 s{t0}, s2, 7
    s_lshr_b32 s{t1}, s2, 3
    v_readfirstlane_b32 s{sW}, v{vTmp}
    s_lshr_b32 s{sPart}, s{t0}, 2
    s_bfe_u32 s{t2}, s{t0}, 0x10001
    s_lshl_b32 s{t2}, s{t2}, 2
    s_lshr_b32 s{t3}, s{t1}, 3
    s_add_u32 s{sMt}, s{t2}, s{t3}
    s_and_b32 s{t2}, s{t0}, 1
    s_lshl_b32 s{t2}, s{t2}, 3
    s_and_b32 s{t3}, s{t1}, 7
    s_add_u32 s{sNt}, s{t2}, s{t3}
    s_and_b32 s{sWm}, s{sW}, 3
    s_lshr_b32 s{sWn}, s{sW}, 2
    s_lshl_b32 s{sH}, s{sNt}, 1
    s_add_u32 s{sH}, s{sH}, s{sWn}
    s_mov_b32 s14, {WS_SIZE}
    s_mov_b32 s15, 0x00020000
    s_mov_b32 s7, 0x00020000
    v_lshlrev_b32 v{vSt}, 4, v{vLane}
    """)
    a(f"""
    v_and_b32 v{vTmp}, 31, v{vLane}
    s_lshl_b32 s{t0}, s{sWm}, 13
    v_lshlrev_b32 v{vTmp}, 7, v{vTmp}
    v_add_u32 v{vTmp}, s{t0}, v{vTmp}
    v_lshrrev_b32 v{vTmp2}, 5, v{vLane}
    v_bfe_u32 v{vXb0}, v{vLane}, 1, 3
    v_xor_b32 v{vTmp2}, v{vTmp2}, v{vXb0}
    v_lshlrev_b32 v{vTmp2}, 4, v{vTmp2}
    v_add_u32 v{vXb0}, v{vTmp}, v{vTmp2}
    """)
    a(f"""
    v_lshrrev_b32 v{vTmp}, 5, v{vLane}
    v_mul_u32_u24 v{vWb}, 3072, v{vTmp}
    v_bfe_u32 v{vTmp}, v{vLane}, 2, 2
    v_lshlrev_b32 v{vTmp}, 7, v{vTmp}
    v_add_u32 v{vWb}, v{vWb}, v{vTmp}
    v_bfe_u32 v{vTmp}, v{vLane}, 3, 1
    v_xor_b32 v{vTmp}, s{sWn}, v{vTmp}
    v_lshlrev_b32 v{vTmp}, 6, v{vTmp}
    v_add_u32 v{vWb}, v{vWb}, v{vTmp}
    v_bfe_u32 v{vTmp}, v{vLane}, 4, 1
    v_lshlrev_b32 v{vTmp}, 5, v{vTmp}
    v_add_u32 v{vWb}, v{vWb}, v{vTmp}
    v_and_b32 v{vTmp}, 3, v{vLane}
    v_lshlrev_b32 v{vTmp}, 3, v{vTmp}
    v_add_u32 v{vWb}, v{vWb}, v{vTmp}
    v_add_u32 v{vWb}, {WBASE}, v{vWb}
    """)
    for r in range(96):
        a(f"v_mov_b32 v{ACC + r}, 0")
    a(f"""
    s_waitcnt lgkmcnt(0)
    s_cmp_eq_u32 s{sPart}, 0
    s_cselect_b32 s40, s40, s44
    s_cselect_b32 s41, s41, s45
    s_cselect_b32 s42, s42, s46
    s_cselect_b32 s43, s43, s47
    s_cmp_ge_u32 s{sW}, 4
    s_cbranch_scc1 k1_setup_w
    """)
    a(f"""
    s_mov_b32 s4, s40
    s_mov_b32 s5, s41
    s_mov_b32 s{sSize}, {2048*2048}
    s_mov_b32 s6, s{sSize}
    v_lshrrev_b32 v{vTmp}, 3, v{vLane}
    v_lshlrev_b32 v{vLd}, 11, v{vTmp}
    v_lshrrev_b32 v{vTmp}, 4, v{vLane}
    v_and_b32 v{vTmp2}, 7, v{vLane}
    v_xor_b32 v{vTmp}, v{vTmp}, v{vTmp2}
    v_lshlrev_b32 v{vTmp}, 4, v{vTmp}
    v_add_u32 v{vLd}, v{vLd}, v{vTmp}
    v_xor_b32 v{vLd2}, 64, v{vLd}
    s_lshl_b32 s{t0}, s{sMt}, 8
    s_lshl_b32 s{t1}, s{sW}, 6
    s_add_u32 s{t0}, s{t0}, s{t1}
    s_lshl_b32 s{sSo}, s{t0}, 11
    s_add_u32 s{sSo+1}, s{sSo}, {16384-1024}
    s_add_u32 s{sSo+2}, s{sSo}, {2*(16384-1024)}
    s_add_u32 s{sSo+3}, s{sSo}, {3*(16384-1024)}
    s_add_u32 s{sSo+4}, s{sSo}, {4*16384}
    s_add_u32 s{sSo+5}, s{sSo+1}, {4*16384}
    s_add_u32 s{sSo+6}, s{sSo+2}, {4*16384}
    s_add_u32 s{sSo+7}, s{sSo+3}, {4*16384}
    s_lshl_b32 s{sM0off}, s{sW}, 13
    v_bfe_u32 v{vTmp}, v{vLane}, 1, 3
    v_lshlrev_b32 v{vPfA}, 11, v{vTmp}
    v_and_b32 v{vTmp}, 1, v{vLane}
    v_lshlrev_b32 v{vTmp}, 7, v{vTmp}
    v_add_u32 v{vPfA}, v{vPfA}, v{vTmp}
    s_bfe_u32 s{t0}, s2, 0x10001
    s_lshl_b32 s{t0}, s{t0}, 10
    s_lshr_b32 s{t1}, s2, 3
    s_lshl_b32 s{t1}, s{t1}, 5
    s_add_u32 s{t0}, s{t0}, s{t1}
    s_lshl_b32 s{t1}, s{sW}, 3
    s_add_u32 s{t0}, s{t0}, s{t1}
    s_lshl_b32 s{sPf}, s{t0}, 11
    s_add_u32 s{sPf}, s{sPf}, {PFS*256}
    s_mov_b32 s{sPfInc}, 256
    s_mov_b32 s8, s4
    s_mov_b32 s9, s5
    s_mov_b32 s10, s6
    s_mov_b32 s11, 0x00020000
    s_cmp_eq_u32 s{sPart}, 0
    s_cbranch_scc1 k1_main_0_0
    s_branch k1_main_1_0
    """)
    a.label("k1_setup_w")
    a(f"""
    s_mov_b32 s4, s42
    s_mov_b32 s5, s43
    s_mov_b32 s{sSize}, {1024*6144}
    s_mov_b32 s6, s{sSize}
    v_lshrrev_b32 v{vTmp}, 3, v{vLane}
    v_mul_u32_u24 v{vLd}, 6144, v{vTmp}
    v_bfe_u32 v{vTmp}, v{vLane}, 4, 1
    v_lshlrev_b32 v{vTmp}, 2, v{vTmp}
    v_and_b32 v{vTmp2}, 7, v{vLane}
    v_xor_b32 v{vTmp}, v{vTmp}, v{vTmp2}
    v_lshlrev_b32 v{vTmp}, 4, v{vTmp}
    v_add_u32 v{vLd}, v{vLd}, v{vTmp}
    s_mul_i32 s{t0}, s{sWm}, {8*6144}
    s_lshl_b32 s{t1}, s{sNt}, 7
    s_add_u32 s{sSo}, s{t0}, s{t1}
    s_add_u32 s{sSo+1}, s{sSo}, 1024
    s_add_u32 s{sSo+2}, s{sSo}, 2048
    s_mov_b32 s{sInc}, {32*6144}
    s_mul_i32 s{sM0off}, s{sWm}, 3072
    s_add_u32 s{sM0off}, s{sM0off}, {WBASE}
    v_bfe_u32 v{vTmp}, v{vLane}, 3, 2
    v_min_u32 v{vTmp}, 2, v{vTmp}
    v_lshlrev_b32 v{vPfA}, 11, v{vTmp}
    v_and_b32 v{vTmp}, 7, v{vLane}
    v_lshlrev_b32 v{vTmp}, 7, v{vTmp}
    v_add_u32 v{vPfA}, v{vPfA}, v{vTmp}
    s_lshr_b32 s{t1}, s2, 3
    s_lshl_b32 s{t1}, s{t1}, 2
    s_add_u32 s{t0}, s{sWm}, s{t1}
    s_add_u32 s{t0}, s{t0}, {PFS*128}
    s_mul_i32 s{sPf}, s{t0}, 6144
    s_and_b32 s{t0}, s2, 1
    s_lshl_b32 s{t0}, s{t0}, 10
    s_add_u32 s{sPf}, s{sPf}, s{t0}
    s_mov_b32 s{sPfInc}, {128*6144}
    s_mov_b32 s8, s4
    s_mov_b32 s9, s5
    s_mov_b32 s10, s6
    s_mov_b32 s11, 0x00020000
    s_cmp_eq_u32 s{sPart}, 0
    s_cbranch_scc1 k1_main_0_1
    s_branch k1_main_1_1
    """)

    def dma(role, half=0):
        L = []
        if role == 0:
            for j in range(4):
                L.append(f"buffer_load_dwordx4 v{vLd2 if j & 1 else vLd}, s[4:7], s{sSo+4*half+j} offen offset:{j*1024} lds")
            if half:
                L.append(f"v_add_u32 v{vLd}, 128, v{vLd}")
                L.append(f"v_add_u32 v{vLd2}, 128, v{vLd2}")
        else:
            for j in range(3):
                L.append(f"buffer_load_dwordx4 v{vLd}, s[4:7], s{sSo+j} offen offset:{j*1024} lds")
            L.append(f"v_add_u32 v{vLd}, s{sInc}, v{vLd}")
        return L

    def prefetch(role):
        L = [f"buffer_load_dword v{vPfD}, v{vPfA}, s[8:11], s{sPf} offen"]
        L.append(f"s_add_u32 s{sPf}, s{sPf}, s{sPfInc}")
        return L

    def reads(s):
        L = []
        for kk in range(2):
            for mb in range(2):
                L.append(f"ds_read_b128 {vr(XF(s,mb,kk),4)}, v{vXa0 if kk == 0 else vXa1} offset:{mb*4096}")
            for t in range(3):
                for rd in range(2):
                    L.append(f"ds_read_b64_tr_b16 {vr(WF(s,t,kk)+2*rd,2)}, v{vWa} offset:{kk*6144+t*1024+rd*512}")
        return L

    def mfmas(part, s):
        L = []
        if 'm16' in DBG:
            for wi in range(6):
                for xi in range(4):
                    ac = ACC + (wi * 4 + xi) * 4
                    L.append(f"v_mfma_f32_16x16x32_bf16 {vr(ac,4)}, {vr(F+s*40+16+wi*4,4)}, {vr(F+s*40+xi*4,4)}, {vr(ac,4)}")
            return [L[2*i] + "\n" + L[2*i+1] for i in range(12)]
        for kk in range(2):
            for t in range(3):
                for mb in range(2):
                    wfirst = (t == 0) or (t == 1 and part == 0)
                    A, B = (WF(s,t,kk), XF(s,mb,kk)) if wfirst else (XF(s,mb,kk), WF(s,t,kk))
                    L.append(f"v_mfma_f32_32x32x16_bf16 {vr(AC(mb,t),16)}, {vr(A,4)}, {vr(B,4)}, {vr(AC(mb,t),16)}")
        return L

    def advance(next_even):
        L = [
            f"s_mov_b32 s{sWr}, s{sRd}",
            f"s_add_u32 s{sRd}, s{sRd}, {WSLOT}",
            f"s_cmp_eq_u32 s{sRd}, {WSLOT*NWS}",
            f"s_cselect_b32 s{sRd}, 0, s{sRd}",
            f"v_add_u32 v{vWa}, s{sRd}, v{vWb}",
        ]
        if next_even:
            L += [f"v_xor_b32 v{vXa0}, 64, v{vXa0}", f"v_xor_b32 v{vXa1}, 64, v{vXa1}"]
        else:
            L += [
                f"s_mov_b32 s{sXw}, s{sXr}",
                f"s_add_u32 s{sXr}, s{sXr}, {XSLOT}",
                f"s_cmp_eq_u32 s{sXr}, {XSLOT*NXS}",
                f"s_cselect_b32 s{sXr}, 0, s{sXr}",
                f"v_add_u32 v{vXa0}, s{sXr}, v{vXb0}",
                f"v_xor_b32 v{vXa1}, 32, v{vXa0}",
            ]
        return L

    def iteration(part, role, cur):
        M = mfmas(part, cur)
        R = reads(1 - cur)
        D = dma(role, 1 - cur)
        if 'nodma' in DBG: D = [d for d in D if d.startswith('v_')]
        if 'nomfma' in DBG: M = ['s_nop 0'] * 12
        if 'noread' in DBG: R = ['s_nop 0'] * 16
        npf = 1 if PFT else 0
        if role == 0:
            a(f"s_waitcnt vmcnt({8+2*npf}) lgkmcnt(0)" if cur == 1 else "s_waitcnt lgkmcnt(0)")
        else:
            a(f"s_waitcnt vmcnt({9+2*npf}) lgkmcnt(0)")
        a("s_barrier")
        a(M[0])
        if role == 0:
            a(f"s_add_u32 m0, s{sXw}, s{sM0off}" if cur == 1 else f"s_add_u32 m0, s{sXw}, s{sM0off2}")
        else:
            a(f"s_add_u32 m0, s{sWr}, s{sM0off}")
        a(f"s_cmp_lt_u32 s{sI}, 27")
        a(f"s_cselect_b32 s6, s{sSize}, 0")
        a(R[0]); a(R[1])
        a(M[1])
        for d in D: a(d)
        if npf and cur == 0:
            for x in prefetch(role): a(x)
        ri = 2
        for m in range(2, 12):
            for _ in range(2):
                if ri < 16:
                    a(R[ri]); ri += 1
            a(M[m])
            if m == 9:
                for x in advance(cur == 1): a(x)
                a(f"s_add_u32 s{sI}, s{sI}, 1")

    for part in range(2):
        for role in range(2):
            a.label(f"k1_main_{part}_{role}")
            for w in range(PFP):
                for x in prefetch(role): a(x)
            if role == 0:
                for sl in range(5):
                    a(f"s_add_u32 m0, s{sM0off}, {(sl >> 1) * XSLOT + (sl & 1) * 4096}")
                    a("s_nop 0")
                    for d in dma(0, sl & 1): a(d)
                    if PFT and sl in (1, 3):
                        for x in prefetch(role): a(x)
            else:
                for sl in range(NWS):
                    a(f"s_add_u32 m0, s{sM0off}, {sl*WSLOT}")
                    a("s_nop 0")
                    for d in dma(1): a(d)
                    if PFT and sl in (1, 3):
                        for x in prefetch(role): a(x)
            a(f"""
            s_add_u32 s{sM0off2}, s{sM0off}, 4096
            s_mov_b32 s{sRd}, 0
            s_mov_b32 s{sI}, 0
            s_mov_b32 s{sXr}, 0
            s_mov_b32 s{sXw}, {2*XSLOT}
            v_mov_b32 v{vXa0}, v{vXb0}
            v_xor_b32 v{vXa1}, 32, v{vXb0}
            v_mov_b32 v{vWa}, v{vWb}
            s_waitcnt vmcnt({12 + (2 if PFT else 0)})
            s_barrier
            {'s_memtime s[52:53]' if 'stamp' in DBG else ''}
            """)
            for r in reads(0): a(r)
            for x in advance(True): a(x)
            lp = f"k1_loop_{part}_{role}"
            a.label(lp)
            iteration(part, role, 0)
            iteration(part, role, 1)
            a(f"s_cmp_lt_u32 s{sI}, 30")
            a(f"s_cbranch_scc1 {lp}")
            iteration(part, role, 0)
            a("s_waitcnt lgkmcnt(0)")
            for m in mfmas(part, 1): a(m)
            if 'stamp' in DBG: a('s_memtime s[54:55]')
            a(f"s_branch k1_epi_{part}")

    a.label("k1_epi_0")
    a(f"""
    s_lshl_b32 s{t0}, s{sMt}, 3
    s_lshl_b32 s{t1}, s{sWm}, 1
    s_add_u32 s{t0}, s{t0}, s{t1}
    s_lshl_b32 s{t1}, s{sH}, 6
    s_add_u32 s{t0}, s{t0}, s{t1}
    s_lshl_b32 s{t1}, s{t0}, 11
    s_lshl_b32 s{t2}, s{t0}, 12
    s_add_u32 s{t2}, s{t2}, {WS_KV}
    s_add_u32 s{t3}, s{t2}, 4096
    s_mov_b32 s{sI}, {f2u(QSCALE):#x}
    s_nop 7
    """)
    T = F
    ti = 0
    for mb in range(2):
        for t in range(3):
            b = AC(mb, t)
            if t == 0:
                for r in range(16):
                    a(f"v_mul_f32 v{b+r}, s{sI}, v{b+r}")
            for r in range(8):
                a(f"v_cvt_pk_bf16_f32 v{T+ti+r}, v{b+2*r}, v{b+2*r+1}")
            for u in range(2):
                if t == 0:
                    a(f"buffer_store_dwordx4 {vr(T+ti+4*u,4)}, v{vSt}, s[12:15], s{t1} offen offset:{mb*2048+u*1024}")
                else:
                    a(f"buffer_store_dwordx4 {vr(T+ti+4*u,4)}, v{vSt}, s[12:15], s{t2 if mb == 0 else t3} offen offset:{(t-1)*2048+u*1024}")
            ti += 8
    a(f"s_branch {'k1_stamp' if 'stamp' in DBG else end}")

    a.label("k1_epi_1")
    a(f"""
    s_lshl_b32 s{t0}, s{sMt}, 3
    s_lshl_b32 s{t1}, s{sWm}, 1
    s_add_u32 s{t0}, s{t0}, s{t1}
    s_lshl_b32 s{t1}, s{sH}, 6
    s_add_u32 s{t0}, s{t0}, s{t1}
    s_lshl_b32 s{t1}, s{t0}, 11
    s_add_u32 s{t1}, s{t1}, {WS_QB}
    s_mov_b32 s{sI}, {f2u(LOG2E):#x}
    s_mov_b32 s{t2}, {f2u(1e-6):#x}
    s_mov_b32 s{t3}, 0xffff0000
    s_nop 7
    """)
    for mb in range(2):
        b = AC(mb, 0)
        for r in range(8):
            a(f"v_cvt_pk_bf16_f32 v{T+mb*8+r}, v{b+2*r}, v{b+2*r+1}")
        for u in range(2):
            a(f"buffer_store_dwordx4 {vr(T+mb*8+4*u,4)}, v{vSt}, s[12:15], s{t1} offen offset:{mb*2048+u*1024}")
    VF, PK, ONE = T + 16, T + 32, T + 48
    KVA, ZA = AC(0, 0), AC(1, 0)
    for mb in range(2):
        b = AC(mb, 2)
        for r in range(8):
            a(f"v_cvt_pk_bf16_f32 v{VF+mb*8+r}, v{b+2*r}, v{b+2*r+1}")
    for r in range(4):
        a(f"v_mov_b32 v{ONE+r}, 0x3f803f80")
    for r in range(16):
        a(f"v_mov_b32 v{KVA+r}, 0")
        a(f"v_mov_b32 v{ZA+r}, 0")
    for mb in range(2):
        b = AC(mb, 1)
        e = AC(mb, 2)
        for r in range(8):
            a(f"v_cvt_pk_bf16_f32 v{PK+mb*8+r}, v{b+2*r}, v{b+2*r+1}")
        for r in range(8):
            a(f"v_lshlrev_b32 v{b+2*r}, 16, v{PK+mb*8+r}")
            a(f"v_and_b32 v{b+2*r+1}, s{t3}, v{PK+mb*8+r}")
        for r in range(16):
            a(f"v_mul_f32 v{e+r}, s{sI}, v{b+r}")
        for r in range(16):
            a(f"v_exp_f32_e64 v{e+r}, v{e+r} clamp")
        for r in range(16):
            a(f"v_max_f32 v{b+r}, s{t2}, v{b+r}")
        for r in range(16):
            a(f"v_add_f32 v{b+r}, v{b+r}, v{e+r}")
        for r in range(8):
            a(f"v_cvt_pk_bf16_f32 v{PK+mb*8+r}, v{b+2*r}, v{b+2*r+1}")
    a("s_nop 1")
    for mb in range(2):
        for u in range(2):
            a(f"v_mfma_f32_32x32x16_bf16 {vr(KVA,16)}, {vr(PK+mb*8+4*u,4)}, {vr(VF+mb*8+4*u,4)}, {vr(KVA,16)}")
            a(f"v_mfma_f32_32x32x16_bf16 {vr(ZA,16)}, {vr(PK+mb*8+4*u,4)}, {vr(ONE,4)}, {vr(ZA,16)}")
    a(f"""
    s_waitcnt vmcnt(0)
    s_barrier
    s_lshl_b32 s{t0}, s{sW}, 13
    v_add_u32 v{vTmp}, s{t0}, v{vSt}
    s_nop 7
    """)
    for q in range(4):
        a(f"ds_write_b128 v{vTmp}, {vr(KVA+4*q,4)} offset:{q*1024}")
    for q in range(4):
        a(f"ds_write_b128 v{vTmp}, {vr(ZA+4*q,4)} offset:{4096+q*1024}")
    a(f"""
    s_lshl_b32 s{t0}, s{sWn}, 15
    s_lshl_b32 s{t1}, s{sWm}, 11
    s_add_u32 s{t0}, s{t0}, s{t1}
    v_add_u32 v{vTmp}, s{t0}, v{vSt}
    s_waitcnt lgkmcnt(0)
    s_barrier
    """)
    RB = T
    for j in range(4):
        for q in range(2):
            a(f"ds_read_b128 {vr(RB+(j*2+q)*4,4)}, v{vTmp} offset:{j*8192+q*1024}")
    a(f"""
    s_lshl_b32 s{t0}, s{sH}, 3
    s_add_u32 s{t0}, s{t0}, s{sMt}
    s_lshl_b32 s{t0}, s{t0}, 13
    s_add_u32 s{t0}, s{t0}, s{t1}
    s_add_u32 s{t0}, s{t0}, {WS_KVP}
    s_waitcnt lgkmcnt(0)
    """)
    for r in range(8):
        a(f"v_add_f32 v{RB+r}, v{RB+r}, v{RB+8+r}")
        a(f"v_add_f32 v{RB+16+r}, v{RB+16+r}, v{RB+24+r}")
    for r in range(8):
        a(f"v_add_f32 v{RB+r}, v{RB+r}, v{RB+16+r}")
    for q in range(2):
        a(f"buffer_store_dwordx4 {vr(RB+4*q,4)}, v{vSt}, s[12:15], s{t0} offen offset:{q*1024}")
    if 'stamp' in DBG:
        a.label("k1_stamp")
        a(f'''
        s_waitcnt vmcnt(0)
        s_memtime s[56:57]
        s_memrealtime s[60:61]
        s_waitcnt lgkmcnt(0)
        s_lshl_b32 s{t0}, s2, 3
        s_add_u32 s{t0}, s{t0}, s{sW}
        s_lshl_b32 s{t0}, s{t0}, 6
        s_add_u32 s{t0}, s{t0}, {64*MB}
        v_mov_b32 v20, s50
        v_mov_b32 v21, s52
        v_mov_b32 v22, s54
        v_mov_b32 v23, s56
        v_mov_b32 v24, s58
        v_mov_b32 v25, s60
        v_mov_b32 v26, 0
        v_mov_b32 v27, 0
        v_mov_b32 v28, 0
        buffer_store_dwordx4 v[20:23], v28, s[12:15], s{t0} offen
        buffer_store_dwordx4 v[24:27], v28, s[12:15], s{t0} offen offset:16
        ''')
    a.label(end)
    a("s_endpgm")
    return name, NV
```

```python
from asmlib import *
import struct, os

def f2u(x):
    return struct.unpack("<I", struct.pack("<f", x))[0]

LOG2E = 1.4426950408889634
DBG = os.environ.get('K2DBG', '')

CH = 32768
NCH = 4
KVF = CH * NCH
WOST = KVF + 4096
K2_LDS = WOST + 16384

def gen_k2(a):
    name = "attn_kernel"
    kernel_head(a, name)
    vLane, vSt, vTmp, vTmp2, vRd, vRdN = 1, 2, 3, 4, 5, 6
    Q = 8
    KB = [16, 24]
    VB = [32, 40]
    S = [48, 64]
    C = 80
    O = 96
    P = 112
    LS = 120
    SEL = 124
    WF = 128
    vWo, vWr = 7, 136
    NV = 140
    sH, sQb, sW, sBlk = 16, 17, 18, 19
    sKv, sC, sRd, sRdN, sWr, sM0off, sSize = 20, 21, 22, 23, 24, 25, 26
    t0, t1, t2, t3 = 27, 28, 29, 30
    sOut = 31
    sWoS, sWoD = 32, 34
    end = "k2_end"
    st = 'stamp' in DBG
    a(f"""
    s_cmp_ge_u32 s2, 256
    s_cbranch_scc1 {end}
    {'s_memtime s[50:51]' if st else ''}
    {'s_memrealtime s[58:59]' if st else ''}
    s_load_dwordx2 s[12:13], s[0:1], 64
    s_load_dwordx2 s[8:9], s[0:1], 16
    s_load_dwordx2 s[36:37], s[0:1], 40
    v_and_b32 v{vLane}, 63, v0
    v_lshrrev_b32 v{vTmp}, 6, v0
    s_and_b32 s{t0}, s2, 7
    s_lshr_b32 s{t1}, s2, 3
    v_readfirstlane_b32 s{sW}, v{vTmp}
    s_lshl_b32 s{sH}, s{t0}, 2
    s_lshr_b32 s{t2}, s{t1}, 3
    s_add_u32 s{sH}, s{sH}, s{t2}
    s_and_b32 s{sQb}, s{t1}, 7
    s_lshl_b32 s{sBlk}, s{sQb}, 3
    s_add_u32 s{sBlk}, s{sBlk}, s{sW}
    s_mov_b32 s14, {WS_SIZE}
    s_mov_b32 s15, 0x00020000
    s_mov_b32 s{sSize}, {WS_SIZE}
    s_mov_b32 s6, {WS_SIZE}
    s_mov_b32 s7, 0x00020000
    v_lshlrev_b32 v{vSt}, 4, v{vLane}
    s_lshl_b32 s{t0}, s{sH}, 6
    s_add_u32 s{t0}, s{t0}, s{sBlk}
    s_lshl_b32 s{t0}, s{t0}, 11
    s_add_u32 s{t1}, s{t0}, {WS_QB}
    s_lshl_b32 s{sKv}, s{sH}, 18
    s_lshl_b32 s{sM0off}, s{sW}, 12
    s_add_u32 s{sKv}, s{sKv}, s{sM0off}
    s_add_u32 s{sKv}, s{sKv}, {WS_KV}
    s_lshl_b32 s{t2}, s{sH}, 16
    s_lshl_b32 s{t3}, s{sW}, 10
    s_add_u32 s{t2}, s{t2}, s{t3}
    s_add_u32 s{t2}, s{t2}, {WS_KVP}
    s_lshl_b32 s{sOut}, s{sBlk}, 5
    s_add_u32 s{sOut}, s{sOut}, s{sH}
    s_lshl_b32 s{sOut}, s{sOut}, 11
    s_add_u32 s{sOut}, s{sOut}, {WS_O}
    s_mov_b32 m0, s{sM0off}
    s_waitcnt lgkmcnt(0)
    s_mov_b32 s4, s12
    s_mov_b32 s5, s13
    """)
    def dma():
        L = [f"buffer_load_dwordx4 v{vSt}, s[4:7], s{sKv} offen offset:{j*1024} lds" for j in range(4)]
        L.append(f"s_add_u32 s{sKv}, s{sKv}, {CH}")
        return L
    for u in range(2):
        a(f"buffer_load_dwordx4 {vr(Q+4*u,4)}, v{vSt}, s[12:15], s{t0} offen offset:{u*1024}")
    for d in dma(): a(d)
    KP = S[0]
    for m in range(8):
        a(f"buffer_load_dwordx4 {vr(KP+4*m,4)}, v{vSt}, s[12:15], s{t2} offen")
        a(f"s_add_u32 s{t2}, s{t2}, 8192")
    QBR = P
    for u in range(2):
        a(f"buffer_load_dwordx4 {vr(QBR+4*u,4)}, v{vSt}, s[12:15], s{t1} offen offset:{u*1024}")
    for c in (1, 2):
        a(f"s_add_u32 m0, s{sM0off}, {c*CH}")
        a("s_nop 0")
        for d in dma(): a(d)
    a(f'''
    s_cmp_lt_u32 s2, 128
    s_cselect_b32 s8, s8, s36
    s_cselect_b32 s9, s9, s37
    s_mov_b32 s10, {2*MB}
    s_mov_b32 s11, 0x00020000
    s_bfe_u32 s{t0}, s2, 0x40003
    s_lshl_b32 s{t0}, s{t0}, 2
    s_lshr_b32 s{t1}, s{sW}, 1
    s_add_u32 s{t0}, s{t0}, s{t1}
    s_and_b32 s{t1}, s2, 7
    s_lshl_b32 s{t1}, s{t1}, 1
    s_and_b32 s{t2}, s{sW}, 1
    s_add_u32 s{t1}, s{t1}, s{t2}
    s_lshl_b32 s{sWoS}, s{t0}, 15
    s_lshl_b32 s{t2}, s{t1}, 7
    s_add_u32 s{sWoS}, s{sWoS}, s{t2}
    s_add_u32 s{sWoS+1}, s{sWoS}, {16384-1024}
    s_lshr_b32 s{t2}, s2, 7
    s_lshl_b32 s{sWoD}, s{t2}, 21
    s_lshl_b32 s{t2}, s{t1}, 17
    s_add_u32 s{sWoD}, s{sWoD}, s{t2}
    s_lshl_b32 s{t2}, s{t0}, 10
    s_add_u32 s{sWoD}, s{sWoD}, s{t2}
    s_add_u32 s{sWoD}, s{sWoD}, {WS_WO}
    s_lshl_b32 s{t2}, s{sW}, 11
    s_add_u32 s{t2}, s{t2}, {WOST}
    s_mov_b32 m0, s{t2}
    v_lshrrev_b32 v{vTmp}, 3, v{vLane}
    v_lshlrev_b32 v{vTmp}, 11, v{vTmp}
    v_and_b32 v{vTmp2}, 7, v{vLane}
    v_lshlrev_b32 v{vTmp2}, 4, v{vTmp2}
    v_add_u32 v{vWo}, v{vTmp}, v{vTmp2}
    buffer_load_dwordx4 v{vWo}, s[8:11], s{sWoS} offen lds
    buffer_load_dwordx4 v{vWo}, s[8:11], s{sWoS+1} offen offset:1024 lds
    v_lshrrev_b32 v{vTmp}, 5, v{vLane}
    v_lshlrev_b32 v{vWr}, 9, v{vTmp}
    v_bfe_u32 v{vTmp}, v{vLane}, 2, 2
    v_lshlrev_b32 v{vTmp}, 7, v{vTmp}
    v_add_u32 v{vWr}, v{vWr}, v{vTmp}
    v_bfe_u32 v{vTmp}, v{vLane}, 4, 1
    v_lshlrev_b32 v{vTmp}, 5, v{vTmp}
    v_add_u32 v{vWr}, v{vWr}, v{vTmp}
    v_and_b32 v{vTmp}, 3, v{vLane}
    v_lshlrev_b32 v{vTmp}, 3, v{vTmp}
    v_add_u32 v{vWr}, v{vWr}, v{vTmp}
    v_add_u32 v{vWr}, s{t2}, v{vWr}
    ''')
    a(f"""
    v_bfe_u32 v{vTmp}, v{vLane}, 4, 1
    v_bfe_u32 v{vTmp2}, v{vLane}, 2, 1
    v_cmp_eq_u32 vcc, v{vTmp}, v{vTmp2}
    v_mov_b32 v{vTmp}, 0x3f803f80
    s_lshr_b32 s{t0}, s{sW}, 1
    s_lshl_b32 s{t0}, s{t0}, 10
    v_cndmask_b32 v{SEL}, 0, v{vTmp}, vcc
    s_and_b32 s{t1}, s{sW}, 1
    s_lshl_b32 s{t1}, s{t1}, 3
    s_add_u32 s{t0}, s{t0}, s{t1}
    s_add_u32 s{t0}, s{t0}, {KVF}
    v_mov_b32 v{SEL+1}, v{SEL}
    v_mov_b32 v{SEL+2}, v{SEL}
    v_mov_b32 v{SEL+3}, v{SEL}
    v_add_u32 v{vTmp}, s{t0}, v{vSt}
    v_add_u32 v{vTmp2}, {KVF}, v{vSt}
    s_mov_b32 s{t0}, {f2u(LOG2E):#x}
    s_mov_b32 s{t1}, {f2u(1e-6):#x}
    s_mov_b32 s{t2}, 0xffff0000
    s_waitcnt vmcnt(12)
    """)
    for stp in (16, 8, 4):
        for r in range(stp):
            a(f"v_add_f32 v{KP+r}, v{KP+r}, v{KP+stp+r}")
    a(f"""
    v_cvt_pk_bf16_f32 v{KP}, v{KP}, v{KP+1}
    v_cvt_pk_bf16_f32 v{KP+1}, v{KP+2}, v{KP+3}
    ds_write_b64 v{vTmp}, {vr(KP,2)}
    s_waitcnt vmcnt(10)
    """)
    U, E = S[1], C
    for r in range(8):
        a(f"v_lshlrev_b32 v{U+2*r}, 16, v{QBR+r}")
        a(f"v_and_b32 v{U+2*r+1}, s{t2}, v{QBR+r}")
    for r in range(16):
        a(f"v_mul_f32 v{E+r}, s{t0}, v{U+r}")
    for r in range(16):
        a(f"v_exp_f32_e64 v{E+r}, v{E+r} clamp")
    for r in range(16):
        a(f"v_max_f32 v{U+r}, s{t1}, v{U+r}")
    for r in range(16):
        a(f"v_add_f32 v{U+r}, v{U+r}, v{E+r}")
    for r in range(8):
        a(f"v_cvt_pk_bf16_f32 v{QBR+r}, v{U+2*r}, v{U+2*r+1}")
    a(f"""
    s_waitcnt lgkmcnt(0)
    s_barrier
    {'s_memtime s[52:53]' if st else ''}
    """)
    KF = VB[0]
    for f in range(4):
        a(f"ds_read_b128 {vr(KF+4*f,4)}, v{vTmp2} offset:{f*1024}")
    for u in range(2):
        a(f"ds_read_b128 {vr(KB[0]+4*u,4)}, v{vSt} offset:{u*1024}")
    for u in range(2):
        a(f"ds_read_b128 {vr(KB[1]+4*u,4)}, v{vSt} offset:{4096+u*1024}")
    a(f"""
    s_waitcnt lgkmcnt(4)
    v_mfma_f32_32x32x16_bf16 {vr(O,16)}, {vr(KF,4)}, {vr(QBR,4)}, 0
    v_mfma_f32_32x32x16_bf16 {vr(C,16)}, {vr(KF+8,4)}, {vr(QBR,4)}, 0
    v_mfma_f32_32x32x16_bf16 {vr(O,16)}, {vr(KF+4,4)}, {vr(QBR+4,4)}, {vr(O,16)}
    v_mfma_f32_32x32x16_bf16 {vr(C,16)}, {vr(KF+12,4)}, {vr(QBR+4,4)}, {vr(C,16)}
    s_waitcnt lgkmcnt(2)
    v_mfma_f32_32x32x16_bf16 {vr(S[0],16)}, {vr(KB[0],4)}, {vr(Q,4)}, 0
    v_mfma_f32_32x32x16_bf16 {vr(S[0],16)}, {vr(KB[0]+4,4)}, {vr(Q+4,4)}, {vr(S[0],16)}
    """)
    for u in range(2):
        a(f"ds_read_b128 {vr(VB[0]+4*u,4)}, v{vSt} offset:{2048+u*1024}")
    a(f"""
    s_add_u32 s{t3}, s{sOut}, {4*MB}
    s_nop 6
    v_add_f32 v{vTmp}, s{t1}, v{C}
    v_rcp_f32 v{vTmp}, v{vTmp}
    s_nop 0
    """)
    for r in range(16):
        a(f"v_mul_f32 v{O+r}, v{O+r}, v{vTmp}")
    for r in range(8):
        a(f"v_cvt_pk_bf16_f32 v{S[1]+r}, v{O+2*r}, v{O+2*r+1}")
    for u in range(2):
        a(f"buffer_store_dwordx4 {vr(S[1]+4*u,4)}, v{vSt}, s[12:15], s{t3} offen offset:{u*1024}")
    s0 = S[0]
    a(f"v_max3_f32 v{vTmp}, v{s0}, v{s0+1}, v{s0+2}")
    for r in range(3, 15, 2):
        a(f"v_max3_f32 v{vTmp}, v{vTmp}, v{s0+r}, v{s0+r+1}")
    a(f"""
    v_max_f32 v{vTmp}, v{vTmp}, v{s0+15}
    v_mov_b32 v{vTmp2}, v{vTmp}
    s_nop 1
    v_permlane32_swap_b32 v{vTmp}, v{vTmp2}
    s_nop 1
    v_max_f32 v{vTmp}, v{vTmp}, v{vTmp2}
    """)
    for r in range(16):
        a(f"v_sub_f32 v{C+r}, 0, v{vTmp}")
    for r in range(16):
        a(f"v_sub_f32 v{s0+r}, v{s0+r}, v{vTmp}")
    for r in range(16):
        a(f"v_mov_b32 v{O+r}, 0")
    for r in range(4):
        a(f"v_mov_b32 v{LS+r}, 0")
    a(f"""
    s_mov_b32 s{sC}, 0
    s_mov_b32 s{sRd}, 0
    s_mov_b32 s{sRdN}, {CH}
    s_mov_b32 s{sWr}, {3*CH}
    v_mov_b32 v{vRd}, v{vSt}
    v_add_u32 v{vRdN}, {CH}, v{vSt}
    """)
    a.label("k2_loop")
    for t in range(8):
        sa, sb = S[t & 1], S[(t + 1) & 1]
        kn = KB[(t + 1) & 1]
        kl = KB[t & 1]
        vc = VB[t & 1]
        vl = VB[(t + 1) & 1]
        a("s_waitcnt lgkmcnt(0)" if t != 6 else "s_waitcnt vmcnt(4) lgkmcnt(0)")
        if t == 6:
            a("s_barrier")
        if t == 7:
            a(f"s_cmp_eq_u32 s{sC}, 1")
            a("s_cbranch_scc0 k2_nowo")
            for nb in range(2):
                for rd in range(2):
                    a(f"ds_read_b64_tr_b16 {vr(WF+4*nb+2*rd,2)}, v{vWr} offset:{nb*64+rd*1024}")
            a(f"s_add_u32 s{t0}, s{sWoD}, 65536")
            a("s_waitcnt lgkmcnt(0)")
            a(f"buffer_store_dwordx4 {vr(WF,4)}, v{vSt}, s[12:15], s{sWoD} offen")
            a(f"buffer_store_dwordx4 {vr(WF+4,4)}, v{vSt}, s[12:15], s{t0} offen")
            a.label("k2_nowo")
        a(f"v_mfma_f32_32x32x16_bf16 {vr(sb,16)}, {vr(kn,4)}, {vr(Q,4)}, {vr(C,16)}")
        if t == 6:
            a(f"s_add_u32 m0, s{sWr}, s{sM0off}")
            a(f"s_cmp_lt_u32 s{sC}, 5")
            a(f"s_cselect_b32 s6, s{sSize}, 0")
        for u in range(2):
            tt = t + 1
            a(f"ds_read_b128 {vr(vl+4*u,4)}, v{vRd if tt < 8 else vRdN} offset:{(tt & 7)*4096+2048+u*1024}")
        for u in range(2):
            tt = t + 2
            a(f"ds_read_b128 {vr(kl+4*u,4)}, v{vRd if tt < 8 else vRdN} offset:{(tt & 7)*4096+u*1024}")
        if t == 6:
            for d in dma(): a(d)
        for r in range(8):
            a(f"v_exp_f32 v{sa+r}, v{sa+r}")
        a(f"v_mfma_f32_32x32x16_bf16 {vr(sb,16)}, {vr(kn+4,4)}, {vr(Q+4,4)}, {vr(sb,16)}")
        for r in range(4):
            a(f"v_cvt_pk_bf16_f32 v{P+r}, v{sa+2*r}, v{sa+2*r+1}")
        for r in range(8, 16):
            a(f"v_exp_f32 v{sa+r}, v{sa+r}")
        a(f"v_mfma_f32_32x32x16_bf16 {vr(O,16)}, {vr(vc,4)}, {vr(P,4)}, {vr(O,16)}")
        a(f"v_mfma_f32_16x16x32_bf16 {vr(LS,4)}, {vr(SEL,4)}, {vr(P,4)}, {vr(LS,4)}")
        for r in range(4, 8):
            a(f"v_cvt_pk_bf16_f32 v{P+r}, v{sa+2*r}, v{sa+2*r+1}")
        if t == 7:
            a(f"""
            s_mov_b32 s{sWr}, s{sRd}
            s_mov_b32 s{sRd}, s{sRdN}
            s_add_u32 s{sRdN}, s{sRdN}, {CH}
            s_and_b32 s{sRdN}, s{sRdN}, {NCH*CH-1}
            v_mov_b32 v{vRd}, v{vRdN}
            v_add_u32 v{vRdN}, s{sRdN}, v{vSt}
            s_add_u32 s{sC}, s{sC}, 1
            s_cmp_lt_u32 s{sC}, 8
            """)
        else:
            a("s_nop 1")
        a(f"v_mfma_f32_32x32x16_bf16 {vr(O,16)}, {vr(vc+4,4)}, {vr(P+4,4)}, {vr(O,16)}")
        a(f"v_mfma_f32_16x16x32_bf16 {vr(LS,4)}, {vr(SEL,4)}, {vr(P+4,4)}, {vr(LS,4)}")
    a("s_cbranch_scc1 k2_loop")
    if st: a('s_memtime s[54:55]')
    a(f"""
    s_mov_b32 s{t0}, {f2u(2.0**40):#x}
    s_nop 8
    v_cmp_nle_f32 vcc, v{LS}, s{t0}
    s_cbranch_vccnz k2_fallback
    """)
    a.label("k2_fin")
    a(f"""
    v_rcp_f32 v{vTmp}, v{LS}
    s_nop 0
    """)
    for r in range(16):
        a(f"v_mul_f32 v{O+r}, v{O+r}, v{vTmp}")
    for r in range(8):
        a(f"v_cvt_pk_bf16_f32 v{P+r}, v{O+2*r}, v{O+2*r+1}")
    for u in range(2):
        a(f"buffer_store_dwordx4 {vr(P+4*u,4)}, v{vSt}, s[12:15], s{sOut} offen offset:{u*1024}")
    if st:
        a(f'''
        s_waitcnt vmcnt(0)
        s_memtime s[56:57]
        s_memrealtime s[60:61]
        s_waitcnt lgkmcnt(0)
        s_lshl_b32 s{t0}, s2, 3
        s_add_u32 s{t0}, s{t0}, s{sW}
        s_lshl_b32 s{t0}, s{t0}, 6
        s_add_u32 s{t0}, s{t0}, {65*MB}
        v_mov_b32 v20, s50
        v_mov_b32 v21, s52
        v_mov_b32 v22, s54
        v_mov_b32 v23, s56
        v_mov_b32 v24, s58
        v_mov_b32 v25, s60
        v_mov_b32 v26, 0
        v_mov_b32 v27, 0
        v_mov_b32 v28, 0
        buffer_store_dwordx4 v[20:23], v28, s[12:15], s{t0} offen
        buffer_store_dwordx4 v[24:27], v28, s[12:15], s{t0} offen offset:16
        ''')
    a.label(end)
    a("s_endpgm")
    a.label("k2_fallback")
    k0, v0_ = KB[0], VB[0]
    a(f"""
    s_waitcnt vmcnt(0) lgkmcnt(0)
    s_lshl_b32 s{sKv}, s{sH}, 18
    s_add_u32 s{sKv}, s{sKv}, {WS_KV}
    s_mov_b32 s{t1}, s{sKv}
    s_mov_b32 s{sC}, 0
    v_mov_b32 v{vTmp}, 0xff800000
    """)
    a.label("k2_fb1")
    for u in range(2):
        a(f"buffer_load_dwordx4 {vr(k0+4*u,4)}, v{vSt}, s[12:15], s{t1} offen offset:{u*1024}")
    a(f"""
    s_waitcnt vmcnt(0)
    v_mfma_f32_32x32x16_bf16 {vr(s0,16)}, {vr(k0,4)}, {vr(Q,4)}, 0
    v_mfma_f32_32x32x16_bf16 {vr(s0,16)}, {vr(k0+4,4)}, {vr(Q+4,4)}, {vr(s0,16)}
    s_nop 15
    """)
    for r in range(0, 16, 2):
        a(f"v_max3_f32 v{vTmp}, v{vTmp}, v{s0+r}, v{s0+r+1}")
    a(f"""
    s_add_u32 s{t1}, s{t1}, 4096
    s_add_u32 s{sC}, s{sC}, 1
    s_cmp_lt_u32 s{sC}, 64
    s_cbranch_scc1 k2_fb1
    v_mov_b32 v{vTmp2}, v{vTmp}
    s_nop 1
    v_permlane32_swap_b32 v{vTmp}, v{vTmp2}
    s_nop 1
    v_max_f32 v{vTmp}, v{vTmp}, v{vTmp2}
    """)
    for r in range(16):
        a(f"v_sub_f32 v{C+r}, 0, v{vTmp}")
    for r in range(16):
        a(f"v_mov_b32 v{O+r}, 0")
    for r in range(4):
        a(f"v_mov_b32 v{LS+r}, 0")
    a(f"""
    s_mov_b32 s{t1}, s{sKv}
    s_mov_b32 s{sC}, 0
    """)
    a.label("k2_fb2")
    for u in range(2):
        a(f"buffer_load_dwordx4 {vr(k0+4*u,4)}, v{vSt}, s[12:15], s{t1} offen offset:{u*1024}")
    for u in range(2):
        a(f"buffer_load_dwordx4 {vr(v0_+4*u,4)}, v{vSt}, s[12:15], s{t1} offen offset:{2048+u*1024}")
    a(f"""
    s_waitcnt vmcnt(0)
    v_mfma_f32_32x32x16_bf16 {vr(s0,16)}, {vr(k0,4)}, {vr(Q,4)}, {vr(C,16)}
    v_mfma_f32_32x32x16_bf16 {vr(s0,16)}, {vr(k0+4,4)}, {vr(Q+4,4)}, {vr(s0,16)}
    s_nop 15
    """)
    for r in range(16):
        a(f"v_exp_f32 v{s0+r}, v{s0+r}")
    a("s_nop 0")
    for r in range(8):
        a(f"v_cvt_pk_bf16_f32 v{P+r}, v{s0+2*r}, v{s0+2*r+1}")
    a(f"""
    s_nop 1
    v_mfma_f32_32x32x16_bf16 {vr(O,16)}, {vr(v0_,4)}, {vr(P,4)}, {vr(O,16)}
    v_mfma_f32_16x16x32_bf16 {vr(LS,4)}, {vr(SEL,4)}, {vr(P,4)}, {vr(LS,4)}
    v_mfma_f32_32x32x16_bf16 {vr(O,16)}, {vr(v0_+4,4)}, {vr(P+4,4)}, {vr(O,16)}
    v_mfma_f32_16x16x32_bf16 {vr(LS,4)}, {vr(SEL,4)}, {vr(P+4,4)}, {vr(LS,4)}
    s_add_u32 s{t1}, s{t1}, 4096
    s_add_u32 s{sC}, s{sC}, 1
    s_cmp_lt_u32 s{sC}, 64
    s_nop 7
    s_cbranch_scc1 k2_fb2
    s_nop 7
    s_branch k2_fin
    """)
    return name, NV
```

```python
from asmlib import *
import os
DBG = os.environ.get('K3DBG', '')
NS = int(os.environ.get('K3NS', '5'))
SLOT = 32768
K3_THREADS = 256
K3_LDS = NS * SLOT

def gen_k3(a):
    name = "oproj_kernel"
    kernel_head(a, name)
    vLane, vSt, vTmp, vTmp2, vA, vB, vAb, vBb, vOut = 1, 2, 3, 4, 5, 6, 7, 8, 9
    F = 16
    def QF(s, qb, k): return F + s * 64 + (k * 4 + qb) * 4
    def NF(s, nb, k): return F + s * 64 + (k * 4 + 2 + nb) * 4
    ACC = 144
    def AC(qb, nb): return ACC + (qb * 2 + nb) * 16
    NV = 208
    sPart, sMt, sNt, sW, sWq, sWn = 16, 17, 18, 19, 20, 21
    sQ, sN, sI, sRd, sWr, sM0, sSize = 22, 23, 24, 25, 26, 27, 28
    t0, t1, t2, t3 = 29, 30, 31, 32
    st = 'stamp' in DBG
    end = "k3_end"
    a(f"""
    s_cmp_ge_u32 s2, 256
    s_cbranch_scc1 {end}
    {'s_memtime s[50:51]' if st else ''}
    {'s_memrealtime s[58:59]' if st else ''}
    s_load_dwordx2 s[4:5], s[0:1], 64
    s_load_dwordx2 s[8:9], s[0:1], 48
    v_and_b32 v{vLane}, 63, v0
    v_lshrrev_b32 v{vTmp}, 6, v0
    s_and_b32 s{t0}, s2, 7
    s_lshr_b32 s{t1}, s2, 3
    v_readfirstlane_b32 s{sW}, v{vTmp}
    s_lshr_b32 s{sPart}, s{t0}, 2
    s_bfe_u32 s{t2}, s{t0}, 0x10001
    s_lshl_b32 s{t2}, s{t2}, 3
    s_lshr_b32 s{t3}, s{t1}, 2
    s_add_u32 s{sMt}, s{t2}, s{t3}
    s_and_b32 s{t2}, s{t0}, 1
    s_lshl_b32 s{t2}, s{t2}, 2
    s_and_b32 s{t3}, s{t1}, 3
    s_add_u32 s{sNt}, s{t2}, s{t3}
    s_mov_b32 s{sSize}, {WS_SIZE}
    s_mov_b32 s6, {WS_SIZE}
    s_mov_b32 s7, 0x00020000
    s_mov_b32 s10, {2048*4096}
    s_mov_b32 s11, 0x00020000
    v_lshlrev_b32 v{vSt}, 4, v{vLane}
    s_lshl_b32 s{t0}, s{sMt}, 2
    s_add_u32 s{t0}, s{t0}, s{sW}
    s_lshl_b32 s{sQ}, s{t0}, 16
    s_lshl_b32 s{t0}, s{sPart}, 22
    s_add_u32 s{sQ}, s{sQ}, s{t0}
    s_add_u32 s{sQ}, s{sQ}, {WS_O}
    s_lshl_b32 s{t0}, s{sNt}, 2
    s_add_u32 s{t0}, s{t0}, s{sW}
    s_lshl_b32 s{sN}, s{t0}, 16
    s_lshl_b32 s{t0}, s{sPart}, 21
    s_add_u32 s{sN}, s{sN}, s{t0}
    s_add_u32 s{sN}, s{sN}, {WS_WO}
    s_lshl_b32 s{sM0}, s{sW}, 12
    s_mov_b32 m0, s{sM0}
    s_waitcnt lgkmcnt(0)
    """)
    def dmaq():
        return [f"buffer_load_dwordx4 v{vSt}, s[4:7], s{sQ} offen offset:{j*1024} lds" for j in range(4)] + [f"s_add_u32 s{sQ}, s{sQ}, 4096"]
    def dman():
        return [f"buffer_load_dwordx4 v{vSt}, s[4:7], s{sN} offen offset:{j*1024} lds" for j in range(4)] + [f"s_add_u32 s{sN}, s{sN}, 4096"]
    for sl in range(NS):
        if sl:
            a(f"s_add_u32 m0, s{sM0}, {sl*SLOT}")
            a("s_nop 0")
        for d in dmaq(): a(d)
        a(f"s_add_u32 m0, s{sM0}, {sl*SLOT+16384}")
        a("s_nop 0")
        for d in dman(): a(d)
    a(f"""
    s_and_b32 s{sWq}, s{sW}, 1
    s_lshr_b32 s{sWn}, s{sW}, 1
    s_lshl_b32 s{t0}, s{sWq}, 13
    s_lshl_b32 s{t1}, s{sWn}, 13
    s_add_u32 s{t1}, s{t1}, 16384
    v_add_u32 v{vAb}, s{t0}, v{vSt}
    v_add_u32 v{vBb}, s{t1}, v{vSt}
    v_mov_b32 v{vA}, v{vAb}
    v_mov_b32 v{vB}, v{vBb}
    s_mov_b32 s{sI}, 0
    s_mov_b32 s{sRd}, 0
    """)
    a(f"""
    v_and_b32 v{vTmp}, 31, v{vLane}
    v_lshlrev_b32 v{vOut}, 12, v{vTmp}
    v_lshrrev_b32 v{vTmp}, 5, v{vLane}
    v_lshlrev_b32 v{vTmp}, 4, v{vTmp}
    v_add_u32 v{vOut}, v{vOut}, v{vTmp}
    """)
    for r in range(64):
        a(f"v_mov_b32 v{ACC+r}, 0")
    def reads(s):
        L = []
        for k in range(4):
            for b in range(2):
                L.append(f"ds_read_b128 {vr(QF(s,b,k),4)}, v{vA} offset:{b*4096+k*1024}")
                L.append(f"ds_read_b128 {vr(NF(s,b,k),4)}, v{vB} offset:{b*4096+k*1024}")
        return L
    def mfmas(s):
        L = []
        for k in range(4):
            for qb, nb in ((0, 0), (1, 1), (0, 1), (1, 0)):
                L.append(f"v_mfma_f32_32x32x16_bf16 {vr(AC(qb,nb),16)}, {vr(NF(s,nb,k),4)}, {vr(QF(s,qb,k),4)}, {vr(AC(qb,nb),16)}")
        return L
    def advance():
        return [
            f"s_mov_b32 s{sWr}, s{sRd}",
            f"s_add_u32 s{sRd}, s{sRd}, {SLOT}",
            f"s_cmp_eq_u32 s{sRd}, {SLOT*NS}",
            f"s_cselect_b32 s{sRd}, 0, s{sRd}",
            f"v_add_u32 v{vA}, s{sRd}, v{vAb}",
            f"v_add_u32 v{vB}, s{sRd}, v{vBb}",
        ]
    a(f"""
    s_waitcnt vmcnt({(NS-1)*8})
    s_barrier
    {'s_memtime s[52:53]' if st else ''}
    """)
    for r in reads(0): a(r)
    for x in advance(): a(x)
    def iteration(cur):
        M = mfmas(cur); R = reads(1 - cur)
        a(f"s_waitcnt vmcnt({(NS-2)*8}) lgkmcnt(0)")
        a("s_barrier")
        a(M[0])
        a(f"s_add_u32 m0, s{sWr}, s{sM0}")
        a(f"s_cmp_lt_u32 s{sI}, {16-NS}")
        a(f"s_cselect_b32 s6, s{sSize}, 0")
        a(R[0]); a(R[1])
        a(M[1])
        for d in dmaq(): a(d)
        a(f"s_add_u32 m0, m0, 16384")
        a(R[2]); a(R[3])
        a(M[2])
        for d in dman(): a(d)
        ri = 4
        for m in range(3, 16):
            for _ in range(2):
                if ri < 16:
                    a(R[ri]); ri += 1
            a(M[m])
            if m == 10:
                for x in advance(): a(x)
                a(f"s_add_u32 s{sI}, s{sI}, 1")
    a.label("k3_loop")
    iteration(0)
    iteration(1)
    a(f"s_cmp_lt_u32 s{sI}, 14")
    a("s_cbranch_scc1 k3_loop")
    iteration(0)
    a("s_waitcnt lgkmcnt(0)")
    for m in mfmas(1): a(m)
    if st: a('s_memtime s[54:55]')
    a(f"""
    s_lshl_b32 s{t0}, s{sMt}, 7
    s_lshl_b32 s{t1}, s{sWq}, 6
    s_add_u32 s{t0}, s{t0}, s{t1}
    s_lshl_b32 s{t0}, s{t0}, 12
    s_lshl_b32 s{t1}, s{sPart}, 11
    s_add_u32 s{t0}, s{t0}, s{t1}
    s_lshl_b32 s{t1}, s{sNt}, 8
    s_add_u32 s{t0}, s{t0}, s{t1}
    s_lshl_b32 s{t1}, s{sWn}, 7
    s_add_u32 s{t0}, s{t0}, s{t1}
    s_add_u32 s{t1}, s{t0}, {32*4096}
    """)
    T = F
    ti = 0
    for qb, nb in ((0, 0), (1, 1), (0, 1), (1, 0)):
        b = AC(qb, nb)
        for r in range(8):
            a(f"v_cvt_pk_bf16_f32 v{T+ti+r}, v{b+2*r}, v{b+2*r+1}")
        a("s_nop 1")
        for p in range(2):
            a(f"v_permlane32_swap_b32 v{T+ti+4*p}, v{T+ti+4*p+2}")
            a(f"v_permlane32_swap_b32 v{T+ti+4*p+1}, v{T+ti+4*p+3}")
        a("s_nop 1")
        for p in range(2):
            a(f"buffer_store_dwordx4 {vr(T+ti+4*p,4)}, v{vOut}, s[8:11], s{t0 if qb == 0 else t1} offen offset:{nb*64+p*32}")
        ti += 8
    if st:
        a(f'''
        s_waitcnt vmcnt(0)
        s_memtime s[56:57]
        s_memrealtime s[60:61]
        s_waitcnt lgkmcnt(0)
        s_mov_b32 s6, s{sSize}
        s_lshl_b32 s{t0}, s2, 3
        s_add_u32 s{t0}, s{t0}, s{sW}
        s_lshl_b32 s{t0}, s{t0}, 6
        s_add_u32 s{t0}, s{t0}, {66*MB}
        v_mov_b32 v20, s50
        v_mov_b32 v21, s52
        v_mov_b32 v22, s54
        v_mov_b32 v23, s56
        v_mov_b32 v24, s58
        v_mov_b32 v25, s60
        v_mov_b32 v26, 0
        v_mov_b32 v27, 0
        v_mov_b32 v28, 0
        buffer_store_dwordx4 v[20:23], v28, s[4:7], s{t0} offen
        buffer_store_dwordx4 v[24:27], v28, s[4:7], s{t0} offen offset:16
        ''')
    a.label(end)
    a("s_endpgm")
    return name, NV
```

```python
import sys, os
sys.path.insert(0, os.path.dirname(os.path.abspath(__file__)))
from asmlib import *
import gen_k1

HEAD = open("concat_heads__mha_block__linear_attn_block__prompt.s.ref").read().split("; @launch")[0]

def build(which, out):
    a = Asm()
    launches = []
    kds = ""
    for k in which:
        if k == "k1":
            n, nv = gen_k1.gen_k1(a)
            launches.append(f"; @launch kernel={n} grid=(256,1,1) block=(512,1,1) lds={gen_k1.K1_LDS}")
        elif k == "k2":
            import gen_k2
            n, nv = gen_k2.gen_k2(a)
            launches.append(f"; @launch kernel={n} grid=(256,1,1) block=(512,1,1) lds={gen_k2.K2_LDS}")
        elif k == "k3":
            import gen_k3
            n, nv = gen_k3.gen_k3(a)
            launches.append(f"; @launch kernel={n} grid=(256,1,1) block=({gen_k3.K3_THREADS},1,1) lds={gen_k3.K3_LDS}")
        kds += kd(n, nv)
    txt = HEAD + "\n".join(launches) + "\n" + '.amdgcn_target "amdgcn-amd-amdhsa--gfx950"\n.text\n' + a.text() + '.section .rodata,"a"\n.p2align 6\n' + kds
    sm = os.environ.get('STMOD', '')
    if sm:
        txt = "\n".join((l + " " + sm) if l.strip().startswith("buffer_store") else l for l in txt.split("\n"))
    open(out, "w").write(txt)

if __name__ == "__main__":
    which = sys.argv[1].split(",")
    build(which, sys.argv[2])
```

```python
from asmlib import *
import struct

def f2u(x):
    return struct.unpack("<I", struct.pack("<f", x))[0]

LOG2E = 1.4426950408889634
QSCALE = (32 ** -0.5) * LOG2E

XSLOT = 32768
NXS = 3
WBASE = XSLOT * NXS
WSLOT = 12288
NWS = 5
K1_LDS = WBASE + WSLOT * NWS

import os
DBG = os.environ.get('K1DBG', '')
PFP = int(os.environ.get('PFP', '0'))
PFT = int(os.environ.get('PFT', '0'))
PFS = int(os.environ.get('PFS', '2'))
SPREAD = int(os.environ.get('K1SPREAD', '1'))
def gen_k1(a):
    name = "qkv_kernel"
    kernel_head(a, name)
    vLane, vTmp, vTmp2 = 1, 2, 3
    vLd = 4
    vXb0, vLd2, vWb = 5, 6, 7
    vXa0, vXa1, vWa = 8, 9, 10
    vSt = 11
    vPfA, vPfB, vPfD = 12, 13, 14
    sPf, sPfInc = 37, 38
    F = 16
    def XF(s, mb, kk): return F + s * 40 + (mb * 2 + kk) * 4
    def WF(s, t, kk): return F + s * 40 + 16 + (t * 2 + kk) * 4
    ACC = 96
    def AC(mb, t): return ACC + (mb * 3 + t) * 16
    NV = 192
    sLd = 4
    sWS = 12
    sSo = 62
    sXr, sXw, sM0off2 = 16, 17, 18
    sInc, sRd, sWr, sM0off, sI, sSize = 20, 21, 22, 23, 24, 25
    sPart, sMt, sNt, sW, sWm, sWn, sH = 26, 27, 28, 29, 30, 31, 32
    t0, t1, t2, t3 = 33, 34, 35, 36
    end = "k1_end"
    a(f"""
    s_cmp_ge_u32 s2, 256
    s_cbranch_scc1 {end}
    {'s_memtime s[50:51]' if 'stamp' in DBG else ''}
    {'s_memrealtime s[58:59]' if 'stamp' in DBG else ''}
    s_load_dwordx4 s[40:43], s[0:1], 0
    s_load_dwordx4 s[44:47], s[0:1], 24
    s_load_dwordx2 s[12:13], s[0:1], 64
    v_and_b32 v{vLane}, 63, v0
    v_lshrrev_b32 v{vTmp}, 6, v0
    s_and_b32 s{t0}, s2, 7
    s_lshr_b32 s{t1}, s2, 3
    v_readfirstlane_b32 s{sW}, v{vTmp}
    s_lshr_b32 s{sPart}, s{t0}, 2
    s_bfe_u32 s{t2}, s{t0}, 0x10001
    s_lshl_b32 s{t2}, s{t2}, 2
    s_lshr_b32 s{t3}, s{t1}, 3
    s_add_u32 s{sMt}, s{t2}, s{t3}
    s_and_b32 s{t2}, s{t0}, 1
    s_lshl_b32 s{t2}, s{t2}, 3
    s_and_b32 s{t3}, s{t1}, 7
    s_add_u32 s{sNt}, s{t2}, s{t3}
    s_and_b32 s{sWm}, s{sW}, 3
    s_lshr_b32 s{sWn}, s{sW}, 2
    s_lshl_b32 s{sH}, s{sNt}, 1
    s_add_u32 s{sH}, s{sH}, s{sWn}
    s_mov_b32 s14, {WS_SIZE}
    s_mov_b32 s15, 0x00020000
    s_mov_b32 s7, 0x00020000
    v_lshlrev_b32 v{vSt}, 4, v{vLane}
    """)
    a(f"""
    v_and_b32 v{vTmp}, 31, v{vLane}
    s_lshl_b32 s{t0}, s{sWm}, 13
    v_lshlrev_b32 v{vTmp}, 7, v{vTmp}
    v_add_u32 v{vTmp}, s{t0}, v{vTmp}
    v_lshrrev_b32 v{vTmp2}, 5, v{vLane}
    v_bfe_u32 v{vXb0}, v{vLane}, 1, 3
    v_xor_b32 v{vTmp2}, v{vTmp2}, v{vXb0}
    v_lshlrev_b32 v{vTmp2}, 4, v{vTmp2}
    v_add_u32 v{vXb0}, v{vTmp}, v{vTmp2}
    """)
    a(f"""
    v_lshrrev_b32 v{vTmp}, 5, v{vLane}
    v_mul_u32_u24 v{vWb}, 3072, v{vTmp}
    v_bfe_u32 v{vTmp}, v{vLane}, 2, 2
    v_lshlrev_b32 v{vTmp}, 7, v{vTmp}
    v_add_u32 v{vWb}, v{vWb}, v{vTmp}
    v_bfe_u32 v{vTmp}, v{vLane}, 3, 1
    v_xor_b32 v{vTmp}, s{sWn}, v{vTmp}
    v_lshlrev_b32 v{vTmp}, 6, v{vTmp}
    v_add_u32 v{vWb}, v{vWb}, v{vTmp}
    v_bfe_u32 v{vTmp}, v{vLane}, 4, 1
    v_lshlrev_b32 v{vTmp}, 5, v{vTmp}
    v_add_u32 v{vWb}, v{vWb}, v{vTmp}
    v_and_b32 v{vTmp}, 3, v{vLane}
    v_lshlrev_b32 v{vTmp}, 3, v{vTmp}
    v_add_u32 v{vWb}, v{vWb}, v{vTmp}
    v_add_u32 v{vWb}, {WBASE}, v{vWb}
    """)
    for r in range(96):
        a(f"v_mov_b32 v{ACC + r}, 0")
    a(f"""
    s_waitcnt lgkmcnt(0)
    s_cmp_eq_u32 s{sPart}, 0
    s_cselect_b32 s40, s40, s44
    s_cselect_b32 s41, s41, s45
    s_cselect_b32 s42, s42, s46
    s_cselect_b32 s43, s43, s47
    s_cmp_ge_u32 s{sW}, 4
    s_cbranch_scc1 k1_setup_w
    """)
    a(f"""
    s_mov_b32 s4, s40
    s_mov_b32 s5, s41
    s_mov_b32 s{sSize}, {2048*2048}
    s_mov_b32 s6, s{sSize}
    v_lshrrev_b32 v{vTmp}, 3, v{vLane}
    v_lshlrev_b32 v{vLd}, 11, v{vTmp}
    v_lshrrev_b32 v{vTmp}, 4, v{vLane}
    v_and_b32 v{vTmp2}, 7, v{vLane}
    v_xor_b32 v{vTmp}, v{vTmp}, v{vTmp2}
    v_lshlrev_b32 v{vTmp}, 4, v{vTmp}
    v_add_u32 v{vLd}, v{vLd}, v{vTmp}
    v_xor_b32 v{vLd2}, 64, v{vLd}
    s_lshl_b32 s{t0}, s{sMt}, 8
    s_lshl_b32 s{t1}, s{sW}, 6
    s_add_u32 s{t0}, s{t0}, s{t1}
    s_lshl_b32 s{sSo}, s{t0}, 11
    s_add_u32 s{sSo+1}, s{sSo}, {16384-1024}
    s_add_u32 s{sSo+2}, s{sSo}, {2*(16384-1024)}
    s_add_u32 s{sSo+3}, s{sSo}, {3*(16384-1024)}
    s_add_u32 s{sSo+4}, s{sSo}, {4*16384}
    s_add_u32 s{sSo+5}, s{sSo+1}, {4*16384}
    s_add_u32 s{sSo+6}, s{sSo+2}, {4*16384}
    s_add_u32 s{sSo+7}, s{sSo+3}, {4*16384}
    s_lshl_b32 s{sM0off}, s{sW}, 13
    v_bfe_u32 v{vTmp}, v{vLane}, 1, 3
    v_lshlrev_b32 v{vPfA}, 11, v{vTmp}
    v_and_b32 v{vTmp}, 1, v{vLane}
    v_lshlrev_b32 v{vTmp}, 7, v{vTmp}
    v_add_u32 v{vPfA}, v{vPfA}, v{vTmp}
    s_bfe_u32 s{t0}, s2, 0x10001
    s_lshl_b32 s{t0}, s{t0}, 10
    s_lshr_b32 s{t1}, s2, 3
    s_lshl_b32 s{t1}, s{t1}, 5
    s_add_u32 s{t0}, s{t0}, s{t1}
    s_lshl_b32 s{t1}, s{sW}, 3
    s_add_u32 s{t0}, s{t0}, s{t1}
    s_lshl_b32 s{sPf}, s{t0}, 11
    s_add_u32 s{sPf}, s{sPf}, {PFS*256}
    s_mov_b32 s{sPfInc}, 256
    s_mov_b32 s8, s4
    s_mov_b32 s9, s5
    s_mov_b32 s10, s6
    s_mov_b32 s11, 0x00020000
    s_cmp_eq_u32 s{sPart}, 0
    s_cbranch_scc1 k1_main_0_0
    s_branch k1_main_1_0
    """)
    a.label("k1_setup_w")
    a(f"""
    s_mov_b32 s4, s42
    s_mov_b32 s5, s43
    s_mov_b32 s{sSize}, {1024*6144}
    s_mov_b32 s6, s{sSize}
    v_lshrrev_b32 v{vTmp}, 3, v{vLane}
    v_mul_u32_u24 v{vLd}, 6144, v{vTmp}
    v_bfe_u32 v{vTmp}, v{vLane}, 4, 1
    v_lshlrev_b32 v{vTmp}, 2, v{vTmp}
    v_and_b32 v{vTmp2}, 7, v{vLane}
    v_xor_b32 v{vTmp}, v{vTmp}, v{vTmp2}
    v_lshlrev_b32 v{vTmp}, 4, v{vTmp}
    v_add_u32 v{vLd}, v{vLd}, v{vTmp}
    s_mul_i32 s{t0}, s{sWm}, {8*6144}
    s_lshl_b32 s{t1}, s{sNt}, 7
    s_add_u32 s{sSo}, s{t0}, s{t1}
    s_add_u32 s{sSo+1}, s{sSo}, 1024
    s_add_u32 s{sSo+2}, s{sSo}, 2048
    s_mov_b32 s{sInc}, {32*6144}
    s_mul_i32 s{sM0off}, s{sWm}, 3072
    s_add_u32 s{sM0off}, s{sM0off}, {WBASE}
    v_bfe_u32 v{vTmp}, v{vLane}, 3, 2
    v_min_u32 v{vTmp}, 2, v{vTmp}
    v_lshlrev_b32 v{vPfA}, 11, v{vTmp}
    v_and_b32 v{vTmp}, 7, v{vLane}
    v_lshlrev_b32 v{vTmp}, 7, v{vTmp}
    v_add_u32 v{vPfA}, v{vPfA}, v{vTmp}
    s_lshr_b32 s{t1}, s2, 3
    s_lshl_b32 s{t1}, s{t1}, 2
    s_add_u32 s{t0}, s{sWm}, s{t1}
    s_add_u32 s{t0}, s{t0}, {PFS*128}
    s_mul_i32 s{sPf}, s{t0}, 6144
    s_and_b32 s{t0}, s2, 1
    s_lshl_b32 s{t0}, s{t0}, 10
    s_add_u32 s{sPf}, s{sPf}, s{t0}
    s_mov_b32 s{sPfInc}, {128*6144}
    s_mov_b32 s8, s4
    s_mov_b32 s9, s5
    s_mov_b32 s10, s6
    s_mov_b32 s11, 0x00020000
    s_cmp_eq_u32 s{sPart}, 0
    s_cbranch_scc1 k1_main_0_1
    s_branch k1_main_1_1
    """)

    def dma(role, half=0):
        L = []
        if role == 0:
            for j in range(4):
                L.append(f"buffer_load_dwordx4 v{vLd2 if j & 1 else vLd}, s[4:7], s{sSo+4*half+j} offen offset:{j*1024} lds")
            if half:
                L.append(f"v_add_u32 v{vLd}, 128, v{vLd}")
                L.append(f"v_add_u32 v{vLd2}, 128, v{vLd2}")
        else:
            for j in range(3):
                L.append(f"buffer_load_dwordx4 v{vLd}, s[4:7], s{sSo+j} offen offset:{j*1024} lds")
            L.append(f"v_add_u32 v{vLd}, s{sInc}, v{vLd}")
        return L

    def prefetch(role):
        L = [f"buffer_load_dword v{vPfD}, v{vPfA}, s[8:11], s{sPf} offen"]
        L.append(f"s_add_u32 s{sPf}, s{sPf}, s{sPfInc}")
        return L

    def reads(s):
        L = []
        for kk in range(2):
            for mb in range(2):
                L.append(f"ds_read_b128 {vr(XF(s,mb,kk),4)}, v{vXa0 if kk == 0 else vXa1} offset:{mb*4096}")
            for t in range(3):
                for rd in range(2):
                    L.append(f"ds_read_b64_tr_b16 {vr(WF(s,t,kk)+2*rd,2)}, v{vWa} offset:{kk*6144+t*1024+rd*512}")
        return L

    def mfmas(part, s):
        L = []
        if 'm16' in DBG:
            for wi in range(6):
                for xi in range(4):
                    ac = ACC + (wi * 4 + xi) * 4
                    L.append(f"v_mfma_f32_16x16x32_bf16 {vr(ac,4)}, {vr(F+s*40+16+wi*4,4)}, {vr(F+s*40+xi*4,4)}, {vr(ac,4)}")
            return [L[2*i] + "\n" + L[2*i+1] for i in range(12)]
        for kk in range(2):
            for t in range(3):
                for mb in range(2):
                    wfirst = (t == 0) or (t == 1 and part == 0)
                    A, B = (WF(s,t,kk), XF(s,mb,kk)) if wfirst else (XF(s,mb,kk), WF(s,t,kk))
                    L.append(f"v_mfma_f32_32x32x16_bf16 {vr(AC(mb,t),16)}, {vr(A,4)}, {vr(B,4)}, {vr(AC(mb,t),16)}")
        return L

    def advance(next_even):
        L = [
            f"s_mov_b32 s{sWr}, s{sRd}",
            f"s_add_u32 s{sRd}, s{sRd}, {WSLOT}",
            f"s_cmp_eq_u32 s{sRd}, {WSLOT*NWS}",
            f"s_cselect_b32 s{sRd}, 0, s{sRd}",
            f"v_add_u32 v{vWa}, s{sRd}, v{vWb}",
        ]
        if next_even:
            L += [f"v_xor_b32 v{vXa0}, 64, v{vXa0}", f"v_xor_b32 v{vXa1}, 64, v{vXa1}"]
        else:
            L += [
                f"s_mov_b32 s{sXw}, s{sXr}",
                f"s_add_u32 s{sXr}, s{sXr}, {XSLOT}",
                f"s_cmp_eq_u32 s{sXr}, {XSLOT*NXS}",
                f"s_cselect_b32 s{sXr}, 0, s{sXr}",
                f"v_add_u32 v{vXa0}, s{sXr}, v{vXb0}",
                f"v_xor_b32 v{vXa1}, 32, v{vXa0}",
            ]
        return L

    def iteration(part, role, cur):
        M = mfmas(part, cur)
        R = reads(1 - cur)
        D = dma(role, 1 - cur)
        if 'nodma' in DBG: D = [d for d in D if d.startswith('v_')]
        if 'nomfma' in DBG: M = ['s_nop 0'] * 12
        if 'noread' in DBG: R = ['s_nop 0'] * 16
        npf = 1 if PFT else 0
        if role == 0:
            a(f"s_waitcnt vmcnt({8+2*npf}) lgkmcnt(0)" if cur == 1 else "s_waitcnt lgkmcnt(0)")
        else:
            a(f"s_waitcnt vmcnt({9+2*npf}) lgkmcnt(0)")
        a("s_barrier")
        a(M[0])
        if role == 0:
            a(f"s_add_u32 m0, s{sXw}, s{sM0off}" if cur == 1 else f"s_add_u32 m0, s{sXw}, s{sM0off2}")
        else:
            a(f"s_add_u32 m0, s{sWr}, s{sM0off}")
        a(f"s_cmp_lt_u32 s{sI}, 27")
        a(f"s_cselect_b32 s6, s{sSize}, 0")
        a(R[0]); a(R[1])
        a(M[1])
        dm = [d for d in D if d.startswith('buffer')]
        dv = [d for d in D if not d.startswith('buffer')]
        if SPREAD:
            pos = (1, 4, 7, 10) if role == 0 else (2, 5, 8)
        else:
            pos = (1, 1, 1, 1)
        def emit_d(m):
            while dm and pos[(4 if role == 0 else 3) - len(dm)] == m:
                a(dm.pop(0))
                if not dm:
                    for d in dv: a(d)
        if not dm:
            for d in dv: a(d)
        emit_d(1)
        if npf and cur == 0:
            for x in prefetch(role): a(x)
        ri = 2
        for m in range(2, 12):
            for _ in range(2):
                if ri < 16:
                    a(R[ri]); ri += 1
            a(M[m])
            emit_d(m)
            if m == 9:
                for x in advance(cur == 1): a(x)
                a(f"s_add_u32 s{sI}, s{sI}, 1")

    for part in range(2):
        for role in range(2):
            a.label(f"k1_main_{part}_{role}")
            for w in range(PFP):
                for x in prefetch(role): a(x)
            if role == 0:
                for sl in range(5):
                    a(f"s_add_u32 m0, s{sM0off}, {(sl >> 1) * XSLOT + (sl & 1) * 4096}")
                    a("s_nop 0")
                    for d in dma(0, sl & 1): a(d)
                    if PFT and sl in (1, 3):
                        for x in prefetch(role): a(x)
            else:
                for sl in range(NWS):
                    a(f"s_add_u32 m0, s{sM0off}, {sl*WSLOT}")
                    a("s_nop 0")
                    for d in dma(1): a(d)
                    if PFT and sl in (1, 3):
                        for x in prefetch(role): a(x)
            a(f"""
            s_add_u32 s{sM0off2}, s{sM0off}, 4096
            s_mov_b32 s{sRd}, 0
            s_mov_b32 s{sI}, 0
            s_mov_b32 s{sXr}, 0
            s_mov_b32 s{sXw}, {2*XSLOT}
            v_mov_b32 v{vXa0}, v{vXb0}
            v_xor_b32 v{vXa1}, 32, v{vXb0}
            v_mov_b32 v{vWa}, v{vWb}
            s_waitcnt vmcnt({12 + (2 if PFT else 0)})
            s_barrier
            {'s_memtime s[52:53]' if 'stamp' in DBG else ''}
            """)
            for r in reads(0): a(r)
            for x in advance(True): a(x)
            lp = f"k1_loop_{part}_{role}"
            a.label(lp)
            iteration(part, role, 0)
            iteration(part, role, 1)
            a(f"s_cmp_lt_u32 s{sI}, 30")
            a(f"s_cbranch_scc1 {lp}")
            iteration(part, role, 0)
            a("s_waitcnt lgkmcnt(0)")
            for m in mfmas(part, 1): a(m)
            if 'stamp' in DBG: a('s_memtime s[54:55]')
            a(f"s_branch k1_epi_{part}")

    a.label("k1_epi_0")
    a(f"""
    s_lshl_b32 s{t0}, s{sMt}, 3
    s_lshl_b32 s{t1}, s{sWm}, 1
    s_add_u32 s{t0}, s{t0}, s{t1}
    s_lshl_b32 s{t1}, s{sH}, 6
    s_add_u32 s{t0}, s{t0}, s{t1}
    s_lshl_b32 s{t1}, s{t0}, 11
    s_lshl_b32 s{t2}, s{t0}, 12
    s_add_u32 s{t2}, s{t2}, {WS_KV}
    s_add_u32 s{t3}, s{t2}, 4096
    s_mov_b32 s{sI}, {f2u(QSCALE):#x}
    s_nop 7
    """)
    T = F
    ti = 0
    for mb in range(2):
        for t in range(3):
            b = AC(mb, t)
            if t == 0:
                for r in range(16):
                    a(f"v_mul_f32 v{b+r}, s{sI}, v{b+r}")
            for r in range(8):
                a(f"v_cvt_pk_bf16_f32 v{T+ti+r}, v{b+2*r}, v{b+2*r+1}")
            for u in range(2):
                if t == 0:
                    a(f"buffer_store_dwordx4 {vr(T+ti+4*u,4)}, v{vSt}, s[12:15], s{t1} offen offset:{mb*2048+u*1024}")
                else:
                    a(f"buffer_store_dwordx4 {vr(T+ti+4*u,4)}, v{vSt}, s[12:15], s{t2 if mb == 0 else t3} offen offset:{(t-1)*2048+u*1024}")
            ti += 8
    a(f"s_branch {'k1_stamp' if 'stamp' in DBG else end}")

    a.label("k1_epi_1")
    a(f"""
    s_lshl_b32 s{t0}, s{sMt}, 3
    s_lshl_b32 s{t1}, s{sWm}, 1
    s_add_u32 s{t0}, s{t0}, s{t1}
    s_lshl_b32 s{t1}, s{sH}, 6
    s_add_u32 s{t0}, s{t0}, s{t1}
    s_lshl_b32 s{t1}, s{t0}, 11
    s_add_u32 s{t1}, s{t1}, {WS_QB}
    s_mov_b32 s{sI}, {f2u(LOG2E):#x}
    s_mov_b32 s{t2}, {f2u(1e-6):#x}
    s_mov_b32 s{t3}, 0xffff0000
    s_nop 7
    """)
    for mb in range(2):
        b = AC(mb, 0)
        for r in range(8):
            a(f"v_cvt_pk_bf16_f32 v{T+mb*8+r}, v{b+2*r}, v{b+2*r+1}")
        for u in range(2):
            a(f"buffer_store_dwordx4 {vr(T+mb*8+4*u,4)}, v{vSt}, s[12:15], s{t1} offen offset:{mb*2048+u*1024}")
    VF, PK, ONE = T + 16, T + 32, T + 48
    KVA, ZA = AC(0, 0), AC(1, 0)
    for mb in range(2):
        b = AC(mb, 2)
        for r in range(8):
            a(f"v_cvt_pk_bf16_f32 v{VF+mb*8+r}, v{b+2*r}, v{b+2*r+1}")
    for r in range(4):
        a(f"v_mov_b32 v{ONE+r}, 0x3f803f80")
    for r in range(16):
        a(f"v_mov_b32 v{KVA+r}, 0")
        a(f"v_mov_b32 v{ZA+r}, 0")
    for mb in range(2):
        b = AC(mb, 1)
        e = AC(mb, 2)
        for r in range(8):
            a(f"v_cvt_pk_bf16_f32 v{PK+mb*8+r}, v{b+2*r}, v{b+2*r+1}")
        for r in range(8):
            a(f"v_lshlrev_b32 v{b+2*r}, 16, v{PK+mb*8+r}")
            a(f"v_and_b32 v{b+2*r+1}, s{t3}, v{PK+mb*8+r}")
        for r in range(16):
            a(f"v_mul_f32 v{e+r}, s{sI}, v{b+r}")
        for r in range(16):
            a(f"v_exp_f32_e64 v{e+r}, v{e+r} clamp")
        for r in range(16):
            a(f"v_max_f32 v{b+r}, s{t2}, v{b+r}")
        for r in range(16):
            a(f"v_add_f32 v{b+r}, v{b+r}, v{e+r}")
        for r in range(8):
            a(f"v_cvt_pk_bf16_f32 v{PK+mb*8+r}, v{b+2*r}, v{b+2*r+1}")
    a("s_nop 1")
    for mb in range(2):
        for u in range(2):
            a(f"v_mfma_f32_32x32x16_bf16 {vr(KVA,16)}, {vr(PK+mb*8+4*u,4)}, {vr(VF+mb*8+4*u,4)}, {vr(KVA,16)}")
            a(f"v_mfma_f32_32x32x16_bf16 {vr(ZA,16)}, {vr(PK+mb*8+4*u,4)}, {vr(ONE,4)}, {vr(ZA,16)}")
    a(f"""
    s_waitcnt vmcnt(0)
    s_barrier
    s_lshl_b32 s{t0}, s{sW}, 13
    v_add_u32 v{vTmp}, s{t0}, v{vSt}
    s_nop 7
    """)
    for q in range(4):
        a(f"ds_write_b128 v{vTmp}, {vr(KVA+4*q,4)} offset:{q*1024}")
    for q in range(4):
        a(f"ds_write_b128 v{vTmp}, {vr(ZA+4*q,4)} offset:{4096+q*1024}")
    a(f"""
    s_lshl_b32 s{t0}, s{sWn}, 15
    s_lshl_b32 s{t1}, s{sWm}, 11
    s_add_u32 s{t0}, s{t0}, s{t1}
    v_add_u32 v{vTmp}, s{t0}, v{vSt}
    s_waitcnt lgkmcnt(0)
    s_barrier
    """)
    RB = T
    for j in range(4):
        for q in range(2):
            a(f"ds_read_b128 {vr(RB+(j*2+q)*4,4)}, v{vTmp} offset:{j*8192+q*1024}")
    a(f"""
    s_lshl_b32 s{t0}, s{sH}, 3
    s_add_u32 s{t0}, s{t0}, s{sMt}
    s_lshl_b32 s{t0}, s{t0}, 13
    s_add_u32 s{t0}, s{t0}, s{t1}
    s_add_u32 s{t0}, s{t0}, {WS_KVP}
    s_waitcnt lgkmcnt(0)
    """)
    for r in range(8):
        a(f"v_add_f32 v{RB+r}, v{RB+r}, v{RB+8+r}")
        a(f"v_add_f32 v{RB+16+r}, v{RB+16+r}, v{RB+24+r}")
    for r in range(8):
        a(f"v_add_f32 v{RB+r}, v{RB+r}, v{RB+16+r}")
    for q in range(2):
        a(f"buffer_store_dwordx4 {vr(RB+4*q,4)}, v{vSt}, s[12:15], s{t0} offen offset:{q*1024}")
    if 'stamp' in DBG:
        a.label("k1_stamp")
        a(f'''
        s_waitcnt vmcnt(0)
        s_memtime s[56:57]
        s_memrealtime s[60:61]
        s_waitcnt lgkmcnt(0)
        s_lshl_b32 s{t0}, s2, 3
        s_add_u32 s{t0}, s{t0}, s{sW}
        s_lshl_b32 s{t0}, s{t0}, 6
        s_add_u32 s{t0}, s{t0}, {64*MB}
        v_mov_b32 v20, s50
        v_mov_b32 v21, s52
        v_mov_b32 v22, s54
        v_mov_b32 v23, s56
        v_mov_b32 v24, s58
        v_mov_b32 v25, s60
        v_mov_b32 v26, 0
        v_mov_b32 v27, 0
        v_mov_b32 v28, 0
        buffer_store_dwordx4 v[20:23], v28, s[12:15], s{t0} offen
        buffer_store_dwordx4 v[24:27], v28, s[12:15], s{t0} offen offset:16
        ''')
    a.label(end)
    a("s_endpgm")
    return name, NV
```

```python
from asmlib import *
import struct, os

def f2u(x):
    return struct.unpack("<I", struct.pack("<f", x))[0]

LOG2E = 1.4426950408889634
DBG = os.environ.get('K2DBG', '')
SCHED = os.environ.get('K2SCHED', 'a')

CH = 32768
NCH = 4
KVF = CH * NCH
WOST = KVF + 4096
K2_LDS = WOST + 16384

def gen_k2(a):
    name = "attn_kernel"
    kernel_head(a, name)
    vLane, vSt, vTmp, vTmp2, vRd, vRdN, vWo = 1, 2, 3, 4, 5, 6, 7
    Q = 8
    KB = [16, 24]
    VB = [32, 40]
    S = [48, 64]
    C = 80
    O = 96
    PB = [112, 120]
    LS = 128
    SEL = 132
    KP = 136
    QBR = 168
    KF = 176
    WF = 192
    vWr, vKw, vKr, vT3 = 200, 201, 202, 203
    vCs = 204
    NV = 208
    sH, sQb, sW, sBlk = 16, 17, 18, 19
    sKv, sC, sRd, sRdN, sWr, sM0off, sSize = 20, 21, 22, 23, 24, 25, 26
    t0, t1, t2, t3 = 27, 28, 29, 30
    sOut = 31
    sWoS, sWoD, sWoD2, sWoM = 32, 34, 35, 38
    sKvp, sQB, sOutB = 39, 40, 41
    cL2E, cEps, cHi = 42, 43, 44
    end = "k2_end"
    st = 'stamp' in DBG
    vq = []
    def vm(s, tag, load=True):
        a(s); vq.append((tag, load))
    def after(tag):
        idx = max(i for i, (t, l) in enumerate(vq) if t == tag)
        return sum(1 for (t, l) in vq[idx+1:] if l)

    a(f"""
    s_cmp_ge_u32 s2, 256
    s_cbranch_scc1 {end}
    {'s_memtime s[50:51]' if st else ''}
    {'s_memrealtime s[58:59]' if st else ''}
    s_load_dwordx2 s[12:13], s[0:1], 64
    s_load_dwordx2 s[8:9], s[0:1], 16
    s_load_dwordx2 s[36:37], s[0:1], 40
    v_and_b32 v{vLane}, 63, v0
    v_lshrrev_b32 v{vTmp}, 6, v0
    s_and_b32 s{t0}, s2, 7
    s_lshr_b32 s{t1}, s2, 3
    v_readfirstlane_b32 s{sW}, v{vTmp}
    s_lshl_b32 s{sH}, s{t0}, 2
    s_lshr_b32 s{t2}, s{t1}, 3
    s_add_u32 s{sH}, s{sH}, s{t2}
    s_and_b32 s{sQb}, s{t1}, 7
    s_lshl_b32 s{sBlk}, s{sQb}, 3
    s_add_u32 s{sBlk}, s{sBlk}, s{sW}
    s_mov_b32 s14, {WS_SIZE}
    s_mov_b32 s15, 0x00020000
    s_mov_b32 s{sSize}, {WS_SIZE}
    s_mov_b32 s6, {WS_SIZE}
    s_mov_b32 s7, 0x00020000
    v_lshlrev_b32 v{vSt}, 4, v{vLane}
    s_lshl_b32 s{t0}, s{sH}, 6
    s_add_u32 s{t0}, s{t0}, s{sBlk}
    s_lshl_b32 s{t0}, s{t0}, 11
    s_add_u32 s{sQB}, s{t0}, {WS_QB}
    s_lshl_b32 s{sKv}, s{sH}, 18
    s_lshl_b32 s{sM0off}, s{sW}, 12
    s_add_u32 s{sKv}, s{sKv}, s{sM0off}
    s_add_u32 s{sKv}, s{sKv}, {WS_KV}
    s_mov_b32 m0, s{sM0off}
    s_waitcnt lgkmcnt(0)
    {'s_memtime s[62:63]' if st else ''}
    s_mov_b32 s4, s12
    s_mov_b32 s5, s13
    """)
    def dma1(j, tag):
        vm(f"buffer_load_dwordx4 v{vSt}, s[4:7], s{sKv} offen offset:{j*1024} lds", tag)
        if j == 3:
            a(f"s_add_u32 s{sKv}, s{sKv}, {CH}")
    for j in range(4): dma1(j, 'c0')
    for u in range(2):
        vm(f"buffer_load_dwordx4 {vr(Q+4*u,4)}, v{vSt}, s[12:15], s{t0} offen offset:{u*1024}", 'qa')
    if st: a('s_memtime s[64:65]')
    a(f"""
    s_add_u32 m0, s{sM0off}, {CH}
    s_lshl_b32 s{sKvp}, s{sH}, 16
    s_lshl_b32 s{t3}, s{sW}, 10
    s_add_u32 s{sKvp}, s{sKvp}, s{t3}
    s_add_u32 s{sKvp}, s{sKvp}, {WS_KVP}
    s_lshl_b32 s{sOut}, s{sBlk}, 5
    s_add_u32 s{sOut}, s{sOut}, s{sH}
    s_lshl_b32 s{sOut}, s{sOut}, 11
    s_add_u32 s{sOut}, s{sOut}, {WS_O}
    s_add_u32 s{sOutB}, s{sOut}, {4*MB}
    s_cmp_lt_u32 s2, 128
    s_cselect_b32 s8, s8, s36
    s_cselect_b32 s9, s9, s37
    s_mov_b32 s10, {2*MB}
    s_mov_b32 s11, 0x00020000
    s_bfe_u32 s{t0}, s2, 0x40003
    s_lshl_b32 s{t0}, s{t0}, 2
    s_lshr_b32 s{t1}, s{sW}, 1
    s_add_u32 s{t0}, s{t0}, s{t1}
    s_and_b32 s{t1}, s2, 7
    s_lshl_b32 s{t1}, s{t1}, 1
    s_and_b32 s{t2}, s{sW}, 1
    s_add_u32 s{t1}, s{t1}, s{t2}
    s_lshl_b32 s{sWoS}, s{t0}, 15
    s_lshl_b32 s{t2}, s{t1}, 7
    s_add_u32 s{sWoS}, s{sWoS}, s{t2}
    s_add_u32 s{sWoS+1}, s{sWoS}, {16384-1024}
    s_lshr_b32 s{t2}, s2, 7
    s_lshl_b32 s{sWoD}, s{t2}, 21
    s_lshl_b32 s{t2}, s{t1}, 17
    s_add_u32 s{sWoD}, s{sWoD}, s{t2}
    s_lshl_b32 s{t2}, s{t0}, 10
    s_add_u32 s{sWoD}, s{sWoD}, s{t2}
    s_add_u32 s{sWoD}, s{sWoD}, {WS_WO}
    s_add_u32 s{sWoD2}, s{sWoD}, 65536
    s_lshl_b32 s{sWoM}, s{sW}, 11
    s_add_u32 s{sWoM}, s{sWoM}, {WOST}
    v_lshrrev_b32 v{vTmp}, 3, v{vLane}
    v_lshlrev_b32 v{vTmp}, 11, v{vTmp}
    v_and_b32 v{vTmp2}, 7, v{vLane}
    v_lshlrev_b32 v{vTmp2}, 4, v{vTmp2}
    v_add_u32 v{vWo}, v{vTmp}, v{vTmp2}
    v_lshrrev_b32 v{vTmp}, 5, v{vLane}
    v_lshlrev_b32 v{vWr}, 9, v{vTmp}
    v_bfe_u32 v{vTmp}, v{vLane}, 2, 2
    v_lshlrev_b32 v{vTmp}, 7, v{vTmp}
    v_add_u32 v{vWr}, v{vWr}, v{vTmp}
    v_bfe_u32 v{vTmp}, v{vLane}, 4, 1
    v_lshlrev_b32 v{vTmp}, 5, v{vTmp}
    v_add_u32 v{vWr}, v{vWr}, v{vTmp}
    v_and_b32 v{vTmp}, 3, v{vLane}
    v_lshlrev_b32 v{vTmp}, 3, v{vTmp}
    v_add_u32 v{vWr}, v{vWr}, v{vTmp}
    v_add_u32 v{vWr}, s{sWoM}, v{vWr}
    v_bfe_u32 v{vTmp}, v{vLane}, 4, 1
    v_bfe_u32 v{vTmp2}, v{vLane}, 2, 1
    v_cmp_eq_u32 vcc, v{vTmp}, v{vTmp2}
    v_mov_b32 v{vTmp}, 0x3f803f80
    s_lshr_b32 s{t0}, s{sW}, 1
    s_lshl_b32 s{t0}, s{t0}, 10
    v_cndmask_b32 v{SEL}, 0, v{vTmp}, vcc
    s_and_b32 s{t1}, s{sW}, 1
    s_lshl_b32 s{t1}, s{t1}, 3
    s_add_u32 s{t0}, s{t0}, s{t1}
    s_add_u32 s{t0}, s{t0}, {KVF}
    v_mov_b32 v{SEL+1}, v{SEL}
    v_mov_b32 v{SEL+2}, v{SEL}
    v_mov_b32 v{SEL+3}, v{SEL}
    v_add_u32 v{vKw}, s{t0}, v{vSt}
    v_add_u32 v{vKr}, {KVF}, v{vSt}
    s_mov_b32 s{cL2E}, {f2u(LOG2E):#x}
    s_mov_b32 s{cEps}, {f2u(1e-6):#x}
    s_mov_b32 s{cHi}, 0xffff0000
    s_mov_b32 s{sC}, 0
    s_mov_b32 s{sRd}, 0
    s_mov_b32 s{sRdN}, {CH}
    s_mov_b32 s{sWr}, {3*CH}
    v_mov_b32 v{vRd}, v{vSt}
    v_add_u32 v{vRdN}, {CH}, v{vSt}
    """)
    for r in range(16):
        a(f"v_mov_b32 v{O+r}, 0")
    for r in range(4):
        a(f"v_mov_b32 v{LS+r}, 0")
    for r in range(8):
        a(f"v_mov_b32 v{PB[1]+r}, 0")
        a(f"v_mov_b32 v{VB[1]+r}, 0")
    a(f"""
    {'s_memtime s[66:67]' if st else ''}
    s_waitcnt vmcnt({after('qa')})
    {'s_memtime s[68:69]' if st else ''}
    s_barrier
    {'s_memtime s[52:53]' if st else ''}
    """)
    for u in range(2):
        a(f"ds_read_b128 {vr(KB[0]+4*u,4)}, v{vSt} offset:{u*1024}")
    for u in range(2):
        a(f"ds_read_b128 {vr(KB[1]+4*u,4)}, v{vSt} offset:{4096+u*1024}")
    s0 = S[0]
    for j in range(2): dma1(j, 'c1')
    a(f"""
    s_waitcnt lgkmcnt(2)
    v_mfma_f32_32x32x16_bf16 {vr(s0,16)}, {vr(KB[0],4)}, {vr(Q,4)}, 0
    v_mfma_f32_32x32x16_bf16 {vr(s0,16)}, {vr(KB[0]+4,4)}, {vr(Q+4,4)}, {vr(s0,16)}
    """)
    for j in range(2, 4): dma1(j, 'c1')
    a(f"""
    s_add_u32 m0, s{sM0off}, {2*CH}
    s_mov_b64 vcc, -1
    s_nop 7
    """)
    a(f"v_max3_f32 v{vTmp}, v{s0}, v{s0+1}, v{s0+2}")
    a(f"v_max3_f32 v{vTmp2}, v{s0+3}, v{s0+4}, v{s0+5}")
    for r in range(6, 14, 4):
        a(f"v_max3_f32 v{vTmp}, v{vTmp}, v{s0+r}, v{s0+r+1}")
        a(f"v_max3_f32 v{vTmp2}, v{vTmp2}, v{s0+r+2}, v{s0+r+3}")
    a(f"""
    v_max3_f32 v{vTmp}, v{vTmp}, v{s0+14}, v{s0+15}
    v_max_f32 v{vTmp}, v{vTmp}, v{vTmp2}
    v_mov_b32 v{vTmp2}, v{vTmp}
    s_nop 1
    v_permlane32_swap_b32 v{vTmp}, v{vTmp2}
    s_nop 1
    v_max_f32 v{vTmp}, v{vTmp}, v{vTmp2}
    """)
    for j in range(2): dma1(j, 'c2')
    for r in range(16):
        a(f"v_sub_f32 v{C+r}, 0, v{vTmp}")
    for r in range(16):
        a(f"v_sub_f32 v{s0+r}, v{s0+r}, v{vTmp}")

    U, E = KP, KP + 16
    OB, DEN = KP, KP + 16
    def side(c, t):
        if c == 0:
            if t in (1, 2, 3, 4):
                for m in (2 * t - 2, 2 * t - 1):
                    a(f"buffer_load_dwordx4 {vr(KP+4*m,4)}, v{vSt}, s[12:15], s{sKvp} offen")
                    a(f"s_add_u32 s{sKvp}, s{sKvp}, 8192")
            if t == 5:
                a(f"s_mov_b32 m0, s{sWoM}")
                a("s_nop 0")
                a(f"buffer_load_dwordx4 v{vWo}, s[8:11], s{sWoS} offen lds")
                a(f"buffer_load_dwordx4 v{vWo}, s[8:11], s{sWoS+1} offen offset:1024 lds")
            if t == 7:
                for u in range(2):
                    a(f"buffer_load_dwordx4 {vr(QBR+4*u,4)}, v{vSt}, s[12:15], s{sQB} offen offset:{u*1024}")
        elif c == 1:
            if t == 1:
                a(f"s_waitcnt vmcnt(6)")
                for stp in (16, 8, 4):
                    for r in range(stp):
                        a(f"v_add_f32 v{KP+r}, v{KP+r}, v{KP+stp+r}")
                a(f"v_cvt_pk_bf16_f32 v{KP+4}, v{KP}, v{KP+1}")
                a(f"v_cvt_pk_bf16_f32 v{KP+5}, v{KP+2}, v{KP+3}")
                a(f"ds_write_b64 v{vKw}, {vr(KP+4,2)}")
                for nb in range(2):
                    for rd in range(2):
                        a(f"ds_read_b64_tr_b16 {vr(WF+4*nb+2*rd,2)}, v{vWr} offset:{nb*64+rd*1024}")
            if t == 2:
                a(f"s_waitcnt vmcnt(2)")
                a(f"buffer_store_dwordx4 {vr(WF,4)}, v{vSt}, s[12:15], s{sWoD} offen")
                a(f"buffer_store_dwordx4 {vr(WF+4,4)}, v{vSt}, s[12:15], s{sWoD2} offen")
                for r in range(8):
                    a(f"v_lshlrev_b32 v{U+2*r}, 16, v{QBR+r}")
                    a(f"v_and_b32 v{U+2*r+1}, s{cHi}, v{QBR+r}")
                for r in range(16):
                    a(f"v_mul_f32 v{E+r}, s{cL2E}, v{U+r}")
            if t == 3:
                for r in range(16):
                    a(f"v_exp_f32_e64 v{E+r}, v{E+r} clamp")
            if t == 4:
                for r in range(16):
                    a(f"v_max_f32 v{U+r}, s{cEps}, v{U+r}")
                for r in range(16):
                    a(f"v_add_f32 v{U+r}, v{U+r}, v{E+r}")
                for r in range(8):
                    a(f"v_cvt_pk_bf16_f32 v{QBR+r}, v{U+2*r}, v{U+2*r+1}")
            if t == 7:
                for f in range(4):
                    a(f"ds_read_b128 {vr(KF+4*f,4)}, v{vKr} offset:{f*1024}")
        elif c == 2:
            if t == 1:
                a(f"v_mfma_f32_32x32x16_bf16 {vr(OB,16)}, {vr(KF,4)}, {vr(QBR,4)}, 0")
                a(f"v_mfma_f32_32x32x16_bf16 {vr(DEN,16)}, {vr(KF+8,4)}, {vr(QBR,4)}, 0")
            if t == 2:
                a(f"v_mfma_f32_32x32x16_bf16 {vr(OB,16)}, {vr(KF+4,4)}, {vr(QBR+4,4)}, {vr(OB,16)}")
                a(f"v_mfma_f32_32x32x16_bf16 {vr(DEN,16)}, {vr(KF+12,4)}, {vr(QBR+4,4)}, {vr(DEN,16)}")
            if t == 3:
                a(f"v_add_f32 v{vT3}, s{cEps}, v{DEN}")
                a(f"v_rcp_f32 v{vT3}, v{vT3}")
                a("s_nop 0")
                for r in range(16):
                    a(f"v_mul_f32 v{OB+r}, v{OB+r}, v{vT3}")
                for r in range(8):
                    a(f"v_cvt_pk_bf16_f32 v{QBR+r}, v{OB+2*r}, v{OB+2*r+1}")
                for u in range(2):
                    a(f"buffer_store_dwordx4 {vr(QBR+4*u,4)}, v{vSt}, s[12:15], s{sOutB} offen offset:{u*1024}")
                if 'twice' in DBG:
                    a(f"s_cmp_eq_u32 s{sC}, 4")
                    a("s_cselect_b64 vcc, 0, -1")
                else:
                    a("s_mov_b64 vcc, 0")
    HOOKS = (1, 2, 3, 4, 5, 7)
    def side_blocks():
        for t in HOOKS:
            a.label(f"k2_side_{t}")
            a(f"s_cmp_eq_u32 s{sC}, 1")
            a(f"s_cbranch_scc1 k2_side_{t}_1")
            a(f"s_cmp_eq_u32 s{sC}, 2")
            a(f"s_cbranch_scc1 k2_side_{t}_2")
            if 'twice' in DBG:
                a(f"s_cmp_eq_u32 s{sC}, 3")
                a(f"s_cbranch_scc1 k2_side_{t}_1")
                a(f"s_cmp_eq_u32 s{sC}, 4")
                a(f"s_cbranch_scc1 k2_side_{t}_2")
            side(0, t)
            a(f"s_branch k2_back_{t}")
        for c in (1, 2):
            for t in HOOKS:
                a.label(f"k2_side_{t}_{c}")
                side(c, t)
                a(f"s_branch k2_back_{t}")

    def mS(t, h):
        sb = S[(t + 1) & 1]; kn = KB[(t + 1) & 1]
        return f"v_mfma_f32_32x32x16_bf16 {vr(sb,16)}, {vr(kn+4*h,4)}, {vr(Q+4*h,4)}, {vr(C if h == 0 else sb,16)}"
    def mO(t, h):
        return f"v_mfma_f32_32x32x16_bf16 {vr(O,16)}, {vr(VB[t&1]+4*h,4)}, {vr(PB[t&1]+4*h,4)}, {vr(O,16)}"
    def mL(t, h):
        if 'nol' in DBG: return "s_nop 0"
        if 'l4' in DBG:
            return "\n".join(f"v_mfma_f32_4x4x4_16b_bf16 {vr(LS,4)}, {vr(SEL,2)}, {vr(PB[t&1]+4*h+2*q,2)}, {vr(LS,4)}" for q in range(2))
        if 'dot' in DBG:
            return "\n".join(f"v_dot2_f32_bf16 v{LS+q}, v{PB[t&1]+4*h+q}, v{SEL}, v{LS+q}" for q in range(4))
        return f"v_mfma_f32_16x16x32_bf16 {vr(LS,4)}, {vr(SEL,4)}, {vr(PB[t&1]+4*h,4)}, {vr(LS,4)}"

    def chunk(c):
        for t in range(8):
            sa = S[t & 1]
            kl = KB[t & 1]
            vl = VB[t & 1]
            P = PB[t & 1]
            ex = [f"v_exp_f32 v{sa+r}, v{sa+r}" for r in range(16)]
            cv = [f"v_cvt_pk_bf16_f32 v{P+r}, v{sa+2*r}, v{sa+2*r+1}" for r in range(8)]
            if t == 6:
                n = 4 if c is None else after(f'c{c+1}')
                a(f"s_waitcnt vmcnt({n}) lgkmcnt(0)")
                if not ('nobar' in DBG and c is None): a("s_barrier")
            else:
                a("s_waitcnt lgkmcnt(0)")
            if 'cst' in DBG and t in (0, 4):
                a(f"s_lshl_b32 s72, s{sC}, 1")
                if t == 4: a("s_add_u32 s72, s72, 1")
                a(f"v_cmp_eq_u32_e64 s[74:75], s72, v{vLane}")
                a(f"v_mov_b32 v{vCs+1}, s70")
                a("s_nop 3")
                a(f"v_cndmask_b32_e64 v{vCs}, v{vCs}, v{vCs+1}, s[74:75]")
            if 'cst' in DBG and t in (3, 7):
                a("s_memtime s[70:71]")
            a(mS(t, 0))
            if t == 6:
                a(f"s_add_u32 m0, s{sWr}, s{sM0off}")
                a(f"s_cmp_lt_u32 s{sC}, 5")
                a(f"s_cselect_b32 s6, s{sSize}, 0")
            for u in range(2):
                tt = t + 2
                if 'nods' in DBG and c is None: continue
                a(f"ds_read_b128 {vr(kl+4*u,4)}, v{vRd if tt < 8 else vRdN} offset:{(tt & 7)*4096+u*1024}")
            for x in ex[0:4]: a(x)
            a(mO(t - 1, 0))
            if c == 0 and t < 4:
                dma1(t, 'c2')
            elif t in (6, 7):
                dma1(t - 6, f'c{c+3}' if c is not None else 'cl')
            elif t in (0, 1):
                dma1(t + 2, f'c{c+2}' if c is not None else 'cl')
            for x in ex[4:8]: a(x)
            a(mS(t, 1))
            for u in range(2):
                if 'nods' in DBG and c is None: continue
                a(f"ds_read_b128 {vr(vl+4*u,4)}, v{vRd} offset:{t*4096+2048+u*1024}")
            for x in ex[8:12]: a(x)
            a(mO(t - 1, 1))
            for x in ex[12:16]: a(x)
            a(mL(t - 1, 0))
            for x in cv[0:4]: a(x)
            a(mL(t - 1, 1))
            for x in cv[4:8]: a(x)
            if t in HOOKS:
                a(f"s_cbranch_vccnz k2_side_{t}")
                a.label(f"k2_back_{t}")
            if t == 7:
                a(f"""
                s_mov_b32 s{sWr}, s{sRd}
                s_mov_b32 s{sRd}, s{sRdN}
                s_add_u32 s{sRdN}, s{sRdN}, {CH}
                s_and_b32 s{sRdN}, s{sRdN}, {NCH*CH-1}
                v_mov_b32 v{vRd}, v{vRdN}
                v_add_u32 v{vRdN}, s{sRdN}, v{vSt}
                s_add_u32 s{sC}, s{sC}, 1
                """)
    if 'lst' in DBG: a('s_memtime s[52:53]')
    if 'cst' in DBG: a('s_memtime s[70:71]')
    a.label("k2_loop")
    chunk(None)
    a(f"s_cmp_lt_u32 s{sC}, 8")
    a("s_cbranch_scc1 k2_loop")
    a("s_waitcnt lgkmcnt(0)")
    a(mO(7, 0)); a(mL(7, 0)); a(mO(7, 1)); a(mL(7, 1))
    if st: a('s_memtime s[54:55]')
    P = PB[0]
    a(f"""
    s_mov_b32 s{t0}, {f2u(2.0**40):#x}
    s_nop 8
    v_cmp_nle_f32 vcc, v{LS}, s{t0}
    s_cbranch_vccnz k2_fallback
    """)
    a.label("k2_fin")
    a(f"""
    v_rcp_f32 v{vTmp}, v{LS}
    s_nop 0
    """)
    for r in range(16):
        a(f"v_mul_f32 v{O+r}, v{O+r}, v{vTmp}")
    for r in range(8):
        a(f"v_cvt_pk_bf16_f32 v{P+r}, v{O+2*r}, v{O+2*r+1}")
    for u in range(2):
        a(f"buffer_store_dwordx4 {vr(P+4*u,4)}, v{vSt}, s[12:15], s{sOut} offen offset:{u*1024}")
    if st:
        a(f'''
        s_waitcnt vmcnt(0)
        s_memtime s[56:57]
        s_memrealtime s[60:61]
        s_waitcnt lgkmcnt(0)
        s_lshl_b32 s{t0}, s2, 3
        s_add_u32 s{t0}, s{t0}, s{sW}
        s_lshl_b32 s{t0}, s{t0}, 6
        s_add_u32 s{t0}, s{t0}, {65*MB}
        v_mov_b32 v20, s50
        v_mov_b32 v21, s52
        v_mov_b32 v22, s54
        v_mov_b32 v23, s56
        v_mov_b32 v24, s58
        v_mov_b32 v25, s60
        v_mov_b32 v26, s62
        v_mov_b32 v27, s64
        v_mov_b32 v28, 0
        v_mov_b32 v32, s66
        v_mov_b32 v33, s68
        buffer_store_dwordx4 v[20:23], v28, s[12:15], s{t0} offen
        buffer_store_dwordx4 v[24:27], v28, s[12:15], s{t0} offen offset:16
        buffer_store_dwordx2 v[32:33], v28, s[12:15], s{t0} offen offset:32
        s_add_u32 s{t0}, s{t0}, {2*MB}
        v_and_b32 v28, 15, v{vLane}
        v_lshlrev_b32 v28, 2, v28
        s_mov_b64 exec, 0xffff
        buffer_store_dword v{vCs}, v28, s[12:15], s{t0} offen
        ''')
    a.label(end)
    a("s_endpgm")
    side_blocks()
    a.label("k2_fallback")
    k0, v0_ = KB[0], VB[0]
    a(f"""
    s_waitcnt vmcnt(0) lgkmcnt(0)
    s_lshl_b32 s{sKv}, s{sH}, 18
    s_add_u32 s{sKv}, s{sKv}, {WS_KV}
    s_mov_b32 s{t1}, s{sKv}
    s_mov_b32 s{sC}, 0
    v_mov_b32 v{vTmp}, 0xff800000
    """)
    a.label("k2_fb1")
    for u in range(2):
        a(f"buffer_load_dwordx4 {vr(k0+4*u,4)}, v{vSt}, s[12:15], s{t1} offen offset:{u*1024}")
    a(f"""
    s_waitcnt vmcnt(0)
    v_mfma_f32_32x32x16_bf16 {vr(s0,16)}, {vr(k0,4)}, {vr(Q,4)}, 0
    v_mfma_f32_32x32x16_bf16 {vr(s0,16)}, {vr(k0+4,4)}, {vr(Q+4,4)}, {vr(s0,16)}
    s_nop 15
    """)
    for r in range(0, 16, 2):
        a(f"v_max3_f32 v{vTmp}, v{vTmp}, v{s0+r}, v{s0+r+1}")
    a(f"""
    s_add_u32 s{t1}, s{t1}, 4096
    s_add_u32 s{sC}, s{sC}, 1
    s_cmp_lt_u32 s{sC}, 64
    s_cbranch_scc1 k2_fb1
    v_mov_b32 v{vTmp2}, v{vTmp}
    s_nop 1
    v_permlane32_swap_b32 v{vTmp}, v{vTmp2}
    s_nop 1
    v_max_f32 v{vTmp}, v{vTmp}, v{vTmp2}
    """)
    for r in range(16):
        a(f"v_sub_f32 v{C+r}, 0, v{vTmp}")
    for r in range(16):
        a(f"v_mov_b32 v{O+r}, 0")
    for r in range(4):
        a(f"v_mov_b32 v{LS+r}, 0")
    a(f"""
    s_mov_b32 s{t1}, s{sKv}
    s_mov_b32 s{sC}, 0
    """)
    a.label("k2_fb2")
    for u in range(2):
        a(f"buffer_load_dwordx4 {vr(k0+4*u,4)}, v{vSt}, s[12:15], s{t1} offen offset:{u*1024}")
    for u in range(2):
        a(f"buffer_load_dwordx4 {vr(v0_+4*u,4)}, v{vSt}, s[12:15], s{t1} offen offset:{2048+u*1024}")
    a(f"""
    s_waitcnt vmcnt(0)
    v_mfma_f32_32x32x16_bf16 {vr(s0,16)}, {vr(k0,4)}, {vr(Q,4)}, {vr(C,16)}
    v_mfma_f32_32x32x16_bf16 {vr(s0,16)}, {vr(k0+4,4)}, {vr(Q+4,4)}, {vr(s0,16)}
    s_nop 15
    """)
    for r in range(16):
        a(f"v_exp_f32 v{s0+r}, v{s0+r}")
    a("s_nop 0")
    for r in range(8):
        a(f"v_cvt_pk_bf16_f32 v{P+r}, v{s0+2*r}, v{s0+2*r+1}")
    a(f"""
    s_nop 1
    v_mfma_f32_32x32x16_bf16 {vr(O,16)}, {vr(v0_,4)}, {vr(P,4)}, {vr(O,16)}
    v_mfma_f32_16x16x32_bf16 {vr(LS,4)}, {vr(SEL,4)}, {vr(P,4)}, {vr(LS,4)}
    v_mfma_f32_32x32x16_bf16 {vr(O,16)}, {vr(v0_+4,4)}, {vr(P+4,4)}, {vr(O,16)}
    v_mfma_f32_16x16x32_bf16 {vr(LS,4)}, {vr(SEL,4)}, {vr(P+4,4)}, {vr(LS,4)}
    s_add_u32 s{t1}, s{t1}, 4096
    s_add_u32 s{sC}, s{sC}, 1
    s_cmp_lt_u32 s{sC}, 64
    s_nop 7
    s_cbranch_scc1 k2_fb2
    s_nop 7
    s_branch k2_fin
    """)
    return name, NV
```

```python
from asmlib import *
import os
DBG = os.environ.get('K3DBG', '')
NS = 5
PRE = int(os.environ.get('K3PRE', '2'))
SLOT = 32768
K3_THREADS = 512
K3_LDS = NS * SLOT

def gen_k3(a):
    name = "oproj_kernel"
    kernel_head(a, name)
    vLane, vSt, vTmp, vTmp2, vA, vB, vAb, vBb, vOut = 1, 2, 3, 4, 5, 6, 7, 8, 9
    F = 16
    def QF(s, qb, k): return F + s * 64 + (k * 4 + qb) * 4
    def NF(s, nb, k): return F + s * 64 + (k * 4 + 2 + nb) * 4
    ACC = 144
    def AC(qb, nb): return ACC + (qb * 2 + nb) * 16
    NV = 208
    sPart, sMt, sNt, sW, sWq, sWn = 16, 17, 18, 19, 20, 21
    sQ, sN, sI, sRd, sWr, sM0, sSize = 22, 23, 24, 25, 26, 27, 28
    t0, t1, t2, t3 = 29, 30, 31, 32
    st = 'stamp' in DBG
    end = "k3_end"
    a(f"""
    s_cmp_ge_u32 s2, 256
    s_cbranch_scc1 {end}
    {'s_memtime s[50:51]' if st else ''}
    {'s_memrealtime s[58:59]' if st else ''}
    s_load_dwordx2 s[4:5], s[0:1], 64
    s_load_dwordx2 s[8:9], s[0:1], 48
    v_and_b32 v{vLane}, 63, v0
    v_lshrrev_b32 v{vTmp}, 6, v0
    s_and_b32 s{t0}, s2, 7
    s_lshr_b32 s{t1}, s2, 3
    v_readfirstlane_b32 s{sW}, v{vTmp}
    s_lshr_b32 s{sPart}, s{t0}, 2
    s_bfe_u32 s{t2}, s{t0}, 0x10001
    s_lshl_b32 s{t2}, s{t2}, 3
    s_lshr_b32 s{t3}, s{t1}, 2
    s_add_u32 s{sMt}, s{t2}, s{t3}
    s_and_b32 s{t2}, s{t0}, 1
    s_lshl_b32 s{t2}, s{t2}, 2
    s_and_b32 s{t3}, s{t1}, 3
    s_add_u32 s{sNt}, s{t2}, s{t3}
    s_mov_b32 s6, {WS_SIZE}
    s_mov_b32 s7, 0x00020000
    s_mov_b32 s10, {2048*4096}
    s_mov_b32 s11, 0x00020000
    v_lshlrev_b32 v{vSt}, 4, v{vLane}
    s_cmp_lt_u32 s{sW}, 4
    s_cbranch_scc1 k3_compute
    """)
    a(f"""
    s_and_b32 s{sW}, s{sW}, 3
    s_lshl_b32 s{t0}, s{sMt}, 2
    s_add_u32 s{t0}, s{t0}, s{sW}
    s_lshl_b32 s{sQ}, s{t0}, 16
    s_lshl_b32 s{t0}, s{sPart}, 22
    s_add_u32 s{sQ}, s{sQ}, s{t0}
    s_add_u32 s{sQ}, s{sQ}, {WS_O}
    s_lshl_b32 s{t0}, s{sNt}, 2
    s_add_u32 s{t0}, s{t0}, s{sW}
    s_lshl_b32 s{sN}, s{t0}, 16
    s_lshl_b32 s{t0}, s{sPart}, 21
    s_add_u32 s{sN}, s{sN}, s{t0}
    s_add_u32 s{sN}, s{sN}, {WS_WO}
    s_lshl_b32 s{sM0}, s{sW}, 12
    s_mov_b32 s{sWr}, s{sM0}
    s_add_u32 s{sSize}, s{sM0}, {NS*SLOT}
    s_waitcnt lgkmcnt(0)
    """)
    def slot():
        L = [f"s_mov_b32 m0, s{sWr}", "s_nop 0"]
        L += [f"buffer_load_dwordx4 v{vSt}, s[4:7], s{sQ} offen offset:{j*1024} lds" for j in range(4)]
        L += [f"s_add_u32 m0, s{sWr}, 16384", f"s_add_u32 s{sQ}, s{sQ}, 4096"]
        L += [f"buffer_load_dwordx4 v{vSt}, s[4:7], s{sN} offen offset:{j*1024} lds" for j in range(4)]
        L += [f"s_add_u32 s{sN}, s{sN}, 4096",
              f"s_add_u32 s{sWr}, s{sWr}, {SLOT}",
              f"s_cmp_eq_u32 s{sWr}, s{sSize}",
              f"s_cselect_b32 s{sWr}, s{sM0}, s{sWr}"]
        return L
    for sl in range(PRE):
        for x in slot(): a(x)
    a(f"s_mov_b32 s{sI}, 0")
    a.label("k3_ld")
    a(f"s_waitcnt vmcnt({(PRE-1)*8})")
    a("s_barrier")
    for x in slot(): a(x)
    a(f"""
    s_add_u32 s{sI}, s{sI}, 1
    s_cmp_lt_u32 s{sI}, {16-PRE}
    s_cbranch_scc1 k3_ld
    """)
    for j in range(PRE):
        a(f"s_waitcnt vmcnt({(PRE-1-j)*8})")
        a("s_barrier")
    a("s_endpgm")
    a.label("k3_compute")
    a(f"""
    s_and_b32 s{sWq}, s{sW}, 1
    s_lshr_b32 s{sWn}, s{sW}, 1
    s_lshl_b32 s{t0}, s{sWq}, 13
    s_lshl_b32 s{t1}, s{sWn}, 13
    s_add_u32 s{t1}, s{t1}, 16384
    v_add_u32 v{vAb}, s{t0}, v{vSt}
    v_add_u32 v{vBb}, s{t1}, v{vSt}
    v_mov_b32 v{vA}, v{vAb}
    v_mov_b32 v{vB}, v{vBb}
    s_mov_b32 s{sI}, 0
    s_mov_b32 s{sRd}, 0
    """)
    a(f"""
    v_and_b32 v{vTmp}, 15, v{vLane}
    v_lshlrev_b32 v{vOut}, 12, v{vTmp}
    v_lshrrev_b32 v{vTmp}, 5, v{vLane}
    v_lshlrev_b32 v{vTmp}, 4, v{vTmp}
    v_add_u32 v{vOut}, v{vOut}, v{vTmp}
    v_bfe_u32 v{vTmp}, v{vLane}, 4, 1
    v_lshlrev_b32 v{vTmp}, 5, v{vTmp}
    v_add_u32 v{vOut}, v{vOut}, v{vTmp}
    s_lshl_b32 s{t0}, s{sMt}, 7
    s_lshl_b32 s{t1}, s{sWq}, 6
    s_add_u32 s{t0}, s{t0}, s{t1}
    s_lshl_b32 s{t0}, s{t0}, 12
    s_lshl_b32 s{t1}, s{sPart}, 11
    s_add_u32 s{t0}, s{t0}, s{t1}
    s_lshl_b32 s{t1}, s{sNt}, 8
    s_add_u32 s{t0}, s{t0}, s{t1}
    s_lshl_b32 s{t1}, s{sWn}, 7
    s_add_u32 s{t0}, s{t0}, s{t1}
    s_add_u32 s{t1}, s{t0}, {16*4096}
    s_add_u32 s{t2}, s{t0}, {32*4096}
    s_add_u32 s{t3}, s{t0}, {48*4096}
    """)
    for r in range(64):
        a(f"v_mov_b32 v{ACC+r}, 0")
    def reads(s):
        L = []
        for k in range(4):
            for b in range(2):
                L.append(f"ds_read_b128 {vr(QF(s,b,k),4)}, v{vA} offset:{b*4096+k*1024}")
                L.append(f"ds_read_b128 {vr(NF(s,b,k),4)}, v{vB} offset:{b*4096+k*1024}")
        return L
    def mfmas(s):
        L = []
        for k in range(4):
            for qb, nb in ((0, 0), (1, 1), (0, 1), (1, 0)):
                L.append(f"v_mfma_f32_32x32x16_bf16 {vr(AC(qb,nb),16)}, {vr(NF(s,nb,k),4)}, {vr(QF(s,qb,k),4)}, {vr(AC(qb,nb),16)}")
        return L
    def advance():
        return [
            f"s_add_u32 s{sRd}, s{sRd}, {SLOT}",
            f"s_cmp_eq_u32 s{sRd}, {SLOT*NS}",
            f"s_cselect_b32 s{sRd}, 0, s{sRd}",
            f"v_add_u32 v{vA}, s{sRd}, v{vAb}",
            f"v_add_u32 v{vB}, s{sRd}, v{vBb}",
        ]
    a(f"""
    s_waitcnt lgkmcnt(0)
    s_barrier
    {'s_memtime s[52:53]' if st else ''}
    """)
    for r in reads(0): a(r)
    for x in advance(): a(x)
    def iteration(cur):
        M = mfmas(cur); R = reads(1 - cur)
        a(f"s_waitcnt lgkmcnt(0)")
        a("s_barrier")
        ri = 0
        for m in range(16):
            a(M[m])
            for _ in range(2):
                if ri < 16:
                    a(R[ri]); ri += 1
            if m == 10:
                for x in advance(): a(x)
                a(f"s_add_u32 s{sI}, s{sI}, 1")
    a.label("k3_loop")
    iteration(0)
    iteration(1)
    a(f"s_cmp_lt_u32 s{sI}, 14")
    a("s_cbranch_scc1 k3_loop")
    iteration(0)
    a("s_waitcnt lgkmcnt(0)")
    for m in mfmas(1): a(m)
    if st: a('s_memtime s[54:55]')
    a("s_nop 9")
    T = F
    ti = 0
    for qb, nb in ((0, 0), (1, 1), (0, 1), (1, 0)):
        b = AC(qb, nb)
        for r in range(8):
            a(f"v_cvt_pk_bf16_f32 v{T+ti+r}, v{b+2*r}, v{b+2*r+1}")
        a("s_nop 1")
        for p in range(2):
            a(f"v_permlane32_swap_b32 v{T+ti+4*p}, v{T+ti+4*p+2}")
            a(f"v_permlane32_swap_b32 v{T+ti+4*p+1}, v{T+ti+4*p+3}")
        a("s_nop 1")
        for r in range(4):
            a(f"v_permlane16_swap_b32 v{T+ti+r}, v{T+ti+4+r}")
        a("s_nop 1")
        for p in range(2):
            a(f"buffer_store_dwordx4 {vr(T+ti+4*p,4)}, v{vOut}, s[8:11], s{(t0,t1,t2,t3)[qb*2+p]} offen offset:{nb*64}")
        ti += 8
    if st:
        a(f'''
        s_waitcnt vmcnt(0)
        s_memtime s[56:57]
        s_memrealtime s[60:61]
        s_waitcnt lgkmcnt(0)
        s_lshl_b32 s{t0}, s2, 3
        s_add_u32 s{t0}, s{t0}, s{sW}
        s_lshl_b32 s{t0}, s{t0}, 6
        s_add_u32 s{t0}, s{t0}, {66*MB}
        v_mov_b32 v20, s50
        v_mov_b32 v21, s52
        v_mov_b32 v22, s54
        v_mov_b32 v23, s56
        v_mov_b32 v24, s58
        v_mov_b32 v25, s60
        v_mov_b32 v26, 0
        v_mov_b32 v27, 0
        v_mov_b32 v28, 0
        buffer_store_dwordx4 v[20:23], v28, s[4:7], s{t0} offen
        buffer_store_dwordx4 v[24:27], v28, s[4:7], s{t0} offen offset:16
        ''')
    a.label(end)
    a("s_endpgm")
    return name, NV
```

```python
from asmlib import *
import struct

def f2u(x):
    return struct.unpack("<I", struct.pack("<f", x))[0]

LOG2E = 1.4426950408889634
QSCALE = (32 ** -0.5) * LOG2E

XSLOT = 32768
NXS = 3
WBASE = XSLOT * NXS
WSLOT = 12288
NWS = 5
K1_LDS = WBASE + WSLOT * NWS

import os
DBG = os.environ.get('K1DBG', '')
PFP = int(os.environ.get('PFP', '5'))
PFT = int(os.environ.get('PFT', '1'))
PFDELAY = int(os.environ.get('PFDELAY', '0'))
PFC = int(os.environ.get('PFC', '3'))
PFCI = int(os.environ.get('PFCI', '25'))
PHASE = [int(x) for x in os.environ.get('K1PHASE', '1,2').split(',') if x]
PF3POS = int(os.environ.get('PF3POS', '2'))
DIST = int(os.environ.get('K1DIST', '4'))
MAP = int(os.environ.get('K1MAP', '1'))
CPOS = int(os.environ.get('K1CPOS', '1'))
PFS = int(os.environ.get('PFS', '2'))
SPREAD = int(os.environ.get('K1SPREAD', '1'))
ROT = int(os.environ.get('K1ROT', '0'))
def gen_k1(a):
    name = "qkv_kernel"
    kernel_head(a, name)
    vLane, vTmp, vTmp2 = 1, 2, 3
    vLd = 4
    vXb0, vLd2, vWb = 5, 6, 7
    vXa0, vXa1, vWa = 8, 9, 10
    vSt = 11
    vPfA, vPfB, vPfD = 12, 13, 14
    sPf, sPfInc = 37, 38
    F = 16
    def XF(s, mb, kk): return F + s * 40 + (mb * 2 + kk) * 4
    def WF(s, t, kk): return F + s * 40 + 16 + (t * 2 + kk) * 4
    ACC = 96
    def AC(mb, t): return ACC + (mb * 3 + t) * 16
    NV = 192
    sLd = 4
    sWS = 12
    sSo = 62
    sXr, sXw, sM0off2 = 16, 17, 18
    sInc, sRd, sWr, sM0off, sI, sSize = 20, 21, 22, 23, 24, 25
    sPart, sMt, sNt, sW, sWm, sWn, sH = 26, 27, 28, 29, 30, 31, 32
    t0, t1, t2, t3 = 33, 34, 35, 36
    end = "k1_end"
    sStep, sHalf, sA, sB, sAdv = 40, 41, 42, 43, 39
    ST = 'stamp' in DBG
    MAPC = "s_mov_b32 s3, s2"
    if MAP:
        MAPC = f'''s_and_b32 s{t0}, s2, 1
        s_xor_b32 s{t0}, s{t0}, {MAP & 1}
        s_lshl_b32 s{t0}, s{t0}, 2
        s_bfe_u32 s{t1}, s2, 0x10002
        s_and_b32 s3, s2, 2
        s_or_b32 s3, s3, s{t0}
        s_or_b32 s3, s3, s{t1}'''
    a(f"""
    s_cmp_ge_u32 s2, 256
    s_cbranch_scc1 {end}
    {'s_memtime s[50:51]' if ST else ''}
    {'s_memrealtime s[58:59]' if ST else ''}
    s_load_dwordx4 s[80:83], s[0:1], 0
    s_load_dwordx4 s[84:87], s[0:1], 24
    s_load_dwordx2 s[12:13], s[0:1], 64
    v_lshrrev_b32 v{vTmp}, 6, v0
    v_and_b32 v{vLane}, 63, v0
    {MAPC}
    s_and_b32 s{t0}, s3, 7
    s_lshr_b32 s{t1}, s2, 3
    v_readfirstlane_b32 s{sW}, v{vTmp}
    s_lshr_b32 s{sPart}, s{t0}, 2
    s_bfe_u32 s{t2}, s{t0}, 0x10001
    s_lshl_b32 s{t2}, s{t2}, 2
    s_lshr_b32 s{t3}, s{t1}, 3
    s_add_u32 s{sMt}, s{t2}, s{t3}
    s_and_b32 s{t2}, s{t0}, 1
    s_lshl_b32 s{t2}, s{t2}, 3
    s_and_b32 s{t3}, s{t1}, 7
    s_add_u32 s{sNt}, s{t2}, s{t3}
    s_and_b32 s{sWm}, s{sW}, 3
    s_lshr_b32 s{sWn}, s{sW}, 2
    s_mov_b32 s7, 0x00020000
    s_cmp_lg_u32 s{sW}, 7
    s_cbranch_scc1 k1_ld_setup
    s_getpc_b64 s[44:45]
    k1_pc:
    s_sub_u32 s44, s44, k1_pc-qkv_kernel
    s_subb_u32 s45, s45, 0
    v_lshlrev_b32 v{vPfD}, 7, v{vLane}
    global_load_dword v15, v{vPfD}, s[44:45]
    v_add_u32 v{vTmp}, 8192, v{vPfD}
    v_min_u32 v{vTmp}, text_end-qkv_kernel-4, v{vTmp}
    global_load_dword v15, v{vTmp}, s[44:45]
    s_branch k1_pf_setup
    k1_ld_setup:
    s_lshl_b32 s{t0}, s{sMt}, 19
    s_lshl_b32 s{t1}, s{sW}, 17
    s_add_u32 s{t0}, s{t0}, s{t1}
    s_lshl_b32 s{t1}, s{sNt}, 7
    s_lshl_b32 s{t2}, s{sWm}, 11
    s_add_u32 s{t1}, s{t1}, s{t2}
    s_lshl_b32 s{t2}, s{sW}, 13
    s_lshl_b32 s{t3}, s{sWm}, 12
    s_add_u32 s{t3}, s{t3}, {WBASE}
    s_cmp_lt_u32 s{sW}, 4
    s_cselect_b32 s{sSo}, s{t0}, s{t1}
    s_cselect_b32 s{sM0off}, s{t2}, s{t3}
    s_cselect_b32 s{t0}, 1, 3
    s_cselect_b32 s{sB}, 4, 3
    s_cselect_b32 s{sAdv}, 1, 3072
    s_cselect_b32 s{sSize}, 2, 3
    s_cselect_b32 s{t1}, 3, 1
    s_cselect_b32 s{t2}, 0, 2
    s_cselect_b32 s{t3}, 64, 0
    s_lshl_b32 s{sStep}, s{t0}, 14
    s_sub_u32 s{sStep}, s{sStep}, 1024
    s_lshl_b32 s{sHalf}, s{t0}, 16
    s_lshl_b32 s{sA}, s{t0}, 12
    s_lshl_b32 s{sB}, s{sB}, 13
    s_lshl_b32 s{sAdv}, s{sAdv}, 7
    s_lshl_b32 s{sSize}, s{sSize}, 21
    s_lshl_b32 s{t0}, s{t0}, 11
    v_lshrrev_b32 v{vTmp}, 3, v{vLane}
    v_mul_u32_u24 v{vLd}, s{t0}, v{vTmp}
    v_lshrrev_b32 v{vTmp}, 4, v{vLane}
    v_and_b32 v{vTmp}, s{t1}, v{vTmp}
    v_lshlrev_b32 v{vTmp}, s{t2}, v{vTmp}
    v_and_b32 v{vTmp2}, 7, v{vLane}
    v_xor_b32 v{vTmp}, v{vTmp}, v{vTmp2}
    v_lshlrev_b32 v{vTmp}, 4, v{vTmp}
    v_add_u32 v{vLd}, v{vLd}, v{vTmp}
    v_xor_b32 v{vLd2}, s{t3}, v{vLd}
    s_add_u32 s{sSo+1}, s{sSo}, s{sStep}
    s_add_u32 s{sSo+2}, s{sSo+1}, s{sStep}
    s_add_u32 s{sSo+3}, s{sSo+2}, s{sStep}
    s_add_u32 s{sSo+4}, s{sSo}, s{sHalf}
    s_add_u32 s{sSo+5}, s{sSo+1}, s{sHalf}
    s_add_u32 s{sSo+6}, s{sSo+2}, s{sHalf}
    s_add_u32 s{sSo+7}, s{sSo+3}, s{sHalf}
    s_mov_b32 s6, s{sSize}
    s_mov_b32 m0, s{sM0off}
    {'s_memtime s[70:71]' if ST else ''}
    s_waitcnt lgkmcnt(0)
    {'s_memtime s[72:73]' if ST else ''}
    s_cmp_eq_u32 s{sPart}, 0
    s_cselect_b32 s80, s80, s84
    s_cselect_b32 s81, s81, s85
    s_cselect_b32 s82, s82, s86
    s_cselect_b32 s83, s83, s87
    s_cmp_lt_u32 s{sW}, 4
    s_cselect_b32 s4, s80, s82
    s_cselect_b32 s5, s81, s83
    """)

    def dma(role, half=0):
        L = []
        if role == 2:
            return L
        for j in range(4):
            L.append(f"buffer_load_dwordx4 v{vLd2 if j & 1 else vLd}, s[4:7], s{sSo+4*half+j} offen offset:{j*1024} lds")
        if half:
            L.append(f"v_add_u32 v{vLd}, s{sAdv}, v{vLd}")
            L.append(f"v_add_u32 v{vLd2}, s{sAdv}, v{vLd2}")
        return L

    def common():
        a(f"""
        s_lshl_b32 s{sH}, s{sNt}, 1
        s_add_u32 s{sH}, s{sH}, s{sWn}
        s_mov_b32 s14, {WS_SIZE}
        s_mov_b32 s15, 0x00020000
        v_lshlrev_b32 v{vSt}, 4, v{vLane}
        """)
        a(f"""
        v_and_b32 v{vTmp}, 31, v{vLane}
        s_lshl_b32 s{t0}, s{sWm}, 13
        v_lshlrev_b32 v{vTmp}, 7, v{vTmp}
        v_add_u32 v{vTmp}, s{t0}, v{vTmp}
        v_lshrrev_b32 v{vTmp2}, 5, v{vLane}
        v_bfe_u32 v{vXb0}, v{vLane}, 1, 3
        v_xor_b32 v{vTmp2}, v{vTmp2}, v{vXb0}
        v_lshlrev_b32 v{vTmp2}, 4, v{vTmp2}
        v_add_u32 v{vXb0}, v{vTmp}, v{vTmp2}
        """)
        a(f"""
        v_lshrrev_b32 v{vTmp}, 5, v{vLane}
        v_lshlrev_b32 v{vWb}, 10, v{vTmp}
        v_bfe_u32 v{vTmp}, v{vLane}, 2, 2
        v_lshlrev_b32 v{vTmp}, 7, v{vTmp}
        v_add_u32 v{vWb}, v{vWb}, v{vTmp}
        v_bfe_u32 v{vTmp}, v{vLane}, 3, 1
        v_xor_b32 v{vTmp}, s{sWn}, v{vTmp}
        v_lshlrev_b32 v{vTmp}, 6, v{vTmp}
        v_add_u32 v{vWb}, v{vWb}, v{vTmp}
        v_bfe_u32 v{vTmp}, v{vLane}, 4, 1
        v_lshlrev_b32 v{vTmp}, 5, v{vTmp}
        v_add_u32 v{vWb}, v{vWb}, v{vTmp}
        v_and_b32 v{vTmp}, 3, v{vLane}
        v_lshlrev_b32 v{vTmp}, 3, v{vTmp}
        v_add_u32 v{vWb}, v{vWb}, v{vTmp}
        v_add_u32 v{vWb}, {WBASE}, v{vWb}
        """)
        for r in range(96):
            a(f"v_mov_b32 v{ACC + r}, 0")
        a(f"""
        s_add_u32 s{sM0off2}, s{sM0off}, 4096
        s_mov_b32 s{sRd}, 0
        s_mov_b32 s{sI}, 0
        s_mov_b32 s{sXr}, 0
        s_mov_b32 s{sXw}, {(DIST // 2)*XSLOT}
        s_mov_b32 s{sWr}, {(DIST % NWS)*WSLOT}
        v_mov_b32 v{vXa0}, v{vXb0}
        v_xor_b32 v{vXa1}, 32, v{vXb0}
        v_mov_b32 v{vWa}, v{vWb}
        """)

    for g in range(DIST):
        for d in dma(0, g & 1): a(d)
        if g < DIST - 1:
            if g & 1:
                a(f"s_add_u32 s48, s{sM0off}, s{sB}" if g == 1 else f"s_add_u32 s48, s48, s{sB}")
                a(f"s_mov_b32 m0, s48")
            else:
                a(f"s_add_u32 m0, m0, s{sA}")
            if g == CPOS: common()
            a("s_barrier" if g in PHASE else "s_nop 0")
    if ST: a('s_memtime s[74:75]')
    a("s_mov_b32 s47, 0")
    a("s_branch k1_common")

    a.label("k1_pf_setup")
    a(f"""
    v_and_b32 v{vTmp}, 31, v{vLane}
    v_lshlrev_b32 v{vPfA}, 11, v{vTmp}
    v_lshrrev_b32 v{vTmp}, 5, v{vLane}
    v_lshlrev_b32 v{vTmp}, 10, v{vTmp}
    v_add_u32 v{vPfA}, v{vPfA}, v{vTmp}
    s_bfe_u32 s{t0}, s3, 0x10001
    s_lshl_b32 s{t0}, s{t0}, 21
    s_lshr_b32 s{t1}, s2, 3
    s_lshl_b32 s{t2}, s{t1}, 16
    s_add_u32 s{sPf}, s{t0}, s{t2}
    v_lshlrev_b32 v{vPfB}, 11, v{vLane}
    v_min_u32 v{vTmp}, 31, v{vLane}
    v_add_u32 v{vTmp}, 64, v{vTmp}
    v_lshlrev_b32 v{vTmp2}, 11, v{vTmp}
    s_mul_i32 s{sPfInc}, s{t1}, {96*2048}
    s_and_b32 s{t0}, s3, 1
    s_lshl_b32 s{t0}, s{t0}, 10
    s_add_u32 s{sPfInc}, s{sPfInc}, s{t0}
    s_mov_b32 s6, {2048*2048}
    s_mov_b32 s10, {1024*6144}
    s_mov_b32 s11, 0x00020000
    s_mov_b32 s47, 1
    s_waitcnt lgkmcnt(0)
    s_cmp_eq_u32 s{sPart}, 0
    s_cselect_b32 s4, s80, s84
    s_cselect_b32 s5, s81, s85
    s_cselect_b32 s8, s82, s86
    s_cselect_b32 s9, s83, s87
    s_sub_u32 s{t0}, {3*128}, s4
    s_and_b32 s{t0}, s{t0}, {7*128}
    s_add_u32 s{sPf}, s{sPf}, s{t0}
    s_sub_u32 s{t0}, {3*128}, s8
    s_and_b32 s{t0}, s{t0}, {7*128}
    s_add_u32 s{sPfInc}, s{sPfInc}, s{t0}
    {'s_memtime s[70:71]' if ST else ''}
    {'s_memtime s[72:73]' if ST else ''}
    {'s_memtime s[74:75]' if ST else ''}
    """)
    a(f"v_mov_b32 v{vLd}, v{vTmp2}")
    a(f"s_mov_b32 s{sM0off}, 0")
    common()
    for ph in range(len(PHASE) + 1):
        if ph == PF3POS:
            if PFDELAY: a(f"s_sleep {PFDELAY}")
            a(f"""
            buffer_load_dword v15, v{vPfB}, s[8:11], s{sPfInc} offen
            buffer_load_dword v15, v{vLd}, s[8:11], s{sPfInc} offen
            buffer_load_dword v15, v{vPfA}, s[4:7], s{sPf} offen
            """)
        if ph < len(PHASE): a("s_barrier")

    a.label("k1_common")
    a(f"""
    s_cmp_eq_u32 s47, 1
    s_cbranch_scc0 k1_sel_ld
    s_cmp_eq_u32 s{sPart}, 0
    s_cbranch_scc1 k1_main_0_2
    s_branch k1_main_1_2
    """)
    a.label("k1_sel_ld")
    a(f"""
    s_cmp_eq_u32 s{sPart}, 0
    s_cbranch_scc1 k1_sel_0
    s_cmp_lt_u32 s{sW}, 4
    s_cbranch_scc1 k1_main_1_0
    s_branch k1_main_1_1
    """)
    a.label("k1_sel_0")
    a(f"""
    s_cmp_ge_u32 s{sW}, 4
    s_cbranch_scc1 k1_main_0_1
    """)

    def reads(s):
        L = []
        for kk in range(2):
            for mb in range(2):
                L.append(f"ds_read_b128 {vr(XF(s,mb,kk),4)}, v{vXa0 if kk == 0 else vXa1} offset:{mb*4096}")
            for t in range(3):
                for rd in range(2):
                    L.append(f"ds_read_b64_tr_b16 {vr(WF(s,t,kk)+2*rd,2)}, v{vWa} offset:{t*4096+kk*2048+rd*512}")
        return L

    def mfmas(part, s):
        L = []
        if 'm16' in DBG:
            for wi in range(6):
                for xi in range(4):
                    ac = ACC + (wi * 4 + xi) * 4
                    L.append(f"v_mfma_f32_16x16x32_bf16 {vr(ac,4)}, {vr(F+s*40+16+wi*4,4)}, {vr(F+s*40+xi*4,4)}, {vr(ac,4)}")
            return [L[2*i] + "\n" + L[2*i+1] for i in range(12)]
        for kk in range(2):
            for t in range(3):
                for mb in range(2):
                    wfirst = (t == 0) or (t == 1 and part == 0)
                    A, B = (WF(s,t,kk), XF(s,mb,kk)) if wfirst else (XF(s,mb,kk), WF(s,t,kk))
                    L.append(f"v_mfma_f32_32x32x16_bf16 {vr(AC(mb,t),16)}, {vr(A,4)}, {vr(B,4)}, {vr(AC(mb,t),16)}")
        return L

    def advance(next_even):
        L = [
            f"s_add_u32 s{sRd}, s{sRd}, {WSLOT}",
            f"s_cmp_eq_u32 s{sRd}, {WSLOT*NWS}",
            f"s_cselect_b32 s{sRd}, 0, s{sRd}",
            f"v_add_u32 v{vWa}, s{sRd}, v{vWb}",
        ]
        if next_even:
            L += [f"v_xor_b32 v{vXa0}, 64, v{vXa0}", f"v_xor_b32 v{vXa1}, 64, v{vXa1}"]
        else:
            L += [
                f"s_add_u32 s{sXr}, s{sXr}, {XSLOT}",
                f"s_cmp_eq_u32 s{sXr}, {XSLOT*NXS}",
                f"s_cselect_b32 s{sXr}, 0, s{sXr}",
                f"v_add_u32 v{vXa0}, s{sXr}, v{vXb0}",
                f"v_xor_b32 v{vXa1}, 32, v{vXa0}",
            ]
        return L

    def iteration(part, role, cur):
        M = mfmas(part, cur)
        R = reads(1 - cur)
        half = (cur + DIST) & 1
        D = dma(role, half)
        if role == 0:
            a(f"s_waitcnt vmcnt({4*(DIST-3)}) lgkmcnt(0)" if cur == 1 else "s_waitcnt lgkmcnt(0)")
        elif role == 1:
            a(f"s_waitcnt vmcnt({4*(DIST-2)}) lgkmcnt(0)")
        else:
            a("s_waitcnt lgkmcnt(0)")
        a("s_barrier")
        a(M[0])
        if role == 0:
            a(f"s_add_u32 m0, s{sXw}, s{sM0off2 if half else sM0off}")
            if half:
                a(f"s_add_u32 s{sXw}, s{sXw}, {XSLOT}")
                a(f"s_cmp_eq_u32 s{sXw}, {XSLOT*NXS}")
                a(f"s_cselect_b32 s{sXw}, 0, s{sXw}")
        elif role == 1:
            a(f"s_add_u32 m0, s{sWr}, s{sM0off}")
            a(f"s_add_u32 s{sWr}, s{sWr}, {WSLOT}")
            a(f"s_cmp_eq_u32 s{sWr}, {WSLOT*NWS}")
            a(f"s_cselect_b32 s{sWr}, 0, s{sWr}")
        if role < 2:
            a(f"s_cmp_lt_u32 s{sI}, {32-DIST}")
            a(f"s_cselect_b32 s6, s{sSize}, 0")
        a(R[0]); a(R[1])
        a(M[1])
        dm = [d for d in D if d.startswith('buffer')]
        dv = [d for d in D if not d.startswith('buffer')]
        pos = (1, 4, 7, 10) if role == 0 else (2, 5, 8, 11)
        def emit_d(m):
            while dm and pos[4 - len(dm)] == m:
                a(dm.pop(0))
                if not dm:
                    for d in dv: a(d)
        emit_d(1)
        ri = 2
        for m in range(2, 12):
            for _ in range(2):
                if ri < 16:
                    a(R[ri]); ri += 1
            a(M[m])
            emit_d(m)
            if role == 2 and m == 3 and cur == 1 and PFC:
                a(f"s_cmp_eq_u32 s{sI}, {PFCI}")
                a(f"s_cbranch_scc1 k1_pfc_{part}")
                a.label(f"k1_pfc_back_{part}")
            if m == 9:
                for x in advance(cur == 1): a(x)
                a(f"s_add_u32 s{sI}, s{sI}, 1")

    for part in range(2):
        for role in range(3):
            a.label(f"k1_main_{part}_{role}")
            a(f"""
            {'s_memtime s[76:77]' if ST else ''}
            {[f's_waitcnt vmcnt({4*(DIST-2)})', f's_waitcnt vmcnt({4*(DIST-1)})', ''][role]}
            s_barrier
            {'s_memtime s[52:53]' if ST else ''}
            """)
            for r in reads(0): a(r)
            for x in advance(True): a(x)
            lp = f"k1_loop_{part}_{role}"
            a.label(lp)
            iteration(part, role, 0)
            iteration(part, role, 1)
            a(f"s_cmp_lt_u32 s{sI}, 30")
            a(f"s_cbranch_scc1 {lp}")
            iteration(part, role, 0)
            a("s_waitcnt lgkmcnt(0)")
            for m in mfmas(part, 1): a(m)
            if ST: a('s_memtime s[54:55]')
            a(f"s_branch k1_epi_{part}")
            if role == 2 and PFC:
                a.label(f"k1_pfc_{part}")
                for c in range(1, PFC):
                    a(f"v_add_u32 v{vTmp}, {c*8192}, v{vPfD}")
                    a(f"v_min_u32 v{vTmp}, text_end-qkv_kernel-4, v{vTmp}")
                    a(f"global_load_dword v15, v{vTmp}, s[44:45]")
                a(f"s_branch k1_pfc_back_{part}")

    a.label("k1_epi_0")
    a(f"""
    s_lshl_b32 s{t0}, s{sMt}, 3
    s_lshl_b32 s{t1}, s{sWm}, 1
    s_add_u32 s{t0}, s{t0}, s{t1}
    s_lshl_b32 s{t1}, s{sH}, 6
    s_add_u32 s{t0}, s{t0}, s{t1}
    s_lshl_b32 s{t1}, s{t0}, 11
    s_lshl_b32 s{t2}, s{t0}, 12
    s_add_u32 s{t2}, s{t2}, {WS_KV}
    s_add_u32 s{t3}, s{t2}, 4096
    s_mov_b32 s{sI}, {f2u(QSCALE):#x}
    s_nop 7
    """)
    T = F
    ti = 0
    for mb in range(2):
        for t in range(3):
            b = AC(mb, t)
            if t == 0:
                for r in range(16):
                    a(f"v_mul_f32 v{b+r}, s{sI}, v{b+r}")
            for r in range(8):
                a(f"v_cvt_pk_bf16_f32 v{T+ti+r}, v{b+2*r}, v{b+2*r+1}")
            for u in range(2):
                if t == 0:
                    a(f"buffer_store_dwordx4 {vr(T+ti+4*u,4)}, v{vSt}, s[12:15], s{t1} offen offset:{mb*2048+u*1024}")
                else:
                    a(f"buffer_store_dwordx4 {vr(T+ti+4*u,4)}, v{vSt}, s[12:15], s{t2 if mb == 0 else t3} offen offset:{(t-1)*2048+u*1024}")
            ti += 8
    a(f"s_branch {'k1_stamp' if 'stamp' in DBG else end}")

    a.label("k1_epi_1")
    a(f"""
    s_lshl_b32 s{t0}, s{sMt}, 3
    s_lshl_b32 s{t1}, s{sWm}, 1
    s_add_u32 s{t0}, s{t0}, s{t1}
    s_lshl_b32 s{t1}, s{sH}, 6
    s_add_u32 s{t0}, s{t0}, s{t1}
    s_lshl_b32 s{t1}, s{t0}, 11
    s_add_u32 s{t1}, s{t1}, {WS_QB}
    s_mov_b32 s{sI}, {f2u(LOG2E):#x}
    s_mov_b32 s{t2}, {f2u(1e-6):#x}
    s_mov_b32 s{t3}, 0xffff0000
    s_waitcnt vmcnt(0)
    s_nop 7
    """)
    for mb in range(2):
        b = AC(mb, 0)
        for r in range(8):
            a(f"v_cvt_pk_bf16_f32 v{T+mb*8+r}, v{b+2*r}, v{b+2*r+1}")
        for u in range(2):
            a(f"buffer_store_dwordx4 {vr(T+mb*8+4*u,4)}, v{vSt}, s[12:15], s{t1} offen offset:{mb*2048+u*1024}")
    VF, PK, ONE = T + 16, T + 32, T + 48
    KVA, ZA = AC(0, 0), AC(1, 0)
    for mb in range(2):
        b = AC(mb, 2)
        for r in range(8):
            a(f"v_cvt_pk_bf16_f32 v{VF+mb*8+r}, v{b+2*r}, v{b+2*r+1}")
    for r in range(4):
        a(f"v_mov_b32 v{ONE+r}, 0x3f803f80")
    for mb in range(2):
        b = AC(mb, 1)
        e = AC(mb, 2)
        for r in range(16):
            a(f"v_mul_f32 v{e+r}, s{sI}, v{b+r}")
        for r in range(16):
            a(f"v_exp_f32_e64 v{e+r}, v{e+r} clamp")
        for r in range(16):
            a(f"v_max_f32 v{b+r}, s{t2}, v{b+r}")
        for r in range(16):
            a(f"v_add_f32 v{b+r}, v{b+r}, v{e+r}")
        for r in range(8):
            a(f"v_cvt_pk_bf16_f32 v{PK+mb*8+r}, v{b+2*r}, v{b+2*r+1}")
    a("s_nop 1")
    for mb in range(2):
        for u in range(2):
            z = (mb == 0 and u == 0)
            a(f"v_mfma_f32_32x32x16_bf16 {vr(KVA,16)}, {vr(PK+mb*8+4*u,4)}, {vr(VF+mb*8+4*u,4)}, {'0' if z else vr(KVA,16)}")
            a(f"v_mfma_f32_32x32x16_bf16 {vr(ZA,16)}, {vr(PK+mb*8+4*u,4)}, {vr(ONE,4)}, {'0' if z else vr(ZA,16)}")
    a(f"""
    s_barrier
    s_lshl_b32 s{t0}, s{sW}, 13
    v_add_u32 v{vTmp}, s{t0}, v{vSt}
    s_nop 7
    """)
    for q in range(4):
        a(f"ds_write_b128 v{vTmp}, {vr(KVA+4*q,4)} offset:{q*1024}")
    for q in range(4):
        a(f"ds_write_b128 v{vTmp}, {vr(ZA+4*q,4)} offset:{4096+q*1024}")
    a(f"""
    s_lshl_b32 s{t0}, s{sWn}, 15
    s_lshl_b32 s{t1}, s{sWm}, 11
    s_add_u32 s{t0}, s{t0}, s{t1}
    v_add_u32 v{vTmp}, s{t0}, v{vSt}
    s_waitcnt lgkmcnt(0)
    s_barrier
    """)
    RB = T
    for j in range(4):
        for q in range(2):
            a(f"ds_read_b128 {vr(RB+(j*2+q)*4,4)}, v{vTmp} offset:{j*8192+q*1024}")
    a(f"""
    s_lshl_b32 s{t0}, s{sH}, 3
    s_add_u32 s{t0}, s{t0}, s{sMt}
    s_lshl_b32 s{t0}, s{t0}, 13
    s_add_u32 s{t0}, s{t0}, s{t1}
    s_add_u32 s{t0}, s{t0}, {WS_KVP}
    s_waitcnt lgkmcnt(0)
    """)
    for r in range(8):
        a(f"v_add_f32 v{RB+r}, v{RB+r}, v{RB+8+r}")
        a(f"v_add_f32 v{RB+16+r}, v{RB+16+r}, v{RB+24+r}")
    for r in range(8):
        a(f"v_add_f32 v{RB+r}, v{RB+r}, v{RB+16+r}")
    for q in range(2):
        a(f"buffer_store_dwordx4 {vr(RB+4*q,4)}, v{vSt}, s[12:15], s{t0} offen offset:{q*1024}")
    if 'stamp' in DBG:
        a.label("k1_stamp")
        a(f'''
        s_waitcnt vmcnt(0)
        s_memtime s[56:57]
        s_memrealtime s[60:61]
        s_waitcnt lgkmcnt(0)
        s_lshl_b32 s{t0}, s2, 3
        s_add_u32 s{t0}, s{t0}, s{sW}
        s_lshl_b32 s{t0}, s{t0}, 6
        s_add_u32 s{t0}, s{t0}, {64*MB}
        v_mov_b32 v20, s50
        v_mov_b32 v21, s52
        v_mov_b32 v22, s54
        v_mov_b32 v23, s56
        v_mov_b32 v24, s58
        v_mov_b32 v25, s60
        v_mov_b32 v26, s70
        v_mov_b32 v27, s72
        v_mov_b32 v28, 0
        v_mov_b32 v30, s74
        v_mov_b32 v31, s76
        buffer_store_dwordx4 v[20:23], v28, s[12:15], s{t0} offen
        buffer_store_dwordx4 v[24:27], v28, s[12:15], s{t0} offen offset:16
        buffer_store_dwordx2 v[30:31], v28, s[12:15], s{t0} offen offset:32
        ''')
    a.label(end)
    a("s_endpgm")
    return name, NV
```

```python
import sys, os
sys.path.insert(0, os.path.dirname(os.path.abspath(__file__)))
from asmlib import *
import gen_k1

HEAD = open("concat_heads__mha_block__linear_attn_block__prompt.s.ref").read().split("; @launch")[0]

def build(which, out):
    a = Asm()
    launches = []
    kds = ""
    for k in which:
        if k == "k1":
            n, nv = gen_k1.gen_k1(a)
            launches.append(f"; @launch kernel={n} grid=(256,1,1) block=(512,1,1) lds={gen_k1.K1_LDS}")
        elif k == "k2":
            import gen_k2
            n, nv = gen_k2.gen_k2(a)
            launches.append(f"; @launch kernel={n} grid=(256,1,1) block=(512,1,1) lds={gen_k2.K2_LDS}")
        elif k == "k3":
            import gen_k3
            n, nv = gen_k3.gen_k3(a)
            launches.append(f"; @launch kernel={n} grid=(256,1,1) block=({gen_k3.K3_THREADS},1,1) lds={gen_k3.K3_LDS}")
        kds += kd(n, nv)
    txt = HEAD + "\n".join(launches) + "\n" + '.amdgcn_target "amdgcn-amd-amdhsa--gfx950"\n.text\n' + a.text() + 'text_end:\n.section .rodata,"a"\n.p2align 6\n' + kds
    lines = txt.split("\n")
    cur = None
    for i, l in enumerate(lines):
        for kn, ki in (("qkv_kernel:", 1), ("attn_kernel:", 2), ("oproj_kernel:", 3), ("k3_tile:", 3), ("k2_end:", 2)):
            if l.startswith(kn): cur = ki
        if l.strip().startswith("buffer_store") and "sc1" not in l:
            sm = os.environ.get(f'STMOD{cur}', os.environ.get('STMOD', 'sc1 nt' if cur == 3 else 'sc1'))
            if sm: lines[i] = l + " " + sm
    txt = "\n".join(lines)
    open(out, "w").write(txt)

if __name__ == "__main__":
    which = sys.argv[1].split(",")
    build(which, sys.argv[2])
```

```python
from asmlib import *
import struct

def f2u(x):
    return struct.unpack("<I", struct.pack("<f", x))[0]

LOG2E = 1.4426950408889634
QSCALE = (32 ** -0.5) * LOG2E

XSLOT = 32768
NXS = 3
WBASE = XSLOT * NXS
WSLOT = 12288
NWS = 5
K1_LDS = WBASE + WSLOT * NWS

import os
DBG = os.environ.get('K1DBG', '')
PFP = int(os.environ.get('PFP', '5'))
PFT = int(os.environ.get('PFT', '1'))
PFDELAY = int(os.environ.get('PFDELAY', '0'))
PFC = int(os.environ.get('PFC', '3'))
PFCI = int(os.environ.get('PFCI', '25'))
PHASE = [int(x) for x in os.environ.get('K1PHASE', '1,2').split(',') if x]
PF3POS = int(os.environ.get('PF3POS', '2'))
DIST = int(os.environ.get('K1DIST', '4'))
MAP = int(os.environ.get('K1MAP', '1'))
CPOS = int(os.environ.get('K1CPOS', '1'))
PFS = int(os.environ.get('PFS', '2'))
SPREAD = int(os.environ.get('K1SPREAD', '1'))
ROT = int(os.environ.get('K1ROT', '0'))
def gen_k1(a):
    name = "qkv_kernel"
    kernel_head(a, name)
    vLane, vTmp, vTmp2 = 1, 2, 3
    vLd = 4
    vXb0, vLd2, vWb = 5, 6, 7
    vXa0, vXa1, vWa = 8, 9, 10
    vSt = 11
    vPfA, vPfB, vPfD = 12, 13, 14
    sPf, sPfInc = 37, 38
    F = 16
    def XF(s, mb, tb): return F + s * 40 + (mb * 2 + tb) * 4
    def WF(s, t, db): return F + s * 40 + 16 + (t * 2 + db) * 4
    ACC = 96
    def AC(mb, t): return ACC + (mb * 3 + t) * 16
    NV = 192
    sLd = 4
    sWS = 12
    sSo = 62
    sXr, sXw, sM0off2 = 16, 17, 18
    sInc, sRd, sWr, sM0off, sI, sSize = 20, 21, 22, 23, 24, 25
    sPart, sMt, sNt, sW, sWm, sWn, sH = 26, 27, 28, 29, 30, 31, 32
    t0, t1, t2, t3 = 33, 34, 35, 36
    end = "k1_end"
    sStep, sHalf, sA, sB, sAdv = 40, 41, 42, 43, 39
    ST = 'stamp' in DBG
    MAPC = "s_mov_b32 s3, s2"
    if MAP:
        MAPC = f'''s_and_b32 s{t0}, s2, 1
        s_xor_b32 s{t0}, s{t0}, {MAP & 1}
        s_lshl_b32 s{t0}, s{t0}, 2
        s_bfe_u32 s{t1}, s2, 0x10002
        s_and_b32 s3, s2, 2
        s_or_b32 s3, s3, s{t0}
        s_or_b32 s3, s3, s{t1}'''
    a(f"""
    s_cmp_ge_u32 s2, 256
    s_cbranch_scc1 {end}
    {'s_memtime s[50:51]' if ST else ''}
    {'s_memrealtime s[58:59]' if ST else ''}
    s_load_dwordx4 s[80:83], s[0:1], 0
    s_load_dwordx4 s[84:87], s[0:1], 24
    s_load_dwordx2 s[12:13], s[0:1], 64
    v_lshrrev_b32 v{vTmp}, 6, v0
    v_and_b32 v{vLane}, 63, v0
    {MAPC}
    s_and_b32 s{t0}, s3, 7
    s_lshr_b32 s{t1}, s2, 3
    v_readfirstlane_b32 s{sW}, v{vTmp}
    s_lshr_b32 s{sPart}, s{t0}, 2
    s_bfe_u32 s{t2}, s{t0}, 0x10001
    s_lshl_b32 s{t2}, s{t2}, 2
    s_lshr_b32 s{t3}, s{t1}, 3
    s_add_u32 s{sMt}, s{t2}, s{t3}
    s_and_b32 s{t2}, s{t0}, 1
    s_lshl_b32 s{t2}, s{t2}, 3
    s_and_b32 s{t3}, s{t1}, 7
    s_add_u32 s{sNt}, s{t2}, s{t3}
    s_and_b32 s{sWm}, s{sW}, 3
    s_lshr_b32 s{sWn}, s{sW}, 2
    s_mov_b32 s7, 0x00020000
    s_cmp_lg_u32 s{sW}, 7
    s_cbranch_scc1 k1_ld_setup
    s_getpc_b64 s[44:45]
    k1_pc:
    s_sub_u32 s44, s44, k1_pc-qkv_kernel
    s_subb_u32 s45, s45, 0
    v_lshlrev_b32 v{vPfD}, 7, v{vLane}
    global_load_dword v15, v{vPfD}, s[44:45]
    v_add_u32 v{vTmp}, 8192, v{vPfD}
    v_min_u32 v{vTmp}, text_end-qkv_kernel-4, v{vTmp}
    global_load_dword v15, v{vTmp}, s[44:45]
    s_branch k1_pf_setup
    k1_ld_setup:
    s_lshl_b32 s{t0}, s{sMt}, 19
    s_lshl_b32 s{t1}, s{sW}, 17
    s_add_u32 s{t0}, s{t0}, s{t1}
    s_lshl_b32 s{t1}, s{sNt}, 7
    s_lshl_b32 s{t2}, s{sWm}, 11
    s_add_u32 s{t1}, s{t1}, s{t2}
    s_lshl_b32 s{t2}, s{sW}, 13
    s_lshl_b32 s{t3}, s{sWm}, 12
    s_add_u32 s{t3}, s{t3}, {WBASE}
    s_cmp_lt_u32 s{sW}, 4
    s_cselect_b32 s{sSo}, s{t0}, s{t1}
    s_cselect_b32 s{sM0off}, s{t2}, s{t3}
    s_cselect_b32 s{t0}, 1, 3
    s_cselect_b32 s{sB}, 4, 3
    s_cselect_b32 s{sAdv}, 1, 3072
    s_cselect_b32 s{sSize}, 2, 3
    s_cselect_b32 s{t1}, 3, 1
    s_cselect_b32 s{t2}, 0, 2
    s_cselect_b32 s{t3}, 64, 32
    s_lshl_b32 s{sStep}, s{t0}, 14
    s_sub_u32 s{sStep}, s{sStep}, 1024
    s_lshl_b32 s{sHalf}, s{t0}, 16
    s_lshl_b32 s{sA}, s{t0}, 12
    s_lshl_b32 s{sB}, s{sB}, 13
    s_lshl_b32 s{sAdv}, s{sAdv}, 7
    s_lshl_b32 s{sSize}, s{sSize}, 21
    s_lshl_b32 s{t0}, s{t0}, 11
    v_lshrrev_b32 v{vTmp}, 3, v{vLane}
    v_mul_u32_u24 v{vLd}, s{t0}, v{vTmp}
    v_lshrrev_b32 v{vTmp}, 4, v{vLane}
    v_and_b32 v{vTmp}, s{t1}, v{vTmp}
    v_lshlrev_b32 v{vTmp}, s{t2}, v{vTmp}
    v_and_b32 v{vTmp2}, 7, v{vLane}
    v_xor_b32 v{vTmp}, v{vTmp}, v{vTmp2}
    v_lshlrev_b32 v{vTmp}, 4, v{vTmp}
    v_add_u32 v{vLd}, v{vLd}, v{vTmp}
    v_xor_b32 v{vLd2}, s{t3}, v{vLd}
    s_add_u32 s{sSo+1}, s{sSo}, s{sStep}
    s_add_u32 s{sSo+2}, s{sSo+1}, s{sStep}
    s_add_u32 s{sSo+3}, s{sSo+2}, s{sStep}
    s_add_u32 s{sSo+4}, s{sSo}, s{sHalf}
    s_add_u32 s{sSo+5}, s{sSo+1}, s{sHalf}
    s_add_u32 s{sSo+6}, s{sSo+2}, s{sHalf}
    s_add_u32 s{sSo+7}, s{sSo+3}, s{sHalf}
    s_mov_b32 s6, s{sSize}
    s_mov_b32 m0, s{sM0off}
    {'s_memtime s[70:71]' if ST else ''}
    s_waitcnt lgkmcnt(0)
    {'s_memtime s[72:73]' if ST else ''}
    s_cmp_eq_u32 s{sPart}, 0
    s_cselect_b32 s80, s80, s84
    s_cselect_b32 s81, s81, s85
    s_cselect_b32 s82, s82, s86
    s_cselect_b32 s83, s83, s87
    s_cmp_lt_u32 s{sW}, 4
    s_cselect_b32 s4, s80, s82
    s_cselect_b32 s5, s81, s83
    """)

    def dma(role, half=0):
        L = []
        if role == 2:
            return L
        for j in range(4):
            L.append(f"buffer_load_dwordx4 v{vLd2 if j & 1 else vLd}, s[4:7], s{sSo+4*half+j} offen offset:{j*1024} lds")
        if half:
            L.append(f"v_add_u32 v{vLd}, s{sAdv}, v{vLd}")
            L.append(f"v_add_u32 v{vLd2}, s{sAdv}, v{vLd2}")
        return L

    def common():
        a(f"""
        s_lshl_b32 s{sH}, s{sNt}, 1
        s_add_u32 s{sH}, s{sH}, s{sWn}
        s_mov_b32 s14, {WS_SIZE}
        s_mov_b32 s15, 0x00020000
        v_lshlrev_b32 v{vSt}, 4, v{vLane}
        """)
        a(f"""
        v_and_b32 v{vTmp}, 15, v{vLane}
        s_lshl_b32 s{t0}, s{sWm}, 13
        v_lshlrev_b32 v{vTmp}, 7, v{vTmp}
        v_add_u32 v{vTmp}, s{t0}, v{vTmp}
        v_lshrrev_b32 v{vTmp2}, 4, v{vLane}
        v_bfe_u32 v{vXb0}, v{vLane}, 1, 3
        v_xor_b32 v{vTmp2}, v{vTmp2}, v{vXb0}
        v_lshlrev_b32 v{vTmp2}, 4, v{vTmp2}
        v_add_u32 v{vXb0}, v{vTmp}, v{vTmp2}
        """)
        a(f"""
        v_lshrrev_b32 v{vTmp}, 4, v{vLane}
        v_lshlrev_b32 v{vWb}, 10, v{vTmp}
        v_bfe_u32 v{vTmp}, v{vLane}, 2, 2
        v_lshlrev_b32 v{vTmp}, 7, v{vTmp}
        v_add_u32 v{vWb}, v{vWb}, v{vTmp}
        v_bfe_u32 v{vTmp}, v{vLane}, 3, 1
        v_xor_b32 v{vTmp}, s{sWn}, v{vTmp}
        v_lshlrev_b32 v{vTmp}, 6, v{vTmp}
        v_add_u32 v{vWb}, v{vWb}, v{vTmp}
        v_bfe_u32 v{vTmp}, v{vLane}, 4, 1
        v_lshlrev_b32 v{vTmp}, 5, v{vTmp}
        v_add_u32 v{vWb}, v{vWb}, v{vTmp}
        v_and_b32 v{vTmp}, 3, v{vLane}
        v_lshlrev_b32 v{vTmp}, 3, v{vTmp}
        v_add_u32 v{vWb}, v{vWb}, v{vTmp}
        v_add_u32 v{vWb}, {WBASE}, v{vWb}
        """)
        for r in range(96):
            a(f"v_mov_b32 v{ACC + r}, 0")
        a(f"""
        s_add_u32 s{sM0off2}, s{sM0off}, 4096
        s_mov_b32 s{sRd}, 0
        s_mov_b32 s{sI}, 0
        s_mov_b32 s{sXr}, 0
        s_mov_b32 s{sXw}, {(DIST // 2)*XSLOT}
        s_mov_b32 s{sWr}, {(DIST % NWS)*WSLOT}
        v_mov_b32 v{vXa0}, v{vXb0}
        v_mov_b32 v{vWa}, v{vWb}
        v_xor_b32 v{vXa1}, 32, v{vWb}
        """)

    for g in range(DIST):
        for d in dma(0, g & 1): a(d)
        if g < DIST - 1:
            if g & 1:
                a(f"s_add_u32 s48, s{sM0off}, s{sB}" if g == 1 else f"s_add_u32 s48, s48, s{sB}")
                a(f"s_mov_b32 m0, s48")
            else:
                a(f"s_add_u32 m0, m0, s{sA}")
            if g == CPOS: common()
            a("s_barrier" if g in PHASE else "s_nop 0")
    if ST: a('s_memtime s[74:75]')
    a("s_mov_b32 s47, 0")
    a("s_branch k1_common")

    a.label("k1_pf_setup")
    a(f"""
    v_and_b32 v{vTmp}, 31, v{vLane}
    v_lshlrev_b32 v{vPfA}, 11, v{vTmp}
    v_lshrrev_b32 v{vTmp}, 5, v{vLane}
    v_lshlrev_b32 v{vTmp}, 10, v{vTmp}
    v_add_u32 v{vPfA}, v{vPfA}, v{vTmp}
    s_bfe_u32 s{t0}, s3, 0x10001
    s_lshl_b32 s{t0}, s{t0}, 21
    s_lshr_b32 s{t1}, s2, 3
    s_lshl_b32 s{t2}, s{t1}, 16
    s_add_u32 s{sPf}, s{t0}, s{t2}
    v_lshlrev_b32 v{vPfB}, 11, v{vLane}
    v_min_u32 v{vTmp}, 31, v{vLane}
    v_add_u32 v{vTmp}, 64, v{vTmp}
    v_lshlrev_b32 v{vTmp2}, 11, v{vTmp}
    s_mul_i32 s{sPfInc}, s{t1}, {96*2048}
    s_and_b32 s{t0}, s3, 1
    s_lshl_b32 s{t0}, s{t0}, 10
    s_add_u32 s{sPfInc}, s{sPfInc}, s{t0}
    s_mov_b32 s6, {2048*2048}
    s_mov_b32 s10, {1024*6144}
    s_mov_b32 s11, 0x00020000
    s_mov_b32 s47, 1
    s_waitcnt lgkmcnt(0)
    s_cmp_eq_u32 s{sPart}, 0
    s_cselect_b32 s4, s80, s84
    s_cselect_b32 s5, s81, s85
    s_cselect_b32 s8, s82, s86
    s_cselect_b32 s9, s83, s87
    s_sub_u32 s{t0}, {3*128}, s4
    s_and_b32 s{t0}, s{t0}, {7*128}
    s_add_u32 s{sPf}, s{sPf}, s{t0}
    s_sub_u32 s{t0}, {3*128}, s8
    s_and_b32 s{t0}, s{t0}, {7*128}
    s_add_u32 s{sPfInc}, s{sPfInc}, s{t0}
    {'s_memtime s[70:71]' if ST else ''}
    {'s_memtime s[72:73]' if ST else ''}
    {'s_memtime s[74:75]' if ST else ''}
    """)
    a(f"v_mov_b32 v{vLd}, v{vTmp2}")
    a(f"s_mov_b32 s{sM0off}, 0")
    common()
    for ph in range(len(PHASE) + 1):
        if ph == PF3POS:
            if PFDELAY: a(f"s_sleep {PFDELAY}")
            a(f"""
            buffer_load_dword v15, v{vPfB}, s[8:11], s{sPfInc} offen
            buffer_load_dword v15, v{vLd}, s[8:11], s{sPfInc} offen
            buffer_load_dword v15, v{vPfA}, s[4:7], s{sPf} offen
            """)
        if ph < len(PHASE): a("s_barrier")

    a.label("k1_common")
    a(f"""
    s_cmp_eq_u32 s47, 1
    s_cbranch_scc0 k1_sel_ld
    s_cmp_eq_u32 s{sPart}, 0
    s_cbranch_scc1 k1_main_0_2
    s_branch k1_main_1_2
    """)
    a.label("k1_sel_ld")
    a(f"""
    s_cmp_eq_u32 s{sPart}, 0
    s_cbranch_scc1 k1_sel_0
    s_cmp_lt_u32 s{sW}, 4
    s_cbranch_scc1 k1_main_1_0
    s_branch k1_main_1_1
    """)
    a.label("k1_sel_0")
    a(f"""
    s_cmp_ge_u32 s{sW}, 4
    s_cbranch_scc1 k1_main_0_1
    """)

    vWa1 = vXa1
    def reads(s):
        L = []
        for i in range(4):
            L.append(f"ds_read_b128 {vr(XF(s,i>>1,i&1),4)}, v{vXa0} offset:{i*2048}")
        for t in range(3):
            for db in range(2):
                for rd in range(2):
                    L.append(f"ds_read_b64_tr_b16 {vr(WF(s,t,db)+2*rd,2)}, v{vWa1 if db else vWa} offset:{t*4096+rd*512}")
        return L

    def mfmas(part, s):
        L = []
        for t in range(3):
            for db in range(2):
                for mb in range(2):
                    for tb in range(2):
                        wfirst = (t == 0) or (t == 1 and part == 0)
                        if wfirst:
                            A, B, D = WF(s,t,db), XF(s,mb,tb), AC(mb,t) + tb * 8 + db * 4
                        else:
                            A, B, D = XF(s,mb,tb), WF(s,t,db), AC(mb,t) + db * 8 + tb * 4
                        L.append(f"v_mfma_f32_16x16x32_bf16 {vr(D,4)}, {vr(A,4)}, {vr(B,4)}, {vr(D,4)}")
        return L

    def advance(next_even):
        L = [
            f"s_add_u32 s{sRd}, s{sRd}, {WSLOT}",
            f"s_cmp_eq_u32 s{sRd}, {WSLOT*NWS}",
            f"s_cselect_b32 s{sRd}, 0, s{sRd}",
            f"v_add_u32 v{vWa}, s{sRd}, v{vWb}",
            f"v_xor_b32 v{vWa1}, 32, v{vWa}",
        ]
        if next_even:
            L += [f"v_xor_b32 v{vXa0}, 64, v{vXa0}"]
        else:
            L += [
                f"s_add_u32 s{sXr}, s{sXr}, {XSLOT}",
                f"s_cmp_eq_u32 s{sXr}, {XSLOT*NXS}",
                f"s_cselect_b32 s{sXr}, 0, s{sXr}",
                f"v_add_u32 v{vXa0}, s{sXr}, v{vXb0}",
            ]
        return L

    RPM = int(os.environ.get('K1RPM', '1'))
    PREM = int(os.environ.get('K1PREM', '0'))
    def iteration(part, role, cur):
        M = mfmas(part, cur)
        R = reads(1 - cur)
        half = (cur + DIST) & 1
        D = dma(role, half)
        wv = ""
        if role == 0 and cur == 1: wv = f"vmcnt({4*(DIST-3)})"
        if role == 1: wv = f"vmcnt({4*(DIST-2)})"
        if PREM:
            a("s_waitcnt lgkmcnt(0)")
            for m in range(PREM): a(M[m])
            if wv: a(f"s_waitcnt {wv}")
        else:
            a(f"s_waitcnt {wv} lgkmcnt(0)")
        a("s_barrier")
        dm = [d for d in D if d.startswith('buffer')]
        dv = [d for d in D if not d.startswith('buffer')]
        pos = (2, 8, 14, 20) if role == 0 else (5, 11, 17, 22)
        pos = [max(p, PREM + 1) for p in pos]
        ri = 0
        for m in range(PREM, 24):
            a(M[m])
            if m == PREM:
                if role == 0:
                    a(f"s_add_u32 m0, s{sXw}, s{sM0off2 if half else sM0off}")
                    if half:
                        a(f"s_add_u32 s{sXw}, s{sXw}, {XSLOT}")
                        a(f"s_cmp_eq_u32 s{sXw}, {XSLOT*NXS}")
                        a(f"s_cselect_b32 s{sXw}, 0, s{sXw}")
                elif role == 1:
                    a(f"s_add_u32 m0, s{sWr}, s{sM0off}")
                    a(f"s_add_u32 s{sWr}, s{sWr}, {WSLOT}")
                    a(f"s_cmp_eq_u32 s{sWr}, {WSLOT*NWS}")
                    a(f"s_cselect_b32 s{sWr}, 0, s{sWr}")
                if role < 2:
                    a(f"s_cmp_lt_u32 s{sI}, {32-DIST}")
                    a(f"s_cselect_b32 s6, s{sSize}, 0")
            for _ in range(RPM):
                if ri < 16:
                    a(R[ri]); ri += 1
                    if ri == 16:
                        for x in advance(cur == 1): a(x)
                        a(f"s_add_u32 s{sI}, s{sI}, 1")
            while dm and pos[4 - len(dm)] == m:
                a(dm.pop(0))
                if not dm:
                    for d in dv: a(d)
            if role == 2 and m == 6 and cur == 1 and PFC:
                a(f"s_cmp_eq_u32 s{sI}, {PFCI}")
                a(f"s_cbranch_scc1 k1_pfc_{part}")
                a.label(f"k1_pfc_back_{part}")
        assert ri == 16 and not dm

    for part in range(2):
        for role in range(3):
            a.label(f"k1_main_{part}_{role}")
            a(f"""
            {'s_memtime s[76:77]' if ST else ''}
            {[f's_waitcnt vmcnt({4*(DIST-2)})', f's_waitcnt vmcnt({4*(DIST-1)})', ''][role]}
            s_barrier
            {'s_memtime s[52:53]' if ST else ''}
            """)
            for r in reads(0): a(r)
            for x in advance(True): a(x)
            lp = f"k1_loop_{part}_{role}"
            a.label(lp)
            iteration(part, role, 0)
            iteration(part, role, 1)
            a(f"s_cmp_lt_u32 s{sI}, 30")
            a(f"s_cbranch_scc1 {lp}")
            iteration(part, role, 0)
            a("s_waitcnt lgkmcnt(0)")
            for m in mfmas(part, 1): a(m)
            if ST: a('s_memtime s[54:55]')
            a(f"s_branch k1_epi_{part}")
            if role == 2 and PFC:
                a.label(f"k1_pfc_{part}")
                for c in range(1, PFC):
                    a(f"v_add_u32 v{vTmp}, {c*8192}, v{vPfD}")
                    a(f"v_min_u32 v{vTmp}, text_end-qkv_kernel-4, v{vTmp}")
                    a(f"global_load_dword v15, v{vTmp}, s[44:45]")
                a(f"s_branch k1_pfc_back_{part}")

    a.label("k1_epi_0")
    a(f"""
    s_lshl_b32 s{t0}, s{sMt}, 3
    s_lshl_b32 s{t1}, s{sWm}, 1
    s_add_u32 s{t0}, s{t0}, s{t1}
    s_lshl_b32 s{t1}, s{sH}, 6
    s_add_u32 s{t0}, s{t0}, s{t1}
    s_lshl_b32 s{t1}, s{t0}, 11
    s_lshl_b32 s{t2}, s{t0}, 12
    s_add_u32 s{t2}, s{t2}, {WS_KV}
    s_add_u32 s{t3}, s{t2}, 4096
    s_mov_b32 s{sI}, {f2u(QSCALE):#x}
    v_lshrrev_b32 v{vTmp}, 4, v{vLane}
    v_lshlrev_b32 v{vTmp}, 9, v{vTmp}
    v_and_b32 v{vTmp2}, 15, v{vLane}
    v_lshl_add_u32 v{vSt}, v{vTmp2}, 4, v{vTmp}
    v_and_b32 v{vTmp2}, 12, v{vLane}
    v_lshl_add_u32 v{vTmp}, v{vTmp2}, 4, v{vSt}
    """)
    T = F
    ti = 0
    for mb in range(2):
        for t in range(3):
            b = AC(mb, t)
            if t == 0:
                for r in range(16):
                    a(f"v_mul_f32 v{b+r}, s{sI}, v{b+r}")
            for r in range(8):
                a(f"v_cvt_pk_bf16_f32 v{T+ti+r}, v{b+2*r}, v{b+2*r+1}")
            for u in range(2):
                if t == 0:
                    a(f"buffer_store_dwordx4 {vr(T+ti+4*u,4)}, v{vSt}, s[12:15], s{t1} offen offset:{mb*2048+u*256}")
                elif t == 1:
                    a(f"buffer_store_dwordx4 {vr(T+ti+4*u,4)}, v{vTmp}, s[12:15], s{t2 if mb == 0 else t3} offen offset:{u*64}")
                else:
                    a(f"buffer_store_dwordx4 {vr(T+ti+4*u,4)}, v{vSt}, s[12:15], s{t2 if mb == 0 else t3} offen offset:{2048+u*256}")
            ti += 8
    a(f"s_branch {'k1_stamp' if 'stamp' in DBG else end}")

    a.label("k1_epi_1")
    a(f"""
    s_lshl_b32 s{t0}, s{sMt}, 3
    s_lshl_b32 s{t1}, s{sWm}, 1
    s_add_u32 s{t0}, s{t0}, s{t1}
    s_lshl_b32 s{t1}, s{sH}, 6
    s_add_u32 s{t0}, s{t0}, s{t1}
    s_lshl_b32 s{t1}, s{t0}, 11
    s_add_u32 s{t1}, s{t1}, {WS_QB}
    s_mov_b32 s{sI}, {f2u(LOG2E):#x}
    s_mov_b32 s{t2}, {f2u(1e-6):#x}
    v_lshrrev_b32 v{vTmp}, 4, v{vLane}
    v_lshlrev_b32 v{vTmp}, 9, v{vTmp}
    v_and_b32 v{vTmp2}, 15, v{vLane}
    v_lshl_add_u32 v{vLd}, v{vTmp2}, 4, v{vTmp}
    v_and_b32 v{vTmp}, 32, v{vLane}
    v_lshl_add_u32 v{vLd2}, v{vTmp}, 5, v{vLd}
    s_waitcnt vmcnt(0)
    """)
    for mb in range(2):
        b = AC(mb, 0)
        for r in range(8):
            a(f"v_cvt_pk_bf16_f32 v{T+mb*8+r}, v{b+2*r}, v{b+2*r+1}")
        for u in range(2):
            a(f"buffer_store_dwordx4 {vr(T+mb*8+4*u,4)}, v{vLd}, s[12:15], s{t1} offen offset:{mb*2048+u*256}")
    VF, PK, ONE = T + 16, T + 32, T + 48
    KVA, ZA = AC(0, 0), AC(1, 0)
    for mb in range(2):
        b = AC(mb, 2)
        for r in range(8):
            a(f"v_cvt_pk_bf16_f32 v{VF+mb*8+r}, v{b+2*r}, v{b+2*r+1}")
    for r in range(4):
        a(f"v_mov_b32 v{ONE+r}, 0x3f803f80")
    for mb in range(2):
        b = AC(mb, 1)
        e = AC(mb, 2)
        for r in range(16):
            a(f"v_mul_f32 v{e+r}, s{sI}, v{b+r}")
        for r in range(16):
            a(f"v_exp_f32_e64 v{e+r}, v{e+r} clamp")
        for r in range(16):
            a(f"v_max_f32 v{b+r}, s{t2}, v{b+r}")
        for r in range(16):
            a(f"v_add_f32 v{b+r}, v{b+r}, v{e+r}")
        for r in range(8):
            a(f"v_cvt_pk_bf16_f32 v{PK+mb*8+r}, v{b+2*r}, v{b+2*r+1}")
    a("s_nop 1")
    for mb in range(2):
        z = (mb == 0)
        for dk in range(2):
            for dv in range(2):
                d = KVA + (dk * 2 + dv) * 4
                a(f"v_mfma_f32_16x16x32_bf16 {vr(d,4)}, {vr(PK+mb*8+4*dk,4)}, {vr(VF+mb*8+4*dv,4)}, {'0' if z else vr(d,4)}")
            d = ZA + dk * 4
            a(f"v_mfma_f32_16x16x32_bf16 {vr(d,4)}, {vr(PK+mb*8+4*dk,4)}, {vr(ONE,4)}, {'0' if z else vr(d,4)}")
    a(f"""
    s_barrier
    s_lshl_b32 s{t0}, s{sW}, 13
    v_add_u32 v{vTmp}, s{t0}, v{vLd2}
    s_nop 4
    """)
    for dk in range(2):
        for dv in range(2):
            a(f"ds_write_b128 v{vTmp}, {vr(KVA+(dk*2+dv)*4,4)} offset:{dk*1024+dv*256}")
    for dk in range(2):
        for dv in range(2):
            a(f"ds_write_b128 v{vTmp}, {vr(ZA+dk*4,4)} offset:{4096+dk*1024+dv*256}")
    a(f"""
    s_lshl_b32 s{t0}, s{sWn}, 15
    s_lshl_b32 s{t1}, s{sWm}, 11
    s_add_u32 s{t0}, s{t0}, s{t1}
    v_add_u32 v{vTmp}, s{t0}, v{vSt}
    s_waitcnt lgkmcnt(0)
    s_barrier
    """)
    RB = T
    for j in range(4):
        for q in range(2):
            a(f"ds_read_b128 {vr(RB+(j*2+q)*4,4)}, v{vTmp} offset:{j*8192+q*1024}")
    a(f"""
    s_lshl_b32 s{t0}, s{sH}, 3
    s_add_u32 s{t0}, s{t0}, s{sMt}
    s_lshl_b32 s{t0}, s{t0}, 13
    s_add_u32 s{t0}, s{t0}, s{t1}
    s_add_u32 s{t0}, s{t0}, {WS_KVP}
    s_waitcnt lgkmcnt(0)
    """)
    for r in range(8):
        a(f"v_add_f32 v{RB+r}, v{RB+r}, v{RB+8+r}")
        a(f"v_add_f32 v{RB+16+r}, v{RB+16+r}, v{RB+24+r}")
    for r in range(8):
        a(f"v_add_f32 v{RB+r}, v{RB+r}, v{RB+16+r}")
    for q in range(2):
        a(f"buffer_store_dwordx4 {vr(RB+4*q,4)}, v{vSt}, s[12:15], s{t0} offen offset:{q*1024}")
    if 'stamp' in DBG:
        a.label("k1_stamp")
        a(f'''
        s_waitcnt vmcnt(0)
        s_memtime s[56:57]
        s_memrealtime s[60:61]
        s_waitcnt lgkmcnt(0)
        s_lshl_b32 s{t0}, s2, 3
        s_add_u32 s{t0}, s{t0}, s{sW}
        s_lshl_b32 s{t0}, s{t0}, 6
        s_add_u32 s{t0}, s{t0}, {64*MB}
        v_mov_b32 v20, s50
        v_mov_b32 v21, s52
        v_mov_b32 v22, s54
        v_mov_b32 v23, s56
        v_mov_b32 v24, s58
        v_mov_b32 v25, s60
        v_mov_b32 v26, s70
        v_mov_b32 v27, s72
        v_mov_b32 v28, 0
        v_mov_b32 v30, s74
        v_mov_b32 v31, s76
        buffer_store_dwordx4 v[20:23], v28, s[12:15], s{t0} offen
        buffer_store_dwordx4 v[24:27], v28, s[12:15], s{t0} offen offset:16
        buffer_store_dwordx2 v[30:31], v28, s[12:15], s{t0} offen offset:32
        ''')
    a.label(end)
    a("s_endpgm")
    return name, NV
```

```python
from asmlib import *
import struct, os

def f2u(x):
    return struct.unpack("<I", struct.pack("<f", x))[0]

LOG2E = 1.4426950408889634
DBG = os.environ.get('K2DBG', '')
SCHED = os.environ.get('K2SCHED', 'a')

CH = 32768
NCH = 4
KVF = CH * NCH
WOST = KVF + 4096
K2_LDS = WOST + 16384

def gen_k2(a):
    name = "attn_kernel"
    kernel_head(a, name)
    vLane, vSt, vTmp, vTmp2, vRd, vRdN, vWo = 1, 2, 3, 4, 5, 6, 7
    Q = 8
    KB = [16, 24]
    VB = [32, 40]
    S = [48, 64]
    C = 80
    O = 96
    PB = [112, 120]
    LS = 128
    SEL = 132
    KP = 136
    QBR = 168
    KF = 176
    WF = 192
    vWr, vKw, vKr, vT3 = 200, 201, 202, 203
    vCs = 204
    vIx = 206
    vWs = 207
    NV = 208
    sH, sQb, sW, sBlk = 16, 17, 18, 19
    sKv, sC, sRd, sRdN, sWr, sM0off, sSize = 20, 21, 22, 23, 24, 25, 26
    t0, t1, t2, t3 = 27, 28, 29, 30
    sOut = 31
    sWoS, sWoD, sWoD2, sWoM = 32, 34, 35, 38
    sKvp, sQB, sOutB = 39, 40, 41
    cL2E, cEps, cHi = 42, 43, 44
    end = "k2_end"
    st = 'stamp' in DBG
    vq = []
    def vm(s, tag, load=True):
        a(s); vq.append((tag, load))
    def after(tag):
        idx = max(i for i, (t, l) in enumerate(vq) if t == tag)
        return sum(1 for (t, l) in vq[idx+1:] if l)

    a(f"""
    s_cmp_ge_u32 s2, 256
    s_cbranch_scc1 {end}
    {'s_memtime s[50:51]' if st else ''}
    {'s_memrealtime s[58:59]' if st else ''}
    s_load_dwordx2 s[12:13], s[0:1], 64
    s_load_dwordx2 s[8:9], s[0:1], 16
    s_load_dwordx2 s[36:37], s[0:1], 40
    v_and_b32 v{vLane}, 63, v0
    v_lshrrev_b32 v{vTmp}, 6, v0
    s_and_b32 s{t0}, s2, 7
    s_lshr_b32 s{t1}, s2, 3
    v_readfirstlane_b32 s{sW}, v{vTmp}
    s_lshl_b32 s{sH}, s{t0}, 2
    s_lshr_b32 s{t2}, s{t1}, 3
    s_add_u32 s{sH}, s{sH}, s{t2}
    s_and_b32 s{sQb}, s{t1}, 7
    s_lshl_b32 s{sBlk}, s{sQb}, 3
    s_add_u32 s{sBlk}, s{sBlk}, s{sW}
    s_mov_b32 s14, {WS_SIZE}
    s_mov_b32 s15, 0x00020000
    s_mov_b32 s{sSize}, {WS_SIZE}
    s_mov_b32 s6, {WS_SIZE}
    s_mov_b32 s7, 0x00020000
    v_lshlrev_b32 v{vSt}, 4, v{vLane}
    s_lshl_b32 s{t0}, s{sH}, 6
    s_add_u32 s{t0}, s{t0}, s{sBlk}
    s_lshl_b32 s{t0}, s{t0}, 11
    s_add_u32 s{sQB}, s{t0}, {WS_QB}
    s_lshl_b32 s{sKv}, s{sH}, 18
    s_lshl_b32 s{sM0off}, s{sW}, 12
    s_add_u32 s{sKv}, s{sKv}, s{sM0off}
    s_add_u32 s{sKv}, s{sKv}, {WS_KV}
    s_mov_b32 m0, s{sM0off}
    s_waitcnt lgkmcnt(0)
    {'s_memtime s[62:63]' if st else ''}
    s_mov_b32 s4, s12
    s_mov_b32 s5, s13
    """)
    def dma1(j, tag):
        vm(f"buffer_load_dwordx4 v{vSt}, s[4:7], s{sKv} offen offset:{j*1024} lds", tag)
        if j == 3:
            a(f"s_add_u32 s{sKv}, s{sKv}, {CH}")
    for j in range(4): dma1(j, 'c0')
    for u in range(2):
        vm(f"buffer_load_dwordx4 {vr(Q+4*u,4)}, v{vSt}, s[12:15], s{t0} offen offset:{u*1024}", 'qa')
    if st: a('s_memtime s[64:65]')
    a(f"""
    s_add_u32 m0, s{sM0off}, {CH}
    s_lshl_b32 s{sKvp}, s{sH}, 16
    s_lshl_b32 s{t3}, s{sW}, 10
    s_add_u32 s{sKvp}, s{sKvp}, s{t3}
    s_add_u32 s{sKvp}, s{sKvp}, {WS_KVP}
    s_lshl_b32 s{sOut}, s{sBlk}, 5
    s_add_u32 s{sOut}, s{sOut}, s{sH}
    s_lshl_b32 s{sOut}, s{sOut}, 11
    s_add_u32 s{sOut}, s{sOut}, {WS_O}
    s_add_u32 s{sOutB}, s{sOut}, {4*MB}
    s_cmp_lt_u32 s2, 128
    s_cselect_b32 s8, s8, s36
    s_cselect_b32 s9, s9, s37
    s_mov_b32 s10, {2*MB}
    s_mov_b32 s11, 0x00020000
    s_bfe_u32 s{t0}, s2, 0x40003
    s_lshl_b32 s{t0}, s{t0}, 2
    s_lshr_b32 s{t1}, s{sW}, 1
    s_add_u32 s{t0}, s{t0}, s{t1}
    s_and_b32 s{t1}, s2, 7
    s_lshl_b32 s{t1}, s{t1}, 1
    s_and_b32 s{t2}, s{sW}, 1
    s_add_u32 s{t1}, s{t1}, s{t2}
    s_lshl_b32 s{sWoS}, s{t0}, 15
    s_lshl_b32 s{t2}, s{t1}, 7
    s_add_u32 s{sWoS}, s{sWoS}, s{t2}
    s_add_u32 s{sWoS+1}, s{sWoS}, {16384-1024}
    s_lshr_b32 s{t2}, s2, 7
    s_lshl_b32 s{sWoD}, s{t2}, 21
    s_lshl_b32 s{t2}, s{t1}, 17
    s_add_u32 s{sWoD}, s{sWoD}, s{t2}
    s_lshl_b32 s{t2}, s{t0}, 10
    s_add_u32 s{sWoD}, s{sWoD}, s{t2}
    s_add_u32 s{sWoD}, s{sWoD}, {WS_WO}
    s_add_u32 s{sWoD2}, s{sWoD}, 65536
    s_lshl_b32 s{sWoM}, s{sW}, 11
    s_add_u32 s{sWoM}, s{sWoM}, {WOST}
    v_lshrrev_b32 v{vTmp}, 3, v{vLane}
    v_lshlrev_b32 v{vTmp}, 11, v{vTmp}
    v_and_b32 v{vTmp2}, 7, v{vLane}
    v_lshlrev_b32 v{vTmp2}, 4, v{vTmp2}
    v_add_u32 v{vWo}, v{vTmp}, v{vTmp2}
    v_lshrrev_b32 v{vTmp}, 5, v{vLane}
    v_lshlrev_b32 v{vWr}, 9, v{vTmp}
    v_bfe_u32 v{vTmp}, v{vLane}, 2, 2
    v_lshlrev_b32 v{vTmp}, 7, v{vTmp}
    v_add_u32 v{vWr}, v{vWr}, v{vTmp}
    v_bfe_u32 v{vTmp}, v{vLane}, 4, 1
    v_lshlrev_b32 v{vTmp}, 5, v{vTmp}
    v_add_u32 v{vWr}, v{vWr}, v{vTmp}
    v_and_b32 v{vTmp}, 3, v{vLane}
    v_lshlrev_b32 v{vTmp}, 3, v{vTmp}
    v_add_u32 v{vWr}, v{vWr}, v{vTmp}
    v_add_u32 v{vWr}, s{sWoM}, v{vWr}
    v_bfe_u32 v{vTmp2}, v{vLane}, 2, 1
    v_cmp_eq_u32 vcc, 0, v{vTmp2}
    v_mov_b32 v{vTmp}, 0x3f803f80
    s_lshr_b32 s{t0}, s{sW}, 1
    s_lshl_b32 s{t0}, s{t0}, 10
    v_cndmask_b32 v{SEL}, 0, v{vTmp}, vcc
    s_and_b32 s{t1}, s{sW}, 1
    s_lshl_b32 s{t1}, s{t1}, 3
    s_add_u32 s{t0}, s{t0}, s{t1}
    s_add_u32 s{t0}, s{t0}, {KVF}
    v_mov_b32 v{SEL+1}, v{SEL}
    v_xor_b32 v{SEL+2}, v{SEL}, v{vTmp}
    v_xor_b32 v{SEL+3}, v{SEL}, v{vTmp}
    v_and_b32 v{vWs}, 0x23, v{vLane}
    v_lshl_add_u32 v{vWs}, v{vTmp2}, 4, v{vWs}
    v_bfe_u32 v{vTmp2}, v{vLane}, 3, 2
    v_lshl_add_u32 v{vWs}, v{vTmp2}, 2, v{vWs}
    v_lshlrev_b32 v{vWs}, 4, v{vWs}
    v_add_u32 v{vKw}, s{t0}, v{vSt}
    v_add_u32 v{vKr}, {KVF}, v{vSt}
    s_mov_b32 s{cL2E}, {f2u(LOG2E):#x}
    s_mov_b32 s{cEps}, {f2u(1e-6):#x}
    s_mov_b32 s{cHi}, 0xffff0000
    s_mov_b32 s{sC}, 0
    s_mov_b32 s{sRd}, 0
    s_mov_b32 s{sRdN}, {CH}
    s_mov_b32 s{sWr}, {3*CH}
    v_mov_b32 v{vRd}, v{vSt}
    v_add_u32 v{vRdN}, {CH}, v{vSt}
    """)
    for r in range(16):
        a(f"v_mov_b32 v{O+r}, 0")
    for r in range(4):
        a(f"v_mov_b32 v{LS+r}, 0")
    for r in range(8):
        a(f"v_mov_b32 v{S[1]+8+r}, 0")
    for r in range(4):
        a(f"v_mov_b32 v{VB[1]+4+r}, 0")
    a(f"v_mov_b32 v{vIx}, 0xdddddddd")
    a(f"""
    {'s_memtime s[66:67]' if st else ''}
    s_waitcnt vmcnt({after('qa')})
    {'s_memtime s[68:69]' if st else ''}
    s_barrier
    {'s_memtime s[52:53]' if st else ''}
    """)
    for u in range(2):
        a(f"ds_read_b128 {vr(KB[0]+4*u,4)}, v{vSt} offset:{u*1024}")
    for u in range(2):
        a(f"ds_read_b128 {vr(KB[1]+4*u,4)}, v{vSt} offset:{4096+u*1024}")
    for u in range(2):
        a(f"ds_read_b128 {vr(VB[0]+4*u,4)}, v{vSt} offset:{2048+u*1024}")
    s0 = S[0]
    for j in range(2): dma1(j, 'c1')
    a(f"""
    s_waitcnt lgkmcnt(4)
    v_mfma_f32_32x32x16_bf16 {vr(s0,16)}, {vr(KB[0],4)}, {vr(Q,4)}, 0
    v_mfma_f32_32x32x16_bf16 {vr(s0,16)}, {vr(KB[0]+4,4)}, {vr(Q+4,4)}, {vr(s0,16)}
    """)
    for j in range(2, 4): dma1(j, 'c1')
    a(f"""
    s_add_u32 m0, s{sM0off}, {2*CH}
    s_mov_b64 vcc, -1
    s_nop 7
    """)
    a(f"v_max3_f32 v{vTmp}, v{s0}, v{s0+1}, v{s0+2}")
    a(f"v_max3_f32 v{vTmp2}, v{s0+3}, v{s0+4}, v{s0+5}")
    for r in range(6, 14, 4):
        a(f"v_max3_f32 v{vTmp}, v{vTmp}, v{s0+r}, v{s0+r+1}")
        a(f"v_max3_f32 v{vTmp2}, v{vTmp2}, v{s0+r+2}, v{s0+r+3}")
    a(f"""
    v_max3_f32 v{vTmp}, v{vTmp}, v{s0+14}, v{s0+15}
    v_max_f32 v{vTmp}, v{vTmp}, v{vTmp2}
    v_mov_b32 v{vTmp2}, v{vTmp}
    s_nop 1
    v_permlane32_swap_b32 v{vTmp}, v{vTmp2}
    s_nop 1
    v_max_f32 v{vTmp}, v{vTmp}, v{vTmp2}
    """)
    for j in range(2): dma1(j, 'c2')
    for r in range(16):
        a(f"v_sub_f32 v{C+r}, 0, v{vTmp}")
    for r in range(16):
        a(f"v_sub_f32 v{s0+r}, v{s0+r}, v{vTmp}")

    U, E = KP, KP + 16
    OB, DEN = KP, KP + 16
    def side(c, t):
        if c == 0:
            if t in (1, 2, 3, 4):
                for m in (2 * t - 2, 2 * t - 1):
                    a(f"buffer_load_dwordx4 {vr(KP+4*m,4)}, v{vSt}, s[12:15], s{sKvp} offen")
                    a(f"s_add_u32 s{sKvp}, s{sKvp}, 8192")
            if t == 5:
                a(f"s_mov_b32 m0, s{sWoM}")
                a("s_nop 0")
                a(f"buffer_load_dwordx4 v{vWo}, s[8:11], s{sWoS} offen lds")
                a(f"buffer_load_dwordx4 v{vWo}, s[8:11], s{sWoS+1} offen offset:1024 lds")
            if t == 7:
                for u in range(2):
                    a(f"buffer_load_dwordx4 {vr(QBR+4*u,4)}, v{vSt}, s[12:15], s{sQB} offen offset:{u*1024}")
        elif c == 1:
            if t == 1:
                a(f"s_waitcnt vmcnt(6)")
                for stp in (16, 8, 4):
                    for r in range(stp):
                        a(f"v_add_f32 v{KP+r}, v{KP+r}, v{KP+stp+r}")
                a(f"v_cvt_pk_bf16_f32 v{KP+4}, v{KP}, v{KP+1}")
                a(f"v_cvt_pk_bf16_f32 v{KP+5}, v{KP+2}, v{KP+3}")
                a(f"ds_write_b64 v{vKw}, {vr(KP+4,2)}")
                for nb in range(2):
                    for rd in range(2):
                        a(f"ds_read_b64_tr_b16 {vr(WF+4*nb+2*rd,2)}, v{vWr} offset:{nb*64+rd*1024}")
            if t == 2:
                a(f"s_waitcnt vmcnt(2)")
                a(f"buffer_store_dwordx4 {vr(WF,4)}, v{vWs}, s[12:15], s{sWoD} offen")
                a(f"buffer_store_dwordx4 {vr(WF+4,4)}, v{vWs}, s[12:15], s{sWoD2} offen")
                for r in range(8):
                    a(f"v_lshlrev_b32 v{U+2*r}, 16, v{QBR+r}")
                    a(f"v_and_b32 v{U+2*r+1}, s{cHi}, v{QBR+r}")
                for r in range(16):
                    a(f"v_mul_f32 v{E+r}, s{cL2E}, v{U+r}")
            if t == 3:
                for r in range(16):
                    a(f"v_exp_f32_e64 v{E+r}, v{E+r} clamp")
            if t == 4:
                for r in range(16):
                    a(f"v_max_f32 v{U+r}, s{cEps}, v{U+r}")
                for r in range(16):
                    a(f"v_add_f32 v{U+r}, v{U+r}, v{E+r}")
                for r in range(8):
                    a(f"v_cvt_pk_bf16_f32 v{QBR+r}, v{U+2*r}, v{U+2*r+1}")
            if t == 7:
                for f in range(4):
                    a(f"ds_read_b128 {vr(KF+4*f,4)}, v{vKr} offset:{f*1024}")
        elif c == 2:
            if t == 1:
                a(f"v_mfma_f32_32x32x16_bf16 {vr(OB,16)}, {vr(KF,4)}, {vr(QBR,4)}, 0")
                a(f"v_mfma_f32_32x32x16_bf16 {vr(DEN,16)}, {vr(KF+8,4)}, {vr(QBR,4)}, 0")
            if t == 2:
                a(f"v_mfma_f32_32x32x16_bf16 {vr(OB,16)}, {vr(KF+4,4)}, {vr(QBR+4,4)}, {vr(OB,16)}")
                a(f"v_mfma_f32_32x32x16_bf16 {vr(DEN,16)}, {vr(KF+12,4)}, {vr(QBR+4,4)}, {vr(DEN,16)}")
            if t == 3:
                a(f"v_add_f32 v{vT3}, s{cEps}, v{DEN}")
                a(f"v_rcp_f32 v{vT3}, v{vT3}")
                a("s_nop 0")
                for r in range(16):
                    a(f"v_mul_f32 v{OB+r}, v{OB+r}, v{vT3}")
                for r in range(8):
                    a(f"v_cvt_pk_bf16_f32 v{QBR+r}, v{OB+2*r}, v{OB+2*r+1}")
                for u in range(2):
                    a(f"buffer_store_dwordx4 {vr(QBR+4*u,4)}, v{vSt}, s[12:15], s{sOutB} offen offset:{u*1024}")
                if 'twice' in DBG:
                    a(f"s_cmp_eq_u32 s{sC}, 4")
                    a("s_cselect_b64 vcc, 0, -1")
                else:
                    a("s_mov_b64 vcc, 0")
    HOOKS = (1, 2, 3, 4, 5, 7)
    def side_blocks():
        for t in HOOKS:
            a.label(f"k2_side_{t}")
            a(f"s_cmp_eq_u32 s{sC}, 1")
            a(f"s_cbranch_scc1 k2_side_{t}_1")
            a(f"s_cmp_eq_u32 s{sC}, 2")
            a(f"s_cbranch_scc1 k2_side_{t}_2")
            if 'twice' in DBG:
                a(f"s_cmp_eq_u32 s{sC}, 3")
                a(f"s_cbranch_scc1 k2_side_{t}_1")
                a(f"s_cmp_eq_u32 s{sC}, 4")
                a(f"s_cbranch_scc1 k2_side_{t}_2")
            side(0, t)
            a(f"s_branch k2_back_{t}")
        for c in (1, 2):
            for t in HOOKS:
                a.label(f"k2_side_{t}_{c}")
                side(c, t)
                a(f"s_branch k2_back_{t}")

    def mS(t, h):
        sb = S[(t + 1) & 1]; kn = KB[(t + 1) & 1]
        return f"v_mfma_f32_32x32x16_bf16 {vr(sb,16)}, {vr(kn+4*h,4)}, {vr(Q+4*h,4)}, {vr(C if h == 0 else sb,16)}"
    def mO(t, h):
        return f"v_smfmac_f32_32x32x32_bf16 {vr(O,16)}, {vr(VB[t&1]+4*h,4)}, {vr(S[t&1]+8*h,8)}, v{vIx}"
    def mL(t, h):
        return f"v_smfmac_f32_16x16x64_bf16 {vr(LS,4)}, {vr(SEL,4)}, {vr(S[t&1]+8*h,8)}, v{vIx}"

    def chunk(c):
        for t in range(8):
            sa = S[t & 1]
            kl = KB[t & 1]
            vl = VB[t & 1]
            P = PB[t & 1]
            ex = [f"v_exp_f32 v{sa+r}, v{sa+r}" for r in range(16)]
            cv = [f"v_cvt_pk_bf16_f32 v{P+r}, v{sa+2*r}, v{sa+2*r+1}" for r in range(8)]
            if t == 6:
                n = 4 if c is None else after(f'c{c+1}')
                a(f"s_waitcnt vmcnt({n}) lgkmcnt(0)")
                if not ('nobar' in DBG and c is None): a("s_barrier")
            else:
                a("s_waitcnt lgkmcnt(0)")
            if 'cst' in DBG and t in (0, 4):
                a(f"s_lshl_b32 s72, s{sC}, 1")
                if t == 4: a("s_add_u32 s72, s72, 1")
                a(f"v_cmp_eq_u32_e64 s[74:75], s72, v{vLane}")
                a(f"v_mov_b32 v{vCs+1}, s70")
                a("s_nop 3")
                a(f"v_cndmask_b32_e64 v{vCs}, v{vCs}, v{vCs+1}, s[74:75]")
            if 'cst' in DBG and t in (3, 7):
                a("s_memtime s[70:71]")
            a(ex[0]); a(ex[1])
            a(mO(t - 1, 1))
            if t == 6:
                a(f"s_add_u32 m0, s{sWr}, s{sM0off}")
                a(f"s_cmp_lt_u32 s{sC}, 5")
                a(f"s_cselect_b32 s6, s{sSize}, 0")
            for u in range(2):
                tt = t + 2
                a(f"ds_read_b128 {vr(kl+4*u,4)}, v{vRd if tt < 8 else vRdN} offset:{(tt & 7)*4096+u*1024}")
            for x in ex[2:5]: a(x)
            a(mL(t - 1, 1))
            if t in (6, 7):
                dma1(t - 6, 'cl')
            elif t in (0, 1):
                dma1(t + 2, 'cl')
            for x in ex[5:7]: a(x)
            a(mS(t, 0))
            for u in range(2):
                tt = t + 1
                a(f"ds_read_b128 {vr(VB[tt&1]+4*u,4)}, v{vRd if tt < 8 else vRdN} offset:{(tt & 7)*4096+2048+u*1024}")
            for x in ex[7:10]: a(x)
            a(mS(t, 1))
            for x in ex[10:13]: a(x)
            a(mO(t, 0))
            for x in ex[13:16]: a(x)
            a(mL(t, 0))
            if t in HOOKS:
                a(f"s_cbranch_vccnz k2_side_{t}")
                a.label(f"k2_back_{t}")
            if t == 7:
                a(f"""
                s_mov_b32 s{sWr}, s{sRd}
                s_mov_b32 s{sRd}, s{sRdN}
                s_add_u32 s{sRdN}, s{sRdN}, {CH}
                s_and_b32 s{sRdN}, s{sRdN}, {NCH*CH-1}
                v_mov_b32 v{vRd}, v{vRdN}
                v_add_u32 v{vRdN}, s{sRdN}, v{vSt}
                s_add_u32 s{sC}, s{sC}, 1
                """)
    if 'lst' in DBG: a('s_memtime s[52:53]')
    if 'cst' in DBG: a('s_memtime s[70:71]')
    a.label("k2_loop")
    chunk(None)
    a(f"s_cmp_lt_u32 s{sC}, 8")
    a("s_cbranch_scc1 k2_loop")
    a("s_nop 0")
    a(mO(7, 1)); a(mL(7, 1))
    if st: a('s_memtime s[54:55]')
    P = PB[0]
    a(f"""
    s_mov_b32 s{t0}, {f2u(2.0**40):#x}
    s_nop 8
    v_cmp_nle_f32 vcc, v{LS}, s{t0}
    s_cbranch_vccnz k2_fallback
    """)
    a.label("k2_fin")
    a(f"""
    v_rcp_f32 v{vTmp}, v{LS}
    s_nop 0
    """)
    for r in range(16):
        a(f"v_mul_f32 v{O+r}, v{O+r}, v{vTmp}")
    for r in range(8):
        a(f"v_cvt_pk_bf16_f32 v{P+r}, v{O+2*r}, v{O+2*r+1}")
    for u in range(2):
        a(f"buffer_store_dwordx4 {vr(P+4*u,4)}, v{vSt}, s[12:15], s{sOut} offen offset:{u*1024}")
    if st:
        a(f'''
        s_waitcnt vmcnt(0)
        s_memtime s[56:57]
        s_memrealtime s[60:61]
        s_waitcnt lgkmcnt(0)
        s_lshl_b32 s{t0}, s2, 3
        s_add_u32 s{t0}, s{t0}, s{sW}
        s_lshl_b32 s{t0}, s{t0}, 6
        s_add_u32 s{t0}, s{t0}, {65*MB}
        v_mov_b32 v20, s50
        v_mov_b32 v21, s52
        v_mov_b32 v22, s54
        v_mov_b32 v23, s56
        v_mov_b32 v24, s58
        v_mov_b32 v25, s60
        v_mov_b32 v26, s62
        v_mov_b32 v27, s64
        v_mov_b32 v28, 0
        v_mov_b32 v32, s66
        v_mov_b32 v33, s68
        buffer_store_dwordx4 v[20:23], v28, s[12:15], s{t0} offen
        buffer_store_dwordx4 v[24:27], v28, s[12:15], s{t0} offen offset:16
        buffer_store_dwordx2 v[32:33], v28, s[12:15], s{t0} offen offset:32
        s_add_u32 s{t0}, s{t0}, {2*MB}
        v_and_b32 v28, 15, v{vLane}
        v_lshlrev_b32 v28, 2, v28
        s_mov_b64 exec, 0xffff
        buffer_store_dword v{vCs}, v28, s[12:15], s{t0} offen
        ''')
    a.label(end)
    a("s_endpgm")
    side_blocks()
    a.label("k2_fallback")
    k0, v0_ = KB[0], VB[0]
    a(f"""
    s_waitcnt vmcnt(0) lgkmcnt(0)
    s_lshl_b32 s{sKv}, s{sH}, 18
    s_add_u32 s{sKv}, s{sKv}, {WS_KV}
    s_mov_b32 s{t1}, s{sKv}
    s_mov_b32 s{sC}, 0
    v_mov_b32 v{vTmp}, 0xff800000
    """)
    a.label("k2_fb1")
    for u in range(2):
        a(f"buffer_load_dwordx4 {vr(k0+4*u,4)}, v{vSt}, s[12:15], s{t1} offen offset:{u*1024}")
    a(f"""
    s_waitcnt vmcnt(0)
    v_mfma_f32_32x32x16_bf16 {vr(s0,16)}, {vr(k0,4)}, {vr(Q,4)}, 0
    v_mfma_f32_32x32x16_bf16 {vr(s0,16)}, {vr(k0+4,4)}, {vr(Q+4,4)}, {vr(s0,16)}
    s_nop 15
    """)
    for r in range(0, 16, 2):
        a(f"v_max3_f32 v{vTmp}, v{vTmp}, v{s0+r}, v{s0+r+1}")
    a(f"""
    s_add_u32 s{t1}, s{t1}, 4096
    s_add_u32 s{sC}, s{sC}, 1
    s_cmp_lt_u32 s{sC}, 64
    s_cbranch_scc1 k2_fb1
    v_mov_b32 v{vTmp2}, v{vTmp}
    s_nop 1
    v_permlane32_swap_b32 v{vTmp}, v{vTmp2}
    s_nop 1
    v_max_f32 v{vTmp}, v{vTmp}, v{vTmp2}
    """)
    for r in range(16):
        a(f"v_sub_f32 v{C+r}, 0, v{vTmp}")
    for r in range(16):
        a(f"v_mov_b32 v{O+r}, 0")
    for r in range(4):
        a(f"v_mov_b32 v{LS+r}, 0")
    a(f"""
    s_mov_b32 s{t1}, s{sKv}
    s_mov_b32 s{sC}, 0
    """)
    a.label("k2_fb2")
    for u in range(2):
        a(f"buffer_load_dwordx4 {vr(k0+4*u,4)}, v{vSt}, s[12:15], s{t1} offen offset:{u*1024}")
    for u in range(2):
        a(f"buffer_load_dwordx4 {vr(v0_+4*u,4)}, v{vSt}, s[12:15], s{t1} offen offset:{2048+u*1024}")
    a(f"""
    s_waitcnt vmcnt(0)
    v_mfma_f32_32x32x16_bf16 {vr(s0,16)}, {vr(k0,4)}, {vr(Q,4)}, {vr(C,16)}
    v_mfma_f32_32x32x16_bf16 {vr(s0,16)}, {vr(k0+4,4)}, {vr(Q+4,4)}, {vr(s0,16)}
    s_nop 15
    """)
    for r in range(16):
        a(f"v_exp_f32 v{s0+r}, v{s0+r}")
    a(f"""
    s_nop 2
    {mO(0, 0)}
    {mL(0, 0)}
    {mO(0, 1)}
    {mL(0, 1)}
    s_add_u32 s{t1}, s{t1}, 4096
    s_add_u32 s{sC}, s{sC}, 1
    s_cmp_lt_u32 s{sC}, 64
    s_nop 7
    s_cbranch_scc1 k2_fb2
    s_nop 7
    s_branch k2_fin
    """)
    return name, NV
```

```python
from asmlib import *
import os
DBG = os.environ.get('K3DBG', '')
NS = 5
PRE = int(os.environ.get('K3PRE', '2'))
SLOT = 32768
K3_THREADS = 512
K3_LDS = NS * SLOT

def gen_k3(a):
    name = "oproj_kernel"
    kernel_head(a, name)
    vLane, vSt, vTmp, vTmp2, vA, vB, vAb, vBb, vOut = 1, 2, 3, 4, 5, 6, 7, 8, 9
    F = 16
    def QF(s, i, ks): return F + s * 64 + (ks * 8 + i) * 4
    def NF(s, i, ks): return F + s * 64 + (ks * 8 + 4 + i) * 4
    ACC = 144
    def AC(qb, nb): return ACC + (qb * 2 + nb) * 16
    NV = 208
    sPart, sMt, sNt, sW, sWq, sWn = 16, 17, 18, 19, 20, 21
    sQ, sN, sI, sRd, sWr, sM0, sSize = 22, 23, 24, 25, 26, 27, 28
    t0, t1, t2, t3 = 29, 30, 31, 32
    st = 'stamp' in DBG
    end = "k3_end"
    a(f"""
    s_cmp_ge_u32 s2, 256
    s_cbranch_scc1 {end}
    {'s_memtime s[50:51]' if st else ''}
    {'s_memrealtime s[58:59]' if st else ''}
    s_load_dwordx2 s[4:5], s[0:1], 64
    s_load_dwordx2 s[8:9], s[0:1], 48
    v_and_b32 v{vLane}, 63, v0
    v_lshrrev_b32 v{vTmp}, 6, v0
    s_and_b32 s{t0}, s2, 7
    s_lshr_b32 s{t1}, s2, 3
    v_readfirstlane_b32 s{sW}, v{vTmp}
    s_lshr_b32 s{sPart}, s{t0}, 2
    s_bfe_u32 s{t2}, s{t0}, 0x10001
    s_lshl_b32 s{t2}, s{t2}, 3
    s_lshr_b32 s{t3}, s{t1}, 2
    s_add_u32 s{sMt}, s{t2}, s{t3}
    s_and_b32 s{t2}, s{t0}, 1
    s_lshl_b32 s{t2}, s{t2}, 2
    s_and_b32 s{t3}, s{t1}, 3
    s_add_u32 s{sNt}, s{t2}, s{t3}
    s_mov_b32 s6, {WS_SIZE}
    s_mov_b32 s7, 0x00020000
    s_mov_b32 s10, {2048*4096}
    s_mov_b32 s11, 0x00020000
    v_lshlrev_b32 v{vSt}, 4, v{vLane}
    s_cmp_lt_u32 s{sW}, 4
    s_cbranch_scc1 k3_compute
    """)
    a(f"""
    s_and_b32 s{sW}, s{sW}, 3
    s_lshl_b32 s{t0}, s{sMt}, 2
    s_add_u32 s{t0}, s{t0}, s{sW}
    s_lshl_b32 s{sQ}, s{t0}, 16
    s_lshl_b32 s{t0}, s{sPart}, 22
    s_add_u32 s{sQ}, s{sQ}, s{t0}
    s_add_u32 s{sQ}, s{sQ}, {WS_O}
    s_lshl_b32 s{t0}, s{sNt}, 2
    s_add_u32 s{t0}, s{t0}, s{sW}
    s_lshl_b32 s{sN}, s{t0}, 16
    s_lshl_b32 s{t0}, s{sPart}, 21
    s_add_u32 s{sN}, s{sN}, s{t0}
    s_add_u32 s{sN}, s{sN}, {WS_WO}
    s_lshl_b32 s{sM0}, s{sW}, 12
    s_mov_b32 s{sWr}, s{sM0}
    s_add_u32 s{sSize}, s{sM0}, {NS*SLOT}
    s_waitcnt lgkmcnt(0)
    """)
    def slot():
        L = [f"s_mov_b32 m0, s{sWr}", "s_nop 0"]
        L += [f"buffer_load_dwordx4 v{vSt}, s[4:7], s{sQ} offen offset:{j*1024} lds" for j in range(4)]
        L += [f"s_add_u32 m0, s{sWr}, 16384", f"s_add_u32 s{sQ}, s{sQ}, 4096"]
        L += [f"buffer_load_dwordx4 v{vSt}, s[4:7], s{sN} offen offset:{j*1024} lds" for j in range(4)]
        L += [f"s_add_u32 s{sN}, s{sN}, 4096",
              f"s_add_u32 s{sWr}, s{sWr}, {SLOT}",
              f"s_cmp_eq_u32 s{sWr}, s{sSize}",
              f"s_cselect_b32 s{sWr}, s{sM0}, s{sWr}"]
        return L
    for sl in range(PRE):
        for x in slot(): a(x)
    a(f"s_mov_b32 s{sI}, 0")
    a.label("k3_ld")
    a(f"s_waitcnt vmcnt({(PRE-1)*8})")
    a("s_barrier")
    for x in slot(): a(x)
    a(f"""
    s_add_u32 s{sI}, s{sI}, 1
    s_cmp_lt_u32 s{sI}, {16-PRE}
    s_cbranch_scc1 k3_ld
    """)
    for j in range(PRE):
        a(f"s_waitcnt vmcnt({(PRE-1-j)*8})")
        a("s_barrier")
    a("s_endpgm")
    a.label("k3_compute")
    a(f"""
    s_and_b32 s{sWq}, s{sW}, 1
    s_lshr_b32 s{sWn}, s{sW}, 1
    s_lshl_b32 s{t0}, s{sWq}, 13
    s_lshl_b32 s{t1}, s{sWn}, 13
    s_add_u32 s{t1}, s{t1}, 16384
    v_lshrrev_b32 v{vTmp}, 4, v{vLane}
    v_and_b32 v{vTmp2}, 15, v{vLane}
    v_lshlrev_b32 v{vOut}, 9, v{vTmp}
    v_lshl_add_u32 v{vOut}, v{vTmp2}, 4, v{vOut}
    v_add_u32 v{vAb}, s{t0}, v{vOut}
    v_add_u32 v{vBb}, s{t1}, v{vOut}
    v_mov_b32 v{vA}, v{vAb}
    v_mov_b32 v{vB}, v{vBb}
    s_mov_b32 s{sI}, 0
    s_mov_b32 s{sRd}, 0
    """)
    a(f"""
    v_lshlrev_b32 v{vOut}, 12, v{vTmp2}
    v_lshl_add_u32 v{vOut}, v{vTmp}, 4, v{vOut}
    s_lshl_b32 s{t0}, s{sMt}, 7
    s_lshl_b32 s{t1}, s{sWq}, 6
    s_add_u32 s{t0}, s{t0}, s{t1}
    s_lshl_b32 s{t0}, s{t0}, 12
    s_lshl_b32 s{t1}, s{sPart}, 11
    s_add_u32 s{t0}, s{t0}, s{t1}
    s_lshl_b32 s{t1}, s{sNt}, 8
    s_add_u32 s{t0}, s{t0}, s{t1}
    s_lshl_b32 s{t1}, s{sWn}, 7
    s_add_u32 s{t0}, s{t0}, s{t1}
    s_add_u32 s{t1}, s{t0}, {16*4096}
    s_add_u32 s{t2}, s{t0}, {32*4096}
    s_add_u32 s{t3}, s{t0}, {48*4096}
    """)
    for r in range(64):
        a(f"v_mov_b32 v{ACC+r}, 0")
    def reads(s):
        L = []
        for ks in range(2):
            for i in range(4):
                L.append(f"ds_read_b128 {vr(QF(s,i,ks),4)}, v{vA} offset:{(i>>1)*4096+ks*2048+(i&1)*256}")
                L.append(f"ds_read_b128 {vr(NF(s,i,ks),4)}, v{vB} offset:{(i>>1)*4096+ks*2048+(i&1)*256}")
        return L
    def mfmas(s):
        L = []
        for ks in range(2):
            for qi in range(4):
                for ni in range(4):
                    d = AC(qi >> 1, ni >> 1) + (qi & 1) * 8 + (ni & 1) * 4
                    L.append(f"v_mfma_f32_16x16x32_bf16 {vr(d,4)}, {vr(NF(s,ni,ks),4)}, {vr(QF(s,qi,ks),4)}, {vr(d,4)}")
        return L
    def advance():
        return [
            f"s_add_u32 s{sRd}, s{sRd}, {SLOT}",
            f"s_cmp_eq_u32 s{sRd}, {SLOT*NS}",
            f"s_cselect_b32 s{sRd}, 0, s{sRd}",
            f"v_add_u32 v{vA}, s{sRd}, v{vAb}",
            f"v_add_u32 v{vB}, s{sRd}, v{vBb}",
        ]
    a(f"""
    s_waitcnt lgkmcnt(0)
    s_barrier
    {'s_memtime s[52:53]' if st else ''}
    """)
    for r in reads(0): a(r)
    for x in advance(): a(x)
    def iteration(cur):
        M = mfmas(cur); R = reads(1 - cur)
        a(f"s_waitcnt lgkmcnt(0)")
        a("s_barrier")
        ri = 0
        for m in range(32):
            a(M[m])
            if ri < 16:
                a(R[ri]); ri += 1
            if m == 20:
                for x in advance(): a(x)
                a(f"s_add_u32 s{sI}, s{sI}, 1")
    a.label("k3_loop")
    iteration(0)
    iteration(1)
    a(f"s_cmp_lt_u32 s{sI}, 14")
    a("s_cbranch_scc1 k3_loop")
    iteration(0)
    a("s_waitcnt lgkmcnt(0)")
    for m in mfmas(1): a(m)
    if st: a('s_memtime s[54:55]')
    T = F
    ti = 0
    for qb in range(2):
        for nb in range(2):
            b = AC(qb, nb)
            if qb == 1 and nb == 0: a("s_nop 3")
            for r in range(8):
                a(f"v_cvt_pk_bf16_f32 v{T+ti+r}, v{b+2*r}, v{b+2*r+1}")
            for p in range(2):
                a(f"buffer_store_dwordx4 {vr(T+ti+4*p,4)}, v{vOut}, s[8:11], s{(t0,t1,t2,t3)[qb*2+p]} offen offset:{nb*64}")
            ti += 8
    if st:
        a(f'''
        s_waitcnt vmcnt(0)
        s_memtime s[56:57]
        s_memrealtime s[60:61]
        s_waitcnt lgkmcnt(0)
        s_lshl_b32 s{t0}, s2, 3
        s_add_u32 s{t0}, s{t0}, s{sW}
        s_lshl_b32 s{t0}, s{t0}, 6
        s_add_u32 s{t0}, s{t0}, {66*MB}
        v_mov_b32 v20, s50
        v_mov_b32 v21, s52
        v_mov_b32 v22, s54
        v_mov_b32 v23, s56
        v_mov_b32 v24, s58
        v_mov_b32 v25, s60
        v_mov_b32 v26, 0
        v_mov_b32 v27, 0
        v_mov_b32 v28, 0
        buffer_store_dwordx4 v[20:23], v28, s[4:7], s{t0} offen
        buffer_store_dwordx4 v[24:27], v28, s[4:7], s{t0} offen offset:16
        ''')
    a.label(end)
    a("s_endpgm")
    return name, NV
```

```python
from asmlib import *
import struct

def f2u(x):
    return struct.unpack("<I", struct.pack("<f", x))[0]

LOG2E = 1.4426950408889634
QSCALE = (32 ** -0.5) * LOG2E

XSLOT = 32768
NXS = 3
WBASE = XSLOT * NXS
WSLOT = 12288
NWS = 5
K1_LDS = WBASE + WSLOT * NWS

import os
DBG = os.environ.get('K1DBG', '')
PFP = int(os.environ.get('PFP', '5'))
PFT = int(os.environ.get('PFT', '1'))
PFDELAY = int(os.environ.get('PFDELAY', '0'))
PFC = int(os.environ.get('PFC', '3'))
PFCI = int(os.environ.get('PFCI', '25'))
PHASE = [int(x) for x in os.environ.get('K1PHASE', '1,2').split(',') if x]
PF3POS = int(os.environ.get('PF3POS', '2'))
DIST = int(os.environ.get('K1DIST', '4'))
MAP = int(os.environ.get('K1MAP', '1'))
CPOS = int(os.environ.get('K1CPOS', '1'))
PFS = int(os.environ.get('PFS', '2'))
SPREAD = int(os.environ.get('K1SPREAD', '1'))
QORD = int(os.environ.get('K1QORD', '1'))
ROT = int(os.environ.get('K1ROT', '0'))
def gen_k1(a):
    name = "qkv_kernel"
    kernel_head(a, name)
    vLane, vTmp, vTmp2 = 1, 2, 3
    vLd = 4
    vXb0, vLd2, vWb = 5, 6, 7
    vXa0, vXa1, vWa = 8, 9, 10
    vSt = 11
    vPfA, vPfB, vPfD = 12, 13, 14
    sPf, sPfInc = 37, 38
    F = 16
    def XF(s, mb, tb): return F + s * 40 + (mb * 2 + tb) * 4
    def WF(s, t, db): return F + s * 40 + 16 + (t * 2 + db) * 4
    ACC = 96
    def AC(mb, t): return ACC + (mb * 3 + t) * 16
    NV = 192
    sLd = 4
    sWS = 12
    sSo = 62
    sXr, sXw, sM0off2 = 16, 17, 18
    sInc, sRd, sWr, sM0off, sI, sSize = 20, 21, 22, 23, 24, 25
    sPart, sMt, sNt, sW, sWm, sWn, sH = 26, 27, 28, 29, 30, 31, 32
    t0, t1, t2, t3 = 33, 34, 35, 36
    end = "k1_end"
    sStep, sHalf, sA, sB, sAdv = 40, 41, 42, 43, 39
    ST = 'stamp' in DBG
    MAPC = "s_mov_b32 s3, s2"
    if MAP:
        MAPC = f'''s_and_b32 s{t0}, s2, 1
        s_xor_b32 s{t0}, s{t0}, {MAP & 1}
        s_lshl_b32 s{t0}, s{t0}, 2
        s_bfe_u32 s{t1}, s2, 0x10002
        s_and_b32 s3, s2, 2
        s_or_b32 s3, s3, s{t0}
        s_or_b32 s3, s3, s{t1}'''
    a(f"""
    s_cmp_ge_u32 s2, 256
    s_cbranch_scc1 {end}
    {'s_memtime s[50:51]' if ST else ''}
    {'s_memrealtime s[58:59]' if ST else ''}
    s_load_dwordx4 s[80:83], s[0:1], 0
    s_load_dwordx4 s[84:87], s[0:1], 24
    s_load_dwordx2 s[12:13], s[0:1], 64
    v_lshrrev_b32 v{vTmp}, 6, v0
    v_and_b32 v{vLane}, 63, v0
    {MAPC}
    s_and_b32 s{t0}, s3, 7
    s_lshr_b32 s{t1}, s2, 3
    v_readfirstlane_b32 s{sW}, v{vTmp}
    s_lshr_b32 s{sPart}, s{t0}, 2
    s_bfe_u32 s{t2}, s{t0}, 0x10001
    s_lshl_b32 s{t2}, s{t2}, 2
    s_lshr_b32 s{t3}, s{t1}, 3
    s_add_u32 s{sMt}, s{t2}, s{t3}
    s_and_b32 s{t2}, s{t0}, 1
    s_lshl_b32 s{t2}, s{t2}, 3
    s_and_b32 s{t3}, s{t1}, 7
    s_add_u32 s{sNt}, s{t2}, s{t3}
    s_and_b32 s{sWm}, s{sW}, 3
    s_lshr_b32 s{sWn}, s{sW}, 2
    s_mov_b32 s7, 0x00020000
    s_cmp_lg_u32 s{sW}, 7
    s_cbranch_scc1 k1_ld_setup
    s_getpc_b64 s[44:45]
    k1_pc:
    s_sub_u32 s44, s44, k1_pc-qkv_kernel
    s_subb_u32 s45, s45, 0
    v_lshlrev_b32 v{vPfD}, 7, v{vLane}
    global_load_dword v15, v{vPfD}, s[44:45]
    v_add_u32 v{vTmp}, 8192, v{vPfD}
    v_min_u32 v{vTmp}, text_end-qkv_kernel-4, v{vTmp}
    global_load_dword v15, v{vTmp}, s[44:45]
    s_branch k1_pf_setup
    k1_ld_setup:
    s_lshl_b32 s{t0}, s{sMt}, 19
    s_lshl_b32 s{t1}, s{sW}, 17
    s_add_u32 s{t0}, s{t0}, s{t1}
    s_lshl_b32 s{t1}, s{sNt}, 7
    s_lshl_b32 s{t2}, s{sWm}, 11
    s_add_u32 s{t1}, s{t1}, s{t2}
    s_lshl_b32 s{t2}, s{sW}, 13
    s_lshl_b32 s{t3}, s{sWm}, 12
    s_add_u32 s{t3}, s{t3}, {WBASE}
    s_cmp_lt_u32 s{sW}, 4
    s_cselect_b32 s{sSo}, s{t0}, s{t1}
    s_cselect_b32 s{sM0off}, s{t2}, s{t3}
    s_cselect_b32 s{t0}, 1, 3
    s_cselect_b32 s{sB}, 4, 3
    s_cselect_b32 s{sAdv}, 1, 3072
    s_cselect_b32 s{sSize}, 2, 3
    s_cselect_b32 s{t1}, 3, 1
    s_cselect_b32 s{t2}, 0, 2
    s_cselect_b32 s{t3}, 64, 32
    s_lshl_b32 s{sStep}, s{t0}, 14
    s_sub_u32 s{sStep}, s{sStep}, 1024
    s_lshl_b32 s{sHalf}, s{t0}, 16
    s_lshl_b32 s{sA}, s{t0}, 12
    s_lshl_b32 s{sB}, s{sB}, 13
    s_lshl_b32 s{sAdv}, s{sAdv}, 7
    s_lshl_b32 s{sSize}, s{sSize}, 21
    s_lshl_b32 s{t0}, s{t0}, 11
    v_lshrrev_b32 v{vTmp}, 3, v{vLane}
    v_mul_u32_u24 v{vLd}, s{t0}, v{vTmp}
    v_lshrrev_b32 v{vTmp}, 4, v{vLane}
    v_and_b32 v{vTmp}, s{t1}, v{vTmp}
    v_lshlrev_b32 v{vTmp}, s{t2}, v{vTmp}
    v_and_b32 v{vTmp2}, 7, v{vLane}
    v_xor_b32 v{vTmp}, v{vTmp}, v{vTmp2}
    v_lshlrev_b32 v{vTmp}, 4, v{vTmp}
    v_add_u32 v{vLd}, v{vLd}, v{vTmp}
    v_xor_b32 v{vLd2}, s{t3}, v{vLd}
    s_add_u32 s{sSo+1}, s{sSo}, s{sStep}
    s_add_u32 s{sSo+2}, s{sSo+1}, s{sStep}
    s_add_u32 s{sSo+3}, s{sSo+2}, s{sStep}
    s_add_u32 s{sSo+4}, s{sSo}, s{sHalf}
    s_add_u32 s{sSo+5}, s{sSo+1}, s{sHalf}
    s_add_u32 s{sSo+6}, s{sSo+2}, s{sHalf}
    s_add_u32 s{sSo+7}, s{sSo+3}, s{sHalf}
    s_mov_b32 s6, s{sSize}
    s_mov_b32 m0, s{sM0off}
    {'s_memtime s[70:71]' if ST else ''}
    s_waitcnt lgkmcnt(0)
    {'s_memtime s[72:73]' if ST else ''}
    s_cmp_eq_u32 s{sPart}, 0
    s_cselect_b32 s80, s80, s84
    s_cselect_b32 s81, s81, s85
    s_cselect_b32 s82, s82, s86
    s_cselect_b32 s83, s83, s87
    s_cmp_lt_u32 s{sW}, 4
    s_cselect_b32 s4, s80, s82
    s_cselect_b32 s5, s81, s83
    """)

    def dma(role, half=0):
        L = []
        if role == 2:
            return L
        for j in range(4):
            L.append(f"buffer_load_dwordx4 v{vLd2 if j & 1 else vLd}, s[4:7], s{sSo+4*half+j} offen offset:{j*1024} lds")
        if half:
            L.append(f"v_add_u32 v{vLd}, s{sAdv}, v{vLd}")
            L.append(f"v_add_u32 v{vLd2}, s{sAdv}, v{vLd2}")
        return L

    def common():
        a(f"""
        s_lshl_b32 s{sH}, s{sNt}, 1
        s_add_u32 s{sH}, s{sH}, s{sWn}
        s_mov_b32 s14, {WS_SIZE}
        s_mov_b32 s15, 0x00020000
        v_lshlrev_b32 v{vSt}, 4, v{vLane}
        """)
        a(f"""
        v_and_b32 v{vTmp}, 15, v{vLane}
        s_lshl_b32 s{t0}, s{sWm}, 13
        v_lshlrev_b32 v{vTmp}, 7, v{vTmp}
        v_add_u32 v{vTmp}, s{t0}, v{vTmp}
        v_lshrrev_b32 v{vTmp2}, 4, v{vLane}
        v_bfe_u32 v{vXb0}, v{vLane}, 1, 3
        v_xor_b32 v{vTmp2}, v{vTmp2}, v{vXb0}
        v_lshlrev_b32 v{vTmp2}, 4, v{vTmp2}
        v_add_u32 v{vXb0}, v{vTmp}, v{vTmp2}
        """)
        a(f"""
        v_lshrrev_b32 v{vTmp}, 4, v{vLane}
        v_lshlrev_b32 v{vWb}, 10, v{vTmp}
        v_bfe_u32 v{vTmp}, v{vLane}, 2, 2
        v_lshlrev_b32 v{vTmp}, 7, v{vTmp}
        v_add_u32 v{vWb}, v{vWb}, v{vTmp}
        v_bfe_u32 v{vTmp}, v{vLane}, 3, 1
        v_xor_b32 v{vTmp}, s{sWn}, v{vTmp}
        v_lshlrev_b32 v{vTmp}, 6, v{vTmp}
        v_add_u32 v{vWb}, v{vWb}, v{vTmp}
        v_bfe_u32 v{vTmp}, v{vLane}, 4, 1
        v_lshlrev_b32 v{vTmp}, 5, v{vTmp}
        v_add_u32 v{vWb}, v{vWb}, v{vTmp}
        v_and_b32 v{vTmp}, 3, v{vLane}
        v_lshlrev_b32 v{vTmp}, 3, v{vTmp}
        v_add_u32 v{vWb}, v{vWb}, v{vTmp}
        v_add_u32 v{vWb}, {WBASE}, v{vWb}
        """)
        for r in range(96):
            a(f"v_mov_b32 v{ACC + r}, 0")
        a(f"""
        s_add_u32 s{sM0off2}, s{sM0off}, 4096
        s_mov_b32 s{sRd}, 0
        s_mov_b32 s{sI}, 0
        s_mov_b32 s{sXr}, 0
        s_mov_b32 s{sXw}, {(DIST // 2)*XSLOT}
        s_mov_b32 s{sWr}, {(DIST % NWS)*WSLOT}
        v_mov_b32 v{vXa0}, v{vXb0}
        v_mov_b32 v{vWa}, v{vWb}
        v_xor_b32 v{vXa1}, 32, v{vWb}
        """)

    for g in range(DIST):
        for d in dma(0, g & 1): a(d)
        if g < DIST - 1:
            if g & 1:
                a(f"s_add_u32 s48, s{sM0off}, s{sB}" if g == 1 else f"s_add_u32 s48, s48, s{sB}")
                a(f"s_mov_b32 m0, s48")
            else:
                a(f"s_add_u32 m0, m0, s{sA}")
            if g == CPOS: common()
            a("s_barrier" if g in PHASE else "s_nop 0")
    if ST: a('s_memtime s[74:75]')
    a("s_mov_b32 s47, 0")
    a("s_branch k1_common")

    a.label("k1_pf_setup")
    a(f"""
    v_and_b32 v{vTmp}, 31, v{vLane}
    v_lshlrev_b32 v{vPfA}, 11, v{vTmp}
    v_lshrrev_b32 v{vTmp}, 5, v{vLane}
    v_lshlrev_b32 v{vTmp}, 10, v{vTmp}
    v_add_u32 v{vPfA}, v{vPfA}, v{vTmp}
    s_bfe_u32 s{t0}, s3, 0x10001
    s_lshl_b32 s{t0}, s{t0}, 21
    s_lshr_b32 s{t1}, s2, 3
    s_lshl_b32 s{t2}, s{t1}, 16
    s_add_u32 s{sPf}, s{t0}, s{t2}
    v_lshlrev_b32 v{vPfB}, 11, v{vLane}
    v_min_u32 v{vTmp}, 31, v{vLane}
    v_add_u32 v{vTmp}, 64, v{vTmp}
    v_lshlrev_b32 v{vTmp2}, 11, v{vTmp}
    s_mul_i32 s{sPfInc}, s{t1}, {96*2048}
    s_and_b32 s{t0}, s3, 1
    s_lshl_b32 s{t0}, s{t0}, 10
    s_add_u32 s{sPfInc}, s{sPfInc}, s{t0}
    s_mov_b32 s6, {2048*2048}
    s_mov_b32 s10, {1024*6144}
    s_mov_b32 s11, 0x00020000
    s_mov_b32 s47, 1
    s_waitcnt lgkmcnt(0)
    s_cmp_eq_u32 s{sPart}, 0
    s_cselect_b32 s4, s80, s84
    s_cselect_b32 s5, s81, s85
    s_cselect_b32 s8, s82, s86
    s_cselect_b32 s9, s83, s87
    s_sub_u32 s{t0}, {3*128}, s4
    s_and_b32 s{t0}, s{t0}, {7*128}
    s_add_u32 s{sPf}, s{sPf}, s{t0}
    s_sub_u32 s{t0}, {3*128}, s8
    s_and_b32 s{t0}, s{t0}, {7*128}
    s_add_u32 s{sPfInc}, s{sPfInc}, s{t0}
    {'s_memtime s[70:71]' if ST else ''}
    {'s_memtime s[72:73]' if ST else ''}
    {'s_memtime s[74:75]' if ST else ''}
    """)
    a(f"v_mov_b32 v{vLd}, v{vTmp2}")
    a(f"s_mov_b32 s{sM0off}, 0")
    common()
    for ph in range(len(PHASE) + 1):
        if ph == PF3POS:
            if PFDELAY: a(f"s_sleep {PFDELAY}")
            a(f"""
            buffer_load_dword v15, v{vPfB}, s[8:11], s{sPfInc} offen
            buffer_load_dword v15, v{vLd}, s[8:11], s{sPfInc} offen
            buffer_load_dword v15, v{vPfA}, s[4:7], s{sPf} offen
            """)
        if ph < len(PHASE): a("s_barrier")

    a.label("k1_common")
    a(f"""
    s_cmp_eq_u32 s47, 1
    s_cbranch_scc0 k1_sel_ld
    s_cmp_eq_u32 s{sPart}, 0
    s_cbranch_scc1 k1_main_0_2
    s_branch k1_main_1_2
    """)
    a.label("k1_sel_ld")
    a(f"""
    s_cmp_eq_u32 s{sPart}, 0
    s_cbranch_scc1 k1_sel_0
    s_cmp_lt_u32 s{sW}, 4
    s_cbranch_scc1 k1_main_1_0
    s_branch k1_main_1_1
    """)
    a.label("k1_sel_0")
    a(f"""
    s_cmp_ge_u32 s{sW}, 4
    s_cbranch_scc1 k1_main_0_1
    """)

    vWa1 = vXa1
    def reads(s):
        L = []
        for i in range(4):
            L.append(f"ds_read_b128 {vr(XF(s,i>>1,i&1),4)}, v{vXa0} offset:{i*2048}")
        for t in range(3):
            for db in range(2):
                for rd in range(2):
                    L.append(f"ds_read_b64_tr_b16 {vr(WF(s,t,db)+2*rd,2)}, v{vWa1 if db else vWa} offset:{t*4096+rd*512}")
        return L

    def mfmas(part, s):
        L = []
        for t in range(3):
            for db in range(2):
                for mb in range(2):
                    for tb in range(2):
                        wfirst = (t == 0) or (t == 1 and part == 0)
                        if wfirst:
                            A, B, D = WF(s,t,db), XF(s,mb,tb), AC(mb,t) + tb * 8 + db * 4
                        else:
                            A, B, D = XF(s,mb,tb), WF(s,t,db), AC(mb,t) + db * 8 + tb * 4
                        L.append(f"v_mfma_f32_16x16x32_bf16 {vr(D,4)}, {vr(A,4)}, {vr(B,4)}, {vr(D,4)}")
        return L

    def advance(next_even):
        L = [
            f"s_add_u32 s{sRd}, s{sRd}, {WSLOT}",
            f"s_cmp_eq_u32 s{sRd}, {WSLOT*NWS}",
            f"s_cselect_b32 s{sRd}, 0, s{sRd}",
            f"v_add_u32 v{vWa}, s{sRd}, v{vWb}",
            f"v_xor_b32 v{vWa1}, 32, v{vWa}",
        ]
        if next_even:
            L += [f"v_xor_b32 v{vXa0}, 64, v{vXa0}"]
        else:
            L += [
                f"s_add_u32 s{sXr}, s{sXr}, {XSLOT}",
                f"s_cmp_eq_u32 s{sXr}, {XSLOT*NXS}",
                f"s_cselect_b32 s{sXr}, 0, s{sXr}",
                f"v_add_u32 v{vXa0}, s{sXr}, v{vXb0}",
            ]
        return L

    RPM = int(os.environ.get('K1RPM', '1'))
    PREM = int(os.environ.get('K1PREM', '0'))
    def iteration(part, role, cur):
        M = mfmas(part, cur)
        R = reads(1 - cur)
        half = (cur + DIST) & 1
        D = dma(role, half)
        wv = ""
        if role == 0 and cur == 1: wv = f"vmcnt({4*(DIST-3)})"
        if role == 1: wv = f"vmcnt({4*(DIST-2)})"
        if PREM:
            a("s_waitcnt lgkmcnt(0)")
            for m in range(PREM): a(M[m])
            if wv: a(f"s_waitcnt {wv}")
        else:
            a(f"s_waitcnt {wv} lgkmcnt(0)")
        a("s_barrier")
        dm = [d for d in D if d.startswith('buffer')]
        dv = [d for d in D if not d.startswith('buffer')]
        pos = (2, 8, 14, 20) if role == 0 else (5, 11, 17, 22)
        pos = [max(p, PREM + 1) for p in pos]
        ri = 0
        for m in range(PREM, 24):
            a(M[m])
            if m == PREM:
                if role == 0:
                    a(f"s_add_u32 m0, s{sXw}, s{sM0off2 if half else sM0off}")
                    if half:
                        a(f"s_add_u32 s{sXw}, s{sXw}, {XSLOT}")
                        a(f"s_cmp_eq_u32 s{sXw}, {XSLOT*NXS}")
                        a(f"s_cselect_b32 s{sXw}, 0, s{sXw}")
                elif role == 1:
                    a(f"s_add_u32 m0, s{sWr}, s{sM0off}")
                    a(f"s_add_u32 s{sWr}, s{sWr}, {WSLOT}")
                    a(f"s_cmp_eq_u32 s{sWr}, {WSLOT*NWS}")
                    a(f"s_cselect_b32 s{sWr}, 0, s{sWr}")
                if role < 2:
                    a(f"s_cmp_lt_u32 s{sI}, {32-DIST}")
                    a(f"s_cselect_b32 s6, s{sSize}, 0")
            for _ in range(RPM):
                if ri < 16:
                    a(R[ri]); ri += 1
                    if ri == 16:
                        for x in advance(cur == 1): a(x)
                        a(f"s_add_u32 s{sI}, s{sI}, 1")
            while dm and pos[4 - len(dm)] == m:
                a(dm.pop(0))
                if not dm:
                    for d in dv: a(d)
            if role == 2 and m == 6 and cur == 1 and PFC:
                a(f"s_cmp_eq_u32 s{sI}, {PFCI}")
                a(f"s_cbranch_scc1 k1_pfc_{part}")
                a.label(f"k1_pfc_back_{part}")
        assert ri == 16 and not dm

    for part in range(2):
        for role in range(3):
            a.label(f"k1_main_{part}_{role}")
            a(f"""
            {'s_memtime s[76:77]' if ST else ''}
            {[f's_waitcnt vmcnt({4*(DIST-2)})', f's_waitcnt vmcnt({4*(DIST-1)})', ''][role]}
            s_barrier
            {'s_memtime s[52:53]' if ST else ''}
            """)
            for r in reads(0): a(r)
            for x in advance(True): a(x)
            lp = f"k1_loop_{part}_{role}"
            a.label(lp)
            iteration(part, role, 0)
            iteration(part, role, 1)
            a(f"s_cmp_lt_u32 s{sI}, 30")
            a(f"s_cbranch_scc1 {lp}")
            iteration(part, role, 0)
            a("s_waitcnt lgkmcnt(0)")
            for m in mfmas(part, 1): a(m)
            if ST: a('s_memtime s[54:55]')
            a(f"s_branch k1_epi_{part}")
            if role == 2 and PFC:
                a.label(f"k1_pfc_{part}")
                for c in range(1, PFC):
                    a(f"v_add_u32 v{vTmp}, {c*8192}, v{vPfD}")
                    a(f"v_min_u32 v{vTmp}, text_end-qkv_kernel-4, v{vTmp}")
                    a(f"global_load_dword v15, v{vTmp}, s[44:45]")
                a(f"s_branch k1_pfc_back_{part}")

    a.label("k1_epi_0")
    a(f"""
    s_lshl_b32 s{t0}, s{sMt}, 3
    s_lshl_b32 s{t1}, s{sWm}, 1
    s_add_u32 s{t0}, s{t0}, s{t1}
    s_lshl_b32 s{t1}, s{sH}, 6
    s_add_u32 s{t0}, s{t0}, s{t1}
    s_lshl_b32 s{t1}, s{t0}, 11
    s_lshl_b32 s{t2}, s{t0}, 12
    s_add_u32 s{t2}, s{t2}, {WS_KV}
    s_add_u32 s{t3}, s{t2}, 4096
    s_mov_b32 s{sI}, {f2u(QSCALE):#x}
    v_lshrrev_b32 v{vTmp}, 4, v{vLane}
    v_lshlrev_b32 v{vTmp}, 9, v{vTmp}
    v_and_b32 v{vTmp2}, 15, v{vLane}
    v_lshl_add_u32 v{vSt}, v{vTmp2}, 4, v{vTmp}
    v_and_b32 v{vTmp2}, 12, v{vLane}
    v_lshl_add_u32 v{vTmp}, v{vTmp2}, 4, v{vSt}
    """)
    T = F
    ti = 0
    for mb in range(2):
        for t in range(3):
            b = AC(mb, t)
            if t == 0:
                for r in range(16):
                    a(f"v_mul_f32 v{b+r}, s{sI}, v{b+r}")
            for r in range(8):
                a(f"v_cvt_pk_bf16_f32 v{T+ti+r}, v{b+2*r}, v{b+2*r+1}")
            for u in range(2):
                if t == 0:
                    a(f"buffer_store_dwordx4 {vr(T+ti+4*u,4)}, v{vSt}, s[12:15], s{t1} offen offset:{mb*2048+u*256}")
                elif t == 1:
                    a(f"buffer_store_dwordx4 {vr(T+ti+4*u,4)}, v{vTmp}, s[12:15], s{t2 if mb == 0 else t3} offen offset:{u*64}")
                else:
                    a(f"buffer_store_dwordx4 {vr(T+ti+4*u,4)}, v{vSt}, s[12:15], s{t2 if mb == 0 else t3} offen offset:{2048+u*256}")
            ti += 8
    a(f"s_branch {'k1_stamp' if 'stamp' in DBG else end}")

    a.label("k1_epi_1")
    a(f"""
    s_lshl_b32 s{t0}, s{sMt}, 3
    s_lshl_b32 s{t1}, s{sWm}, 1
    s_add_u32 s{t0}, s{t0}, s{t1}
    s_lshl_b32 s{t1}, s{sH}, 6
    s_add_u32 s{t0}, s{t0}, s{t1}
    s_lshl_b32 s{t3}, s{t0}, 11
    s_add_u32 s{t3}, s{t3}, {WS_QB}
    s_mov_b32 s{sI}, {f2u(LOG2E):#x}
    s_mov_b32 s{t2}, {f2u(1e-6):#x}
    v_lshrrev_b32 v{vTmp}, 4, v{vLane}
    v_lshlrev_b32 v{vTmp}, 9, v{vTmp}
    v_and_b32 v{vTmp2}, 15, v{vLane}
    v_lshl_add_u32 v{vLd}, v{vTmp2}, 4, v{vTmp}
    v_and_b32 v{vTmp}, 32, v{vLane}
    v_lshl_add_u32 v{vLd2}, v{vTmp}, 5, v{vLd}
    s_waitcnt vmcnt(0)
    """)
    VF, PK, ONE, PQ = T + 16, T + 32, T + 48, T + 52
    KVA, ZA = AC(0, 1), AC(1, 1)
    def phi(b, e, dst):
        for r in range(16):
            a(f"v_mul_f32 v{e+r}, s{sI}, v{b+r}")
        for r in range(16):
            a(f"v_exp_f32_e64 v{e+r}, v{e+r} clamp")
        for r in range(16):
            a(f"v_max_f32 v{b+r}, s{t2}, v{b+r}")
        for r in range(16):
            a(f"v_add_f32 v{b+r}, v{b+r}, v{e+r}")
        for r in range(8):
            a(f"v_cvt_pk_bf16_f32 v{dst+r}, v{b+2*r}, v{b+2*r+1}")
    def phiq(mb):
        phi(AC(mb, 0), AC(mb, 2), PQ + mb * 8)
        for u in range(2):
            a(f"buffer_store_dwordx4 {vr(PQ+mb*8+4*u,4)}, v{vLd}, s[12:15], s{t3} offen offset:{mb*2048+u*256}")
    for mb in range(2):
        b = AC(mb, 2)
        for r in range(8):
            a(f"v_cvt_pk_bf16_f32 v{VF+mb*8+r}, v{b+2*r}, v{b+2*r+1}")
    for r in range(4):
        a(f"v_mov_b32 v{ONE+r}, 0x3f803f80")
    if QORD == 0:
        phiq(0); phiq(1)
    for mb in range(2):
        phi(AC(mb, 1), AC(mb, 2), PK + mb * 8)
    a("s_nop 1")
    for mb in range(2):
        z = (mb == 0)
        for dk in range(2):
            for dv in range(2):
                d = KVA + (dk * 2 + dv) * 4
                a(f"v_mfma_f32_16x16x32_bf16 {vr(d,4)}, {vr(PK+mb*8+4*dk,4)}, {vr(VF+mb*8+4*dv,4)}, {'0' if z else vr(d,4)}")
            d = ZA + dk * 4
            a(f"v_mfma_f32_16x16x32_bf16 {vr(d,4)}, {vr(PK+mb*8+4*dk,4)}, {vr(ONE,4)}, {'0' if z else vr(d,4)}")
    a(f"""
    s_barrier
    s_lshl_b32 s{t0}, s{sW}, 13
    v_add_u32 v{vTmp}, s{t0}, v{vLd2}
    s_nop 4
    """)
    for dk in range(2):
        for dv in range(2):
            a(f"ds_write_b128 v{vTmp}, {vr(KVA+(dk*2+dv)*4,4)} offset:{dk*1024+dv*256}")
    for dk in range(2):
        for dv in range(2):
            a(f"ds_write_b128 v{vTmp}, {vr(ZA+dk*4,4)} offset:{4096+dk*1024+dv*256}")
    a(f"""
    s_lshl_b32 s{t0}, s{sWn}, 15
    s_lshl_b32 s{t1}, s{sWm}, 11
    s_add_u32 s{t0}, s{t0}, s{t1}
    v_add_u32 v{vTmp}, s{t0}, v{vSt}
    """)
    if QORD == 1: phiq(0)
    a(f"""
    s_waitcnt lgkmcnt(0)
    s_barrier
    """)
    RB = T
    for j in range(4):
        for q in range(2):
            a(f"ds_read_b128 {vr(RB+(j*2+q)*4,4)}, v{vTmp} offset:{j*8192+q*1024}")
    a(f"""
    s_lshl_b32 s{t0}, s{sH}, 3
    s_add_u32 s{t0}, s{t0}, s{sMt}
    s_lshl_b32 s{t0}, s{t0}, 13
    s_add_u32 s{t0}, s{t0}, s{t1}
    s_add_u32 s{t0}, s{t0}, {WS_KVP}
    """)
    if QORD == 1: phiq(1)
    if QORD == 2: phiq(0)
    a("s_waitcnt lgkmcnt(0)")
    for r in range(8):
        a(f"v_add_f32 v{RB+r}, v{RB+r}, v{RB+8+r}")
        a(f"v_add_f32 v{RB+16+r}, v{RB+16+r}, v{RB+24+r}")
    for r in range(8):
        a(f"v_add_f32 v{RB+r}, v{RB+r}, v{RB+16+r}")
    a(f"""
    s_cmp_lt_u32 s{sWm}, 2
    s_cselect_b32 exec_lo, -1, 1
    s_cselect_b32 exec_hi, -1, 1
    """)
    assert QORD != 2
    for q in range(2):
        a(f"buffer_store_dwordx4 {vr(RB+4*q,4)}, v{vSt}, s[12:15], s{t0} offen offset:{q*1024}")
    if QORD == 2: phiq(1)
    if 'stamp' in DBG:
        a.label("k1_stamp")
        a(f'''
        s_waitcnt vmcnt(0)
        s_memtime s[56:57]
        s_memrealtime s[60:61]
        s_waitcnt lgkmcnt(0)
        s_lshl_b32 s{t0}, s2, 3
        s_add_u32 s{t0}, s{t0}, s{sW}
        s_lshl_b32 s{t0}, s{t0}, 6
        s_add_u32 s{t0}, s{t0}, {64*MB}
        v_mov_b32 v20, s50
        v_mov_b32 v21, s52
        v_mov_b32 v22, s54
        v_mov_b32 v23, s56
        v_mov_b32 v24, s58
        v_mov_b32 v25, s60
        v_mov_b32 v26, s70
        v_mov_b32 v27, s72
        v_mov_b32 v28, 0
        v_mov_b32 v30, s74
        v_mov_b32 v31, s76
        buffer_store_dwordx4 v[20:23], v28, s[12:15], s{t0} offen
        buffer_store_dwordx4 v[24:27], v28, s[12:15], s{t0} offen offset:16
        buffer_store_dwordx2 v[30:31], v28, s[12:15], s{t0} offen offset:32
        ''')
    a.label(end)
    a("s_endpgm")
    return name, NV
```

```python
from asmlib import *
import struct, os

def f2u(x):
    return struct.unpack("<I", struct.pack("<f", x))[0]

LOG2E = 1.4426950408889634
DBG = os.environ.get('K2DBG', '')
SCHED = os.environ.get('K2SCHED', 'a')
GOFF = int(os.environ.get('K2GOFF', '1'))
SV = int(os.environ.get('K2SV', '0'))

CH = 32768
NCH = 4
KVF = CH * NCH
WOST = KVF + 4096
K2_LDS = WOST + 16384

def gen_k2(a):
    name = "attn_kernel"
    kernel_head(a, name)
    vLane, vSt, vTmp, vTmp2, vRd, vRdN, vWo = 1, 2, 3, 4, 5, 6, 7
    Q = 8
    KB = [16, 24]
    VB = [32, 40]
    S = [48, 64]
    C = 80
    O = 96
    PB = [112, 120]
    LS = 128
    SEL = 132
    KP = 136
    QBR = 168
    KF = 176
    WF = 192
    vWr, vKw, vKr, vT3 = 200, 201, 202, 203
    vCs = 204
    vIx = 206
    vWs = 207
    vKp, vZl, vZw, vZr = 208, 209, 210, 211
    NV = 212
    sHk, sZ = 76, 45
    ZC = KVF + 2048
    sH, sQb, sW, sBlk = 16, 17, 18, 19
    sKv, sC, sRd, sRdN, sWr, sM0off, sSize = 20, 21, 22, 23, 24, 25, 26
    t0, t1, t2, t3 = 27, 28, 29, 30
    sOut = 31
    sWoS, sWoD, sWoD2, sWoM = 32, 34, 35, 38
    sKvp, sQB, sOutB = 39, 40, 41
    cL2E, cEps, cHi = 42, 43, 44
    end = "k2_end"
    st = 'stamp' in DBG
    vq = []
    def vm(s, tag, load=True):
        a(s); vq.append((tag, load))
    def after(tag):
        idx = max(i for i, (t, l) in enumerate(vq) if t == tag)
        return sum(1 for (t, l) in vq[idx+1:] if l)

    a(f"""
    s_cmp_ge_u32 s2, 256
    s_cbranch_scc1 {end}
    {'s_memtime s[50:51]' if st else ''}
    {'s_memrealtime s[58:59]' if st else ''}
    s_load_dwordx2 s[12:13], s[0:1], 64
    s_load_dwordx2 s[8:9], s[0:1], 16
    s_load_dwordx2 s[36:37], s[0:1], 40
    v_and_b32 v{vLane}, 63, v0
    v_lshrrev_b32 v{vTmp}, 6, v0
    s_and_b32 s{t0}, s2, 7
    s_lshr_b32 s{t1}, s2, 3
    v_readfirstlane_b32 s{sW}, v{vTmp}
    s_lshl_b32 s{sH}, s{t0}, 2
    s_lshr_b32 s{t2}, s{t1}, 3
    s_add_u32 s{sH}, s{sH}, s{t2}
    s_and_b32 s{sQb}, s{t1}, 7
    s_lshl_b32 s{sBlk}, s{sQb}, 3
    s_add_u32 s{sBlk}, s{sBlk}, s{sW}
    s_mov_b32 s14, {WS_SIZE}
    s_mov_b32 s15, 0x00020000
    s_mov_b32 s{sSize}, {WS_SIZE}
    s_mov_b32 s6, {WS_SIZE}
    s_mov_b32 s7, 0x00020000
    v_lshlrev_b32 v{vSt}, 4, v{vLane}
    s_lshl_b32 s{t0}, s{sH}, 6
    s_add_u32 s{t0}, s{t0}, s{sBlk}
    s_lshl_b32 s{t0}, s{t0}, 11
    s_add_u32 s{sQB}, s{t0}, {WS_QB}
    s_lshl_b32 s{sKv}, s{sH}, 18
    s_lshl_b32 s{sM0off}, s{sW}, 12
    s_add_u32 s{sKv}, s{sKv}, s{sM0off}
    s_add_u32 s{sKv}, s{sKv}, {WS_KV}
    s_mov_b32 m0, s{sM0off}
    s_waitcnt lgkmcnt(0)
    {'s_memtime s[62:63]' if st else ''}
    s_mov_b32 s4, s12
    s_mov_b32 s5, s13
    """)
    def dma1(j, tag):
        vm(f"buffer_load_dwordx4 v{vSt}, s[4:7], s{sKv} offen offset:{j*1024} lds", tag)
        if j == 3:
            a(f"s_add_u32 s{sKv}, s{sKv}, {CH}")
    for j in range(4): dma1(j, 'c0')
    for u in range(2):
        vm(f"buffer_load_dwordx4 {vr(Q+4*u,4)}, v{vSt}, s[12:15], s{t0} offen offset:{u*1024}", 'qa')
    if st: a('s_memtime s[64:65]')
    a(f"""
    s_add_u32 m0, s{sM0off}, {CH}
    s_lshl_b32 s{sKvp}, s{sH}, 16
    s_add_u32 s{sZ}, s{sKvp}, {WS_KVP + 4096}
    s_lshl_b32 s{t3}, s{sW}, 9
    s_add_u32 s{sKvp}, s{sKvp}, s{t3}
    s_add_u32 s{sKvp}, s{sKvp}, {WS_KVP}
    s_lshr_b32 s{sHk}, s{sW}, 2
    s_mul_i32 s{sHk}, s{sHk}, {GOFF}
    s_add_u32 s{sHk+1}, s{sHk}, 1
    s_add_u32 s{sHk+2}, s{sHk}, 2
    s_add_u32 s{sHk+3}, s{sHk}, 3
    s_add_u32 s{sHk+4}, s{sHk}, 4
    s_add_u32 s{sHk+5}, s{sHk}, 5
    s_lshl_b32 s{sOut}, s{sBlk}, 5
    s_add_u32 s{sOut}, s{sOut}, s{sH}
    s_lshl_b32 s{sOut}, s{sOut}, 11
    s_add_u32 s{sOut}, s{sOut}, {WS_O}
    s_add_u32 s{sOutB}, s{sOut}, {4*MB}
    s_cmp_lt_u32 s2, 128
    s_cselect_b32 s8, s8, s36
    s_cselect_b32 s9, s9, s37
    s_mov_b32 s10, {2*MB}
    s_mov_b32 s11, 0x00020000
    s_bfe_u32 s{t0}, s2, 0x40003
    s_lshl_b32 s{t0}, s{t0}, 2
    s_lshr_b32 s{t1}, s{sW}, 1
    s_add_u32 s{t0}, s{t0}, s{t1}
    s_and_b32 s{t1}, s2, 7
    s_lshl_b32 s{t1}, s{t1}, 1
    s_and_b32 s{t2}, s{sW}, 1
    s_add_u32 s{t1}, s{t1}, s{t2}
    s_lshl_b32 s{sWoS}, s{t0}, 15
    s_lshl_b32 s{t2}, s{t1}, 7
    s_add_u32 s{sWoS}, s{sWoS}, s{t2}
    s_add_u32 s{sWoS+1}, s{sWoS}, {16384-1024}
    s_lshr_b32 s{t2}, s2, 7
    s_lshl_b32 s{sWoD}, s{t2}, 21
    s_lshl_b32 s{t2}, s{t1}, 17
    s_add_u32 s{sWoD}, s{sWoD}, s{t2}
    s_lshl_b32 s{t2}, s{t0}, 10
    s_add_u32 s{sWoD}, s{sWoD}, s{t2}
    s_add_u32 s{sWoD}, s{sWoD}, {WS_WO}
    s_add_u32 s{sWoD2}, s{sWoD}, 65536
    s_lshl_b32 s{sWoM}, s{sW}, 11
    s_add_u32 s{sWoM}, s{sWoM}, {WOST}
    v_lshrrev_b32 v{vTmp}, 3, v{vLane}
    v_lshlrev_b32 v{vTmp}, 11, v{vTmp}
    v_and_b32 v{vTmp2}, 7, v{vLane}
    v_lshlrev_b32 v{vTmp2}, 4, v{vTmp2}
    v_add_u32 v{vWo}, v{vTmp}, v{vTmp2}
    v_lshrrev_b32 v{vTmp}, 5, v{vLane}
    v_lshlrev_b32 v{vWr}, 9, v{vTmp}
    v_bfe_u32 v{vTmp}, v{vLane}, 2, 2
    v_lshlrev_b32 v{vTmp}, 7, v{vTmp}
    v_add_u32 v{vWr}, v{vWr}, v{vTmp}
    v_bfe_u32 v{vTmp}, v{vLane}, 4, 1
    v_lshlrev_b32 v{vTmp}, 5, v{vTmp}
    v_add_u32 v{vWr}, v{vWr}, v{vTmp}
    v_and_b32 v{vTmp}, 3, v{vLane}
    v_lshlrev_b32 v{vTmp}, 3, v{vTmp}
    v_add_u32 v{vWr}, v{vWr}, v{vTmp}
    v_add_u32 v{vWr}, s{sWoM}, v{vWr}
    v_bfe_u32 v{vTmp2}, v{vLane}, 2, 1
    v_cmp_eq_u32 vcc, 0, v{vTmp2}
    v_mov_b32 v{vTmp}, 0x3f803f80
    s_lshr_b32 s{t0}, s{sW}, 2
    s_lshl_b32 s{t0}, s{t0}, 10
    v_cndmask_b32 v{SEL}, 0, v{vTmp}, vcc
    s_and_b32 s{t1}, s{sW}, 1
    s_lshl_b32 s{t1}, s{t1}, 9
    s_add_u32 s{t0}, s{t0}, s{t1}
    s_and_b32 s{t1}, s{sW}, 2
    s_lshl_b32 s{t1}, s{t1}, 2
    s_add_u32 s{t0}, s{t0}, s{t1}
    s_add_u32 s{t0}, s{t0}, {KVF}
    v_mov_b32 v{SEL+1}, v{SEL}
    v_xor_b32 v{SEL+2}, v{SEL}, v{vTmp}
    v_xor_b32 v{SEL+3}, v{SEL}, v{vTmp}
    v_and_b32 v{vWs}, 0x23, v{vLane}
    v_lshl_add_u32 v{vWs}, v{vTmp2}, 4, v{vWs}
    v_bfe_u32 v{vTmp2}, v{vLane}, 3, 2
    v_lshl_add_u32 v{vWs}, v{vTmp2}, 2, v{vWs}
    v_lshlrev_b32 v{vWs}, 4, v{vWs}
    v_and_b32 v{vTmp}, 0x1f0, v{vSt}
    v_lshrrev_b32 v{vTmp2}, 5, v{vLane}
    v_lshl_add_u32 v{vKp}, v{vTmp2}, 13, v{vTmp}
    v_lshl_add_u32 v{vKw}, v{vTmp2}, 2, v{vTmp}
    v_add_u32 v{vKw}, s{t0}, v{vKw}
    v_lshlrev_b32 v{vZr}, 4, v{vTmp2}
    v_add_u32 v{vZr}, {ZC}, v{vZr}
    v_lshlrev_b32 v{vZw}, 5, v{vTmp2}
    v_bfe_u32 v{vTmp}, v{vLane}, 3, 1
    v_lshl_add_u32 v{vZw}, v{vTmp}, 4, v{vZw}
    v_bfe_u32 v{vTmp}, v{vLane}, 4, 1
    v_lshl_add_u32 v{vZw}, v{vTmp}, 3, v{vZw}
    v_add_u32 v{vZw}, {ZC}, v{vZw}
    v_lshrrev_b32 v{vTmp}, 3, v{vLane}
    v_lshlrev_b32 v{vZl}, 9, v{vTmp}
    v_and_b32 v{vTmp}, 7, v{vLane}
    v_lshl_add_u32 v{vZl}, v{vTmp}, 13, v{vZl}
    v_add_u32 v{vKr}, {KVF}, v{vSt}
    s_mov_b32 s{cEps}, {f2u(1e-6):#x}
    s_mov_b32 s{sC}, 0
    s_mov_b32 s{sRd}, 0
    s_mov_b32 s{sRdN}, {CH}
    s_mov_b32 s{sWr}, {3*CH}
    v_mov_b32 v{vRd}, v{vSt}
    v_add_u32 v{vRdN}, {CH}, v{vSt}
    """)
    for r in range(16):
        a(f"v_mov_b32 v{O+r}, 0")
    for r in range(4):
        a(f"v_mov_b32 v{LS+r}, 0")
    for r in range(8):
        a(f"v_mov_b32 v{S[1]+8+r}, 0")
    for r in range(4):
        a(f"v_mov_b32 v{VB[1]+4+r}, 0")
    a(f"v_mov_b32 v{vIx}, 0xdddddddd")
    a(f"""
    {'s_memtime s[66:67]' if st else ''}
    s_waitcnt vmcnt({after('qa')})
    {'s_memtime s[68:69]' if st else ''}
    s_barrier
    {'s_memtime s[52:53]' if st else ''}
    """)
    for u in range(2):
        a(f"ds_read_b128 {vr(KB[0]+4*u,4)}, v{vSt} offset:{u*1024}")
    for u in range(2):
        a(f"ds_read_b128 {vr(KB[1]+4*u,4)}, v{vSt} offset:{4096+u*1024}")
    for u in range(2):
        a(f"ds_read_b128 {vr(VB[0]+4*u,4)}, v{vSt} offset:{2048+u*1024}")
    s0 = S[0]
    for j in range(2): dma1(j, 'c1')
    a(f"""
    s_waitcnt lgkmcnt(4)
    v_mfma_f32_32x32x16_bf16 {vr(s0,16)}, {vr(KB[0],4)}, {vr(Q,4)}, 0
    v_mfma_f32_32x32x16_bf16 {vr(s0,16)}, {vr(KB[0]+4,4)}, {vr(Q+4,4)}, {vr(s0,16)}
    """)
    for j in range(2, 4): dma1(j, 'c1')
    a(f"""
    s_add_u32 m0, s{sM0off}, {2*CH}
    s_nop 8
    """)
    a(f"v_max3_f32 v{vTmp}, v{s0}, v{s0+1}, v{s0+2}")
    a(f"v_max3_f32 v{vTmp2}, v{s0+3}, v{s0+4}, v{s0+5}")
    for r in range(6, 14, 4):
        a(f"v_max3_f32 v{vTmp}, v{vTmp}, v{s0+r}, v{s0+r+1}")
        a(f"v_max3_f32 v{vTmp2}, v{vTmp2}, v{s0+r+2}, v{s0+r+3}")
    a(f"""
    v_max3_f32 v{vTmp}, v{vTmp}, v{s0+14}, v{s0+15}
    v_max_f32 v{vTmp}, v{vTmp}, v{vTmp2}
    v_mov_b32 v{vTmp2}, v{vTmp}
    s_nop 1
    v_permlane32_swap_b32 v{vTmp}, v{vTmp2}
    s_nop 1
    v_max_f32 v{vTmp}, v{vTmp}, v{vTmp2}
    """)
    for j in range(2): dma1(j, 'c2')
    for r in range(16):
        a(f"v_sub_f32 v{C+r}, 0, v{vTmp}")
    for r in range(16):
        a(f"v_sub_f32 v{s0+r}, v{s0+r}, v{vTmp}")

    OB, DEN = KP, KP + 16
    ZR = KP + 16
    def s_wo():
        a(f"s_mov_b32 m0, s{sWoM}")
        a("s_nop 0")
        a(f"buffer_load_dwordx4 v{vWo}, s[8:11], s{sWoS} offen lds")
        a(f"buffer_load_dwordx4 v{vWo}, s[8:11], s{sWoS+1} offen offset:1024 lds")
    def s_kvp(m):
        for mm in (m, m + 1):
            a(f"buffer_load_dwordx4 {vr(KP+4*mm,4)}, v{vKp}, s[12:15], s{sKvp} offen")
            a(f"s_add_u32 s{sKvp}, s{sKvp}, 16384")
    def s_pq():
        for u in range(2):
            a(f"buffer_load_dwordx4 {vr(QBR+4*u,4)}, v{vSt}, s[12:15], s{sQB} offen offset:{u*1024}")
    def s_zld(t):
        a(f"s_cmp_lg_u32 s{sW}, 0")
        a(f"s_cbranch_scc1 k2_back_{t}")
        a(f"buffer_load_dwordx4 {vr(ZR,4)}, v{vZl}, s[12:15], s{sZ} offen")
    def wotr(i):
        nb, rd = i >> 1, i & 1
        a(f"ds_read_b64_tr_b16 {vr(WF+4*nb+2*rd,2)}, v{vWr} offset:{nb*64+rd*1024}")
    def s_wost():
        a(f"buffer_store_dwordx4 {vr(WF,4)}, v{vWs}, s[12:15], s{sWoD} offen")
        a(f"buffer_store_dwordx4 {vr(WF+4,4)}, v{vWs}, s[12:15], s{sWoD2} offen")
    def add4(d, x):
        for r in range(4):
            a(f"v_add_f32 v{KP+4*d+r}, v{KP+4*d+r}, v{KP+4*x+r}")
    def s_red(n, t):
        a(f"s_waitcnt vmcnt({n})")
        add4(0, 1); add4(2, 3); add4(0, 2)
        wotr(0); wotr(1)
        a(f"v_permlane32_swap_b32 v{KP}, v{KP+2}")
        a(f"v_permlane32_swap_b32 v{KP+1}, v{KP+3}")
        wotr(2); wotr(3)
        a(f"v_add_f32 v{KP}, v{KP}, v{KP+2}")
        a(f"v_add_f32 v{KP+1}, v{KP+1}, v{KP+3}")
        a(f"s_cmp_lg_u32 s{sW}, 0")
        a(f"v_cvt_pk_bf16_f32 v{KP+4}, v{KP}, v{KP+1}")
        a(f"ds_write_b32 v{vKw}, v{KP+4}")
        a(f"s_cbranch_scc1 k2_back_{t}")
        for dpp in ("quad_perm:[1,0,3,2]", "quad_perm:[2,3,0,1]", "row_half_mirror"):
            for r in range(4):
                a(f"v_add_f32_dpp v{ZR+r}, v{ZR+r}, v{ZR+r} {dpp} row_mask:0xf bank_mask:0xf")
        a(f"v_cvt_pk_bf16_f32 v{ZR+4}, v{ZR}, v{ZR+1}")
        a(f"v_cvt_pk_bf16_f32 v{ZR+5}, v{ZR+2}, v{ZR+3}")
        a(f"ds_write_b64 v{vZw}, {vr(ZR+4,2)}")
    def s_kf():
        for f in range(2):
            a(f"ds_read_b128 {vr(KF+4*f,4)}, v{vKr} offset:{f*1024}")
        for f in range(2):
            a(f"ds_read_b128 {vr(KF+8+4*f,4)}, v{vZr} offset:{f*32}")
    def s_mm(h):
        a(f"v_mfma_f32_32x32x16_bf16 {vr(OB,16)}, {vr(KF+4*h,4)}, {vr(QBR+4*h,4)}, {vr(OB,16) if h else 0}")
        a(f"v_mfma_f32_32x32x16_bf16 {vr(DEN,16)}, {vr(KF+8+4*h,4)}, {vr(QBR+4*h,4)}, {vr(DEN,16) if h else 0}")
    def s_norm():
        a(f"v_add_f32 v{vT3}, s{cEps}, v{DEN}")
        a(f"v_rcp_f32 v{vT3}, v{vT3}")
        a("s_nop 0")
        for r in range(16):
            a(f"v_mul_f32 v{OB+r}, v{OB+r}, v{vT3}")
        for r in range(8):
            a(f"v_cvt_pk_bf16_f32 v{QBR+r}, v{OB+2*r}, v{OB+2*r+1}")
        for u in range(2):
            a(f"buffer_store_dwordx4 {vr(QBR+4*u,4)}, v{vSt}, s[12:15], s{sOutB} offen offset:{u*1024}")
    G = 1 if GOFF else 0
    SIDE = {
        (0, 4): [s_wo, lambda: s_kvp(0)],
        (0, 7): [lambda: s_kvp(2), s_pq, lambda: s_zld(7)],
        (2, 0): [lambda: s_red(5, 0)],
        (2+G, 6): [s_kf, s_wost],
        (3+G, 1): [lambda: s_mm(0), lambda: s_mm(1)],
        (3+G, 3): [s_norm],
    }
    HOOKS = {t: c for (c, t) in SIDE}
    assert len(HOOKS) == len(SIDE)
    def side_blocks():
        for (c, t) in sorted(SIDE):
            a.label(f"k2_side_{t}")
            for f in SIDE[(c, t)]: f()
            a(f"s_branch k2_back_{t}")

    def mS(t, h):
        sb = S[(t + 1) & 1]; kn = KB[(t + 1) & 1]
        return f"v_mfma_f32_32x32x16_bf16 {vr(sb,16)}, {vr(kn+4*h,4)}, {vr(Q+4*h,4)}, {vr(C if h == 0 else sb,16)}"
    def mO(t, h):
        return f"v_smfmac_f32_32x32x32_bf16 {vr(O,16)}, {vr(VB[t&1]+4*h,4)}, {vr(S[t&1]+8*h,8)}, v{vIx}"
    def mL(t, h):
        return f"v_smfmac_f32_16x16x64_bf16 {vr(LS,4)}, {vr(SEL,4)}, {vr(S[t&1]+8*h,8)}, v{vIx}"

    def chunk(c):
        for t in range(8):
            sa = S[t & 1]
            kl = KB[t & 1]
            vl = VB[t & 1]
            P = PB[t & 1]
            ex = [f"v_exp_f32 v{sa+r}, v{sa+r}" for r in range(16)]
            cv = [f"v_cvt_pk_bf16_f32 v{P+r}, v{sa+2*r}, v{sa+2*r+1}" for r in range(8)]
            if t == 6:
                n = 4 if c is None else after(f'c{c+1}')
                a(f"s_waitcnt vmcnt({n}) lgkmcnt(0)")
                if not ('nobar' in DBG and c is None): a("s_barrier")
            else:
                a("s_waitcnt lgkmcnt(0)")
            if 'cst' in DBG and t in (0, 4):
                a(f"s_lshl_b32 s72, s{sC}, 1")
                if t == 4: a("s_add_u32 s72, s72, 1")
                a(f"v_cmp_eq_u32_e64 s[74:75], s72, v{vLane}")
                a(f"v_mov_b32 v{vCs+1}, s70")
                a("s_nop 3")
                a(f"v_cndmask_b32_e64 v{vCs}, v{vCs}, v{vCs+1}, s[74:75]")
            if 'cst' in DBG and t in (3, 7):
                a("s_memtime s[70:71]")
            a(ex[0]); a(ex[1])
            a(mO(t - 1, 1))
            if t == 6:
                a(f"s_add_u32 m0, s{sWr}, s{sM0off}")
                a(f"s_cmp_lt_u32 s{sC}, 5")
                a(f"s_cselect_b32 s6, s{sSize}, 0")
            for u in range(2):
                tt = t + 2
                a(f"ds_read_b128 {vr(kl+4*u,4)}, v{vRd if tt < 8 else vRdN} offset:{(tt & 7)*4096+u*1024}")
            for x in ex[2:5]: a(x)
            a(mL(t - 1, 1))
            if t in (6, 7):
                dma1(t - 6, 'cl')
            elif t in (0, 1):
                dma1(t + 2, 'cl')
            for x in ex[5:7]: a(x)
            a(mS(t, 0))
            for u in range(2):
                tt = t + 1
                a(f"ds_read_b128 {vr(VB[tt&1]+4*u,4)}, v{vRd if tt < 8 else vRdN} offset:{(tt & 7)*4096+2048+u*1024}")
            for x in ex[7:10]: a(x)
            a(mS(t, 1))
            for x in ex[10:13]: a(x)
            a(mO(t, 0))
            for x in ex[13:16]: a(x)
            a(mL(t, 0))
            if t in HOOKS:
                a(f"s_cmp_eq_u32 s{sC}, s{sHk+HOOKS[t]}")
                a(f"s_cbranch_scc1 k2_side_{t}")
                a.label(f"k2_back_{t}")
            if t == 7:
                a(f"""
                s_mov_b32 s{sWr}, s{sRd}
                s_mov_b32 s{sRd}, s{sRdN}
                s_add_u32 s{sRdN}, s{sRdN}, {CH}
                s_and_b32 s{sRdN}, s{sRdN}, {NCH*CH-1}
                v_mov_b32 v{vRd}, v{vRdN}
                v_add_u32 v{vRdN}, s{sRdN}, v{vSt}
                s_add_u32 s{sC}, s{sC}, 1
                """)
    if 'lst' in DBG: a('s_memtime s[52:53]')
    if 'cst' in DBG: a('s_memtime s[70:71]')
    a.label("k2_loop")
    chunk(None)
    a(f"s_cmp_lt_u32 s{sC}, 8")
    a("s_cbranch_scc1 k2_loop")
    a("s_nop 0")
    a(mO(7, 1)); a(mL(7, 1))
    if st: a('s_memtime s[54:55]')
    P = PB[0]
    a(f"""
    s_mov_b32 s{t0}, {f2u(2.0**40):#x}
    s_nop 8
    v_cmp_nle_f32 vcc, v{LS}, s{t0}
    s_cbranch_vccnz k2_fallback
    """)
    a.label("k2_fin")
    a(f"""
    v_rcp_f32 v{vTmp}, v{LS}
    s_nop 0
    """)
    for r in range(16):
        a(f"v_mul_f32 v{O+r}, v{O+r}, v{vTmp}")
    for r in range(8):
        a(f"v_cvt_pk_bf16_f32 v{P+r}, v{O+2*r}, v{O+2*r+1}")
    for u in range(2):
        a(f"buffer_store_dwordx4 {vr(P+4*u,4)}, v{vSt}, s[12:15], s{sOut} offen offset:{u*1024}")
    if st:
        a(f'''
        s_waitcnt vmcnt(0)
        s_memtime s[56:57]
        s_memrealtime s[60:61]
        s_waitcnt lgkmcnt(0)
        s_lshl_b32 s{t0}, s2, 3
        s_add_u32 s{t0}, s{t0}, s{sW}
        s_lshl_b32 s{t0}, s{t0}, 6
        s_add_u32 s{t0}, s{t0}, {65*MB}
        v_mov_b32 v20, s50
        v_mov_b32 v21, s52
        v_mov_b32 v22, s54
        v_mov_b32 v23, s56
        v_mov_b32 v24, s58
        v_mov_b32 v25, s60
        v_mov_b32 v26, s62
        v_mov_b32 v27, s64
        v_mov_b32 v28, 0
        v_mov_b32 v32, s66
        v_mov_b32 v33, s68
        buffer_store_dwordx4 v[20:23], v28, s[12:15], s{t0} offen
        buffer_store_dwordx4 v[24:27], v28, s[12:15], s{t0} offen offset:16
        buffer_store_dwordx2 v[32:33], v28, s[12:15], s{t0} offen offset:32
        s_add_u32 s{t0}, s{t0}, {2*MB}
        v_and_b32 v28, 15, v{vLane}
        v_lshlrev_b32 v28, 2, v28
        s_mov_b64 exec, 0xffff
        buffer_store_dword v{vCs}, v28, s[12:15], s{t0} offen
        ''')
    a.label(end)
    a("s_endpgm")
    side_blocks()
    a.label("k2_fallback")
    k0, v0_ = KB[0], VB[0]
    a(f"""
    s_waitcnt vmcnt(0) lgkmcnt(0)
    s_lshl_b32 s{sKv}, s{sH}, 18
    s_add_u32 s{sKv}, s{sKv}, {WS_KV}
    s_mov_b32 s{t1}, s{sKv}
    s_mov_b32 s{sC}, 0
    v_mov_b32 v{vTmp}, 0xff800000
    """)
    a.label("k2_fb1")
    for u in range(2):
        a(f"buffer_load_dwordx4 {vr(k0+4*u,4)}, v{vSt}, s[12:15], s{t1} offen offset:{u*1024}")
    a(f"""
    s_waitcnt vmcnt(0)
    v_mfma_f32_32x32x16_bf16 {vr(s0,16)}, {vr(k0,4)}, {vr(Q,4)}, 0
    v_mfma_f32_32x32x16_bf16 {vr(s0,16)}, {vr(k0+4,4)}, {vr(Q+4,4)}, {vr(s0,16)}
    s_nop 15
    """)
    for r in range(0, 16, 2):
        a(f"v_max3_f32 v{vTmp}, v{vTmp}, v{s0+r}, v{s0+r+1}")
    a(f"""
    s_add_u32 s{t1}, s{t1}, 4096
    s_add_u32 s{sC}, s{sC}, 1
    s_cmp_lt_u32 s{sC}, 64
    s_cbranch_scc1 k2_fb1
    v_mov_b32 v{vTmp2}, v{vTmp}
    s_nop 1
    v_permlane32_swap_b32 v{vTmp}, v{vTmp2}
    s_nop 1
    v_max_f32 v{vTmp}, v{vTmp}, v{vTmp2}
    """)
    for r in range(16):
        a(f"v_sub_f32 v{C+r}, 0, v{vTmp}")
    for r in range(16):
        a(f"v_mov_b32 v{O+r}, 0")
    for r in range(4):
        a(f"v_mov_b32 v{LS+r}, 0")
    a(f"""
    s_mov_b32 s{t1}, s{sKv}
    s_mov_b32 s{sC}, 0
    """)
    a.label("k2_fb2")
    for u in range(2):
        a(f"buffer_load_dwordx4 {vr(k0+4*u,4)}, v{vSt}, s[12:15], s{t1} offen offset:{u*1024}")
    for u in range(2):
        a(f"buffer_load_dwordx4 {vr(v0_+4*u,4)}, v{vSt}, s[12:15], s{t1} offen offset:{2048+u*1024}")
    a(f"""
    s_waitcnt vmcnt(0)
    v_mfma_f32_32x32x16_bf16 {vr(s0,16)}, {vr(k0,4)}, {vr(Q,4)}, {vr(C,16)}
    v_mfma_f32_32x32x16_bf16 {vr(s0,16)}, {vr(k0+4,4)}, {vr(Q+4,4)}, {vr(s0,16)}
    s_nop 15
    """)
    for r in range(16):
        a(f"v_exp_f32 v{s0+r}, v{s0+r}")
    a(f"""
    s_nop 2
    {mO(0, 0)}
    {mL(0, 0)}
    {mO(0, 1)}
    {mL(0, 1)}
    s_add_u32 s{t1}, s{t1}, 4096
    s_add_u32 s{sC}, s{sC}, 1
    s_cmp_lt_u32 s{sC}, 64
    s_nop 7
    s_cbranch_scc1 k2_fb2
    s_nop 7
    s_branch k2_fin
    """)
    return name, NV
```

```python
from asmlib import *
import struct

def f2u(x):
    return struct.unpack("<I", struct.pack("<f", x))[0]

LOG2E = 1.4426950408889634
QSCALE = (32 ** -0.5) * LOG2E

XSLOT = 32768
NXS = 3
WBASE = XSLOT * NXS
WSLOT = 12288
NWS = 5
K1_LDS = WBASE + WSLOT * NWS

import os
DBG = os.environ.get('K1DBG', '')
PFP = int(os.environ.get('PFP', '5'))
PFT = int(os.environ.get('PFT', '1'))
PFDELAY = int(os.environ.get('PFDELAY', '0'))
PFC = int(os.environ.get('PFC', '3'))
PFCI = int(os.environ.get('PFCI', '25'))
PHASE = [int(x) for x in os.environ.get('K1PHASE', '1,2').split(',') if x]
PF3POS = int(os.environ.get('PF3POS', '2'))
DIST = int(os.environ.get('K1DIST', '4'))
MAP = int(os.environ.get('K1MAP', '1'))
CPOS = int(os.environ.get('K1CPOS', '1'))
PFS = int(os.environ.get('PFS', '2'))
SPREAD = int(os.environ.get('K1SPREAD', '1'))
PFM = int(os.environ.get('PFM', '1'))
QORD = int(os.environ.get('K1QORD', '1'))
ROT = int(os.environ.get('K1ROT', '0'))
def gen_k1(a):
    name = "qkv_kernel"
    kernel_head(a, name)
    vLane, vTmp, vTmp2 = 1, 2, 3
    vLd = 4
    vXb0, vLd2, vWb = 5, 6, 7
    vXa0, vXa1, vWa = 8, 9, 10
    vSt = 11
    vPfA, vPfB, vPfD = 12, 13, 14
    sPf, sPfInc = 37, 38
    F = 16
    def XF(s, mb, tb): return F + s * 40 + (mb * 2 + tb) * 4
    def WF(s, t, db): return F + s * 40 + 16 + (t * 2 + db) * 4
    ACC = 96
    def AC(mb, t): return ACC + (mb * 3 + t) * 16
    NV = 194 if 'cst' in DBG else 192
    sLd = 4
    sWS = 12
    sSo = 62
    sXr, sXw, sM0off2 = 16, 17, 18
    sInc, sRd, sWr, sM0off, sI, sSize = 20, 21, 22, 23, 24, 25
    sPart, sMt, sNt, sW, sWm, sWn, sH = 26, 27, 28, 29, 30, 31, 32
    t0, t1, t2, t3 = 33, 34, 35, 36
    end = "k1_end"
    sStep, sHalf, sA, sB, sAdv = 40, 41, 42, 43, 39
    ST = 'stamp' in DBG
    MAPC = "s_mov_b32 s3, s2"
    if MAP:
        MAPC = f'''s_and_b32 s{t0}, s2, 1
        s_xor_b32 s{t0}, s{t0}, {MAP & 1}
        s_lshl_b32 s{t0}, s{t0}, 2
        s_bfe_u32 s{t1}, s2, 0x10002
        s_and_b32 s3, s2, 2
        s_or_b32 s3, s3, s{t0}
        s_or_b32 s3, s3, s{t1}'''
    a(f"""
    s_cmp_ge_u32 s2, 256
    s_cbranch_scc1 {end}
    {'s_memtime s[50:51]' if ST else ''}
    {'s_memrealtime s[58:59]' if ST else ''}
    s_load_dwordx4 s[80:83], s[0:1], 0
    s_load_dwordx4 s[84:87], s[0:1], 24
    s_load_dwordx2 s[12:13], s[0:1], 64
    v_lshrrev_b32 v{vTmp}, 6, v0
    v_and_b32 v{vLane}, 63, v0
    {MAPC}
    s_and_b32 s{t0}, s3, 7
    s_lshr_b32 s{t1}, s2, 3
    v_readfirstlane_b32 s{sW}, v{vTmp}
    s_lshr_b32 s{sPart}, s{t0}, 2
    s_bfe_u32 s{t2}, s{t0}, 0x10001
    s_lshl_b32 s{t2}, s{t2}, 2
    s_lshr_b32 s{t3}, s{t1}, 3
    s_add_u32 s{sMt}, s{t2}, s{t3}
    s_and_b32 s{t2}, s{t0}, 1
    s_lshl_b32 s{t2}, s{t2}, 3
    s_and_b32 s{t3}, s{t1}, 7
    s_add_u32 s{sNt}, s{t2}, s{t3}
    s_and_b32 s{sWm}, s{sW}, 3
    s_lshr_b32 s{sWn}, s{sW}, 2
    s_mov_b32 s7, 0x00020000
    s_cmp_lg_u32 s{sW}, 7
    s_cbranch_scc1 k1_ld_setup
    s_getpc_b64 s[44:45]
    k1_pc:
    s_sub_u32 s44, s44, k1_pc-qkv_kernel
    s_subb_u32 s45, s45, 0
    v_lshlrev_b32 v{vPfD}, 7, v{vLane}
    global_load_dword v15, v{vPfD}, s[44:45]
    v_add_u32 v{vTmp}, 8192, v{vPfD}
    v_min_u32 v{vTmp}, text_end-qkv_kernel-4, v{vTmp}
    global_load_dword v15, v{vTmp}, s[44:45]
    s_branch k1_pf_setup
    k1_ld_setup:
    s_lshl_b32 s{t0}, s{sMt}, 19
    s_lshl_b32 s{t1}, s{sW}, 17
    s_add_u32 s{t0}, s{t0}, s{t1}
    s_lshl_b32 s{t1}, s{sNt}, 7
    s_lshl_b32 s{t2}, s{sWm}, 11
    s_add_u32 s{t1}, s{t1}, s{t2}
    s_lshl_b32 s{t2}, s{sW}, 13
    s_lshl_b32 s{t3}, s{sWm}, 12
    s_add_u32 s{t3}, s{t3}, {WBASE}
    s_cmp_lt_u32 s{sW}, 4
    s_cselect_b32 s{sSo}, s{t0}, s{t1}
    s_cselect_b32 s{sM0off}, s{t2}, s{t3}
    s_cselect_b32 s{t0}, 1, 3
    s_cselect_b32 s{sB}, 4, 3
    s_cselect_b32 s{sAdv}, 1, 3072
    s_cselect_b32 s{sSize}, 2, 3
    s_cselect_b32 s{t1}, 3, 1
    s_cselect_b32 s{t2}, 0, 2
    s_cselect_b32 s{t3}, 64, 32
    s_lshl_b32 s{sStep}, s{t0}, 14
    s_sub_u32 s{sStep}, s{sStep}, 1024
    s_lshl_b32 s{sHalf}, s{t0}, 16
    s_lshl_b32 s{sA}, s{t0}, 12
    s_lshl_b32 s{sB}, s{sB}, 13
    s_lshl_b32 s{sAdv}, s{sAdv}, 7
    s_lshl_b32 s{sSize}, s{sSize}, 21
    s_lshl_b32 s{t0}, s{t0}, 11
    v_lshrrev_b32 v{vTmp}, 3, v{vLane}
    v_mul_u32_u24 v{vLd}, s{t0}, v{vTmp}
    v_lshrrev_b32 v{vTmp}, 4, v{vLane}
    v_and_b32 v{vTmp}, s{t1}, v{vTmp}
    v_lshlrev_b32 v{vTmp}, s{t2}, v{vTmp}
    v_and_b32 v{vTmp2}, 7, v{vLane}
    v_xor_b32 v{vTmp}, v{vTmp}, v{vTmp2}
    v_lshlrev_b32 v{vTmp}, 4, v{vTmp}
    v_add_u32 v{vLd}, v{vLd}, v{vTmp}
    v_xor_b32 v{vLd2}, s{t3}, v{vLd}
    s_add_u32 s{sSo+1}, s{sSo}, s{sStep}
    s_add_u32 s{sSo+2}, s{sSo+1}, s{sStep}
    s_add_u32 s{sSo+3}, s{sSo+2}, s{sStep}
    s_add_u32 s{sSo+4}, s{sSo}, s{sHalf}
    s_add_u32 s{sSo+5}, s{sSo+1}, s{sHalf}
    s_add_u32 s{sSo+6}, s{sSo+2}, s{sHalf}
    s_add_u32 s{sSo+7}, s{sSo+3}, s{sHalf}
    s_mov_b32 s6, s{sSize}
    s_mov_b32 m0, s{sM0off}
    {'s_memtime s[70:71]' if ST else ''}
    s_waitcnt lgkmcnt(0)
    {'s_memtime s[72:73]' if ST else ''}
    s_cmp_eq_u32 s{sPart}, 0
    s_cselect_b32 s80, s80, s84
    s_cselect_b32 s81, s81, s85
    s_cselect_b32 s82, s82, s86
    s_cselect_b32 s83, s83, s87
    s_cmp_lt_u32 s{sW}, 4
    s_cselect_b32 s4, s80, s82
    s_cselect_b32 s5, s81, s83
    """)

    def dma(role, half=0):
        L = []
        if role == 2:
            return L
        for j in range(4):
            L.append(f"buffer_load_dwordx4 v{vLd2 if j & 1 else vLd}, s[4:7], s{sSo+4*half+j} offen offset:{j*1024} lds")
        if half:
            L.append(f"v_add_u32 v{vLd}, s{sAdv}, v{vLd}")
            L.append(f"v_add_u32 v{vLd2}, s{sAdv}, v{vLd2}")
        return L

    def common():
        a(f"""
        s_lshl_b32 s{sH}, s{sNt}, 1
        s_add_u32 s{sH}, s{sH}, s{sWn}
        s_mov_b32 s14, {WS_SIZE}
        s_mov_b32 s15, 0x00020000
        v_lshlrev_b32 v{vSt}, 4, v{vLane}
        """)
        a(f"""
        v_and_b32 v{vTmp}, 15, v{vLane}
        s_lshl_b32 s{t0}, s{sWm}, 13
        v_lshlrev_b32 v{vTmp}, 7, v{vTmp}
        v_add_u32 v{vTmp}, s{t0}, v{vTmp}
        v_lshrrev_b32 v{vTmp2}, 4, v{vLane}
        v_bfe_u32 v{vXb0}, v{vLane}, 1, 3
        v_xor_b32 v{vTmp2}, v{vTmp2}, v{vXb0}
        v_lshlrev_b32 v{vTmp2}, 4, v{vTmp2}
        v_add_u32 v{vXb0}, v{vTmp}, v{vTmp2}
        """)
        a(f"""
        v_lshrrev_b32 v{vTmp}, 4, v{vLane}
        v_lshlrev_b32 v{vWb}, 10, v{vTmp}
        v_bfe_u32 v{vTmp}, v{vLane}, 2, 2
        v_lshlrev_b32 v{vTmp}, 7, v{vTmp}
        v_add_u32 v{vWb}, v{vWb}, v{vTmp}
        v_bfe_u32 v{vTmp}, v{vLane}, 3, 1
        v_xor_b32 v{vTmp}, s{sWn}, v{vTmp}
        v_lshlrev_b32 v{vTmp}, 6, v{vTmp}
        v_add_u32 v{vWb}, v{vWb}, v{vTmp}
        v_bfe_u32 v{vTmp}, v{vLane}, 4, 1
        v_lshlrev_b32 v{vTmp}, 5, v{vTmp}
        v_add_u32 v{vWb}, v{vWb}, v{vTmp}
        v_and_b32 v{vTmp}, 3, v{vLane}
        v_lshlrev_b32 v{vTmp}, 3, v{vTmp}
        v_add_u32 v{vWb}, v{vWb}, v{vTmp}
        v_add_u32 v{vWb}, {WBASE}, v{vWb}
        """)
        for r in range(96):
            a(f"v_mov_b32 v{ACC + r}, 0")
        a(f"""
        s_add_u32 s{sM0off2}, s{sM0off}, 4096
        s_mov_b32 s{sRd}, 0
        s_mov_b32 s{sI}, 0
        s_mov_b32 s{sXr}, 0
        s_mov_b32 s{sXw}, {(DIST // 2)*XSLOT}
        s_mov_b32 s{sWr}, {(DIST % NWS)*WSLOT}
        v_mov_b32 v{vXa0}, v{vXb0}
        v_mov_b32 v{vWa}, v{vWb}
        v_xor_b32 v{vXa1}, 32, v{vWb}
        """)

    for g in range(DIST):
        for d in dma(0, g & 1): a(d)
        if g < DIST - 1:
            if g & 1:
                a(f"s_add_u32 s48, s{sM0off}, s{sB}" if g == 1 else f"s_add_u32 s48, s48, s{sB}")
                a(f"s_mov_b32 m0, s48")
            else:
                a(f"s_add_u32 m0, m0, s{sA}")
            if g == CPOS: common()
            a("s_barrier" if g in PHASE else "s_nop 0")
    if ST: a('s_memtime s[74:75]')
    a("s_mov_b32 s47, 0")
    a("s_branch k1_common")

    a.label("k1_pf_setup")
    if PFM == 0:
        a(f"""
        v_and_b32 v{vTmp}, 31, v{vLane}
        v_lshlrev_b32 v{vPfA}, 11, v{vTmp}
        v_lshrrev_b32 v{vTmp}, 5, v{vLane}
        v_lshlrev_b32 v{vTmp}, 10, v{vTmp}
        v_add_u32 v{vPfA}, v{vPfA}, v{vTmp}
        s_bfe_u32 s{t0}, s3, 0x10001
        s_lshl_b32 s{t0}, s{t0}, 21
        s_lshr_b32 s{t1}, s2, 3
        s_lshl_b32 s{t2}, s{t1}, 16
        s_add_u32 s{sPf}, s{t0}, s{t2}
        v_lshlrev_b32 v{vPfB}, 11, v{vLane}
        v_min_u32 v{vTmp}, 31, v{vLane}
        v_add_u32 v{vTmp}, 64, v{vTmp}
        v_lshlrev_b32 v{vTmp2}, 11, v{vTmp}
        s_mul_i32 s{sPfInc}, s{t1}, {96*2048}
        s_and_b32 s{t0}, s3, 1
        s_lshl_b32 s{t0}, s{t0}, 10
        s_add_u32 s{sPfInc}, s{sPfInc}, s{t0}
        s_mov_b32 s6, {2048*2048}
        s_mov_b32 s10, {1024*6144}
        s_mov_b32 s11, 0x00020000
        s_mov_b32 s47, 1
        s_waitcnt lgkmcnt(0)
        s_cmp_eq_u32 s{sPart}, 0
        s_cselect_b32 s4, s80, s84
        s_cselect_b32 s5, s81, s85
        s_cselect_b32 s8, s82, s86
        s_cselect_b32 s9, s83, s87
        s_sub_u32 s{t0}, {3*128}, s4
        s_and_b32 s{t0}, s{t0}, {7*128}
        s_add_u32 s{sPf}, s{sPf}, s{t0}
        s_sub_u32 s{t0}, {3*128}, s8
        s_and_b32 s{t0}, s{t0}, {7*128}
        s_add_u32 s{sPfInc}, s{sPfInc}, s{t0}
        v_mov_b32 v{vLd}, v{vTmp2}
        """)
    else:
        a(f"""
        v_and_b32 v{vTmp}, 31, v{vLane}
        v_lshlrev_b32 v{vPfA}, 11, v{vTmp}
        v_min_u32 v{vTmp}, 47, v{vLane}
        v_lshlrev_b32 v{vPfB}, 11, v{vTmp}
        s_bfe_u32 s{t0}, s3, 0x10001
        s_lshr_b32 s{t1}, s2, 3
        s_lshl_b32 s{t2}, s{t0}, 5
        s_add_u32 s{t1}, s{t1}, s{t2}
        s_and_b32 s{t0}, s3, 1
        s_lshl_b32 s{t0}, s{t0}, 10
        s_lshl_b32 s{sPf}, s{t1}, 16
        s_add_u32 s{sPf}, s{sPf}, s{t0}
        s_mul_i32 s{sPfInc}, s{t1}, {48*2048}
        s_add_u32 s{sPfInc}, s{sPfInc}, s{t0}
        s_mov_b32 s6, {2048*2048}
        s_mov_b32 s10, {1024*6144}
        s_mov_b32 s11, 0x00020000
        s_mov_b32 s42, {2048*2048}
        s_mov_b32 s43, 0x00020000
        s_mov_b32 s66, {1024*6144}
        s_mov_b32 s67, 0x00020000
        s_mov_b32 s47, 1
        s_waitcnt lgkmcnt(0)
        s_mov_b32 s4, s84
        s_mov_b32 s5, s85
        s_mov_b32 s8, s86
        s_mov_b32 s9, s87
        s_mov_b32 s40, s80
        s_mov_b32 s41, s81
        s_mov_b32 s64, s82
        s_mov_b32 s65, s83
        s_sub_u32 s{t0}, {3*128}, s40
        s_and_b32 s{t0}, s{t0}, {7*128}
        s_add_u32 s62, s{sPf}, s{t0}
        s_sub_u32 s{t0}, {3*128}, s64
        s_and_b32 s{t0}, s{t0}, {7*128}
        s_add_u32 s63, s{sPfInc}, s{t0}
        s_sub_u32 s{t0}, {3*128}, s4
        s_and_b32 s{t0}, s{t0}, {7*128}
        s_add_u32 s{sPf}, s{sPf}, s{t0}
        s_sub_u32 s{t0}, {3*128}, s8
        s_and_b32 s{t0}, s{t0}, {7*128}
        s_add_u32 s{sPfInc}, s{sPfInc}, s{t0}
        """)
    a(f"""
    {'s_memtime s[70:71]' if ST else ''}
    {'s_memtime s[72:73]' if ST else ''}
    {'s_memtime s[74:75]' if ST else ''}
    """)
    a(f"s_mov_b32 s{sM0off}, 0")
    common()
    def pf3():
        if PFM == 0:
            a(f"""
            buffer_load_dword v15, v{vPfB}, s[8:11], s{sPfInc} offen
            buffer_load_dword v15, v{vLd}, s[8:11], s{sPfInc} offen
            buffer_load_dword v15, v{vPfA}, s[4:7], s{sPf} offen
            """)
        else:
            lb = a.newlabel("k1_nopf")
            a(f"""
            s_cmp_eq_u32 s{sPart}, 0
            s_cbranch_scc1 {lb}
            buffer_load_dword v15, v{vPfB}, s[64:67], s63 offen
            buffer_load_dword v15, v{vPfA}, s[40:43], s62 offen
            buffer_load_dword v15, v{vPfB}, s[8:11], s{sPfInc} offen
            buffer_load_dword v15, v{vPfA}, s[4:7], s{sPf} offen
            """)
            a.label(lb)
    for ph in range(len(PHASE) + 1):
        if ph == PF3POS:
            if PFDELAY: a(f"s_sleep {PFDELAY}")
            pf3()
        if ph < len(PHASE): a("s_barrier")

    a.label("k1_common")
    a(f"""
    s_cmp_eq_u32 s47, 1
    s_cbranch_scc0 k1_sel_ld
    s_cmp_eq_u32 s{sPart}, 0
    s_cbranch_scc1 k1_main_0_2
    s_branch k1_main_1_2
    """)
    a.label("k1_sel_ld")
    a(f"""
    s_cmp_eq_u32 s{sPart}, 0
    s_cbranch_scc1 k1_sel_0
    s_cmp_lt_u32 s{sW}, 4
    s_cbranch_scc1 k1_main_1_0
    s_branch k1_main_1_1
    """)
    a.label("k1_sel_0")
    a(f"""
    s_cmp_ge_u32 s{sW}, 4
    s_cbranch_scc1 k1_main_0_1
    """)

    vWa1 = vXa1
    def reads(s):
        L = []
        for i in range(4):
            L.append(f"ds_read_b128 {vr(XF(s,i>>1,i&1),4)}, v{vXa0} offset:{i*2048}")
        for t in range(3):
            for db in range(2):
                for rd in range(2):
                    L.append(f"ds_read_b64_tr_b16 {vr(WF(s,t,db)+2*rd,2)}, v{vWa1 if db else vWa} offset:{t*4096+rd*512}")
        return L

    def mfmas(part, s):
        L = []
        for t in range(3):
            for db in range(2):
                for mb in range(2):
                    for tb in range(2):
                        wfirst = (t == 0) or (t == 1 and part == 0)
                        if wfirst:
                            A, B, D = WF(s,t,db), XF(s,mb,tb), AC(mb,t) + tb * 8 + db * 4
                        else:
                            A, B, D = XF(s,mb,tb), WF(s,t,db), AC(mb,t) + db * 8 + tb * 4
                        L.append(f"v_mfma_f32_16x16x32_bf16 {vr(D,4)}, {vr(A,4)}, {vr(B,4)}, {vr(D,4)}")
        return L

    def advance(next_even):
        L = [
            f"s_add_u32 s{sRd}, s{sRd}, {WSLOT}",
            f"s_cmp_eq_u32 s{sRd}, {WSLOT*NWS}",
            f"s_cselect_b32 s{sRd}, 0, s{sRd}",
            f"v_add_u32 v{vWa}, s{sRd}, v{vWb}",
            f"v_xor_b32 v{vWa1}, 32, v{vWa}",
        ]
        if next_even:
            L += [f"v_xor_b32 v{vXa0}, 64, v{vXa0}"]
        else:
            L += [
                f"s_add_u32 s{sXr}, s{sXr}, {XSLOT}",
                f"s_cmp_eq_u32 s{sXr}, {XSLOT*NXS}",
                f"s_cselect_b32 s{sXr}, 0, s{sXr}",
                f"v_add_u32 v{vXa0}, s{sXr}, v{vXb0}",
            ]
        return L

    RPM = int(os.environ.get('K1RPM', '1'))
    PREM = int(os.environ.get('K1PREM', '0'))
    def iteration(part, role, cur):
        M = mfmas(part, cur)
        R = reads(1 - cur)
        half = (cur + DIST) & 1
        D = dma(role, half)
        wv = ""
        if role == 0 and cur == 1: wv = f"vmcnt({4*(DIST-3)})"
        if role == 1: wv = f"vmcnt({4*(DIST-2)})"
        if PREM:
            a("s_waitcnt lgkmcnt(0)")
            for m in range(PREM): a(M[m])
            if wv: a(f"s_waitcnt {wv}")
        else:
            a(f"s_waitcnt {wv} lgkmcnt(0)")
        a("s_barrier")
        dm = [d for d in D if d.startswith('buffer')]
        dv = [d for d in D if not d.startswith('buffer')]
        pos = (2, 8, 14, 20) if role == 0 else (5, 11, 17, 22)
        pos = [max(p, PREM + 1) for p in pos]
        ri = 0
        for m in range(PREM, 24):
            a(M[m])
            if m == PREM:
                if role == 0:
                    a(f"s_add_u32 m0, s{sXw}, s{sM0off2 if half else sM0off}")
                    if half:
                        a(f"s_add_u32 s{sXw}, s{sXw}, {XSLOT}")
                        a(f"s_cmp_eq_u32 s{sXw}, {XSLOT*NXS}")
                        a(f"s_cselect_b32 s{sXw}, 0, s{sXw}")
                elif role == 1:
                    a(f"s_add_u32 m0, s{sWr}, s{sM0off}")
                    a(f"s_add_u32 s{sWr}, s{sWr}, {WSLOT}")
                    a(f"s_cmp_eq_u32 s{sWr}, {WSLOT*NWS}")
                    a(f"s_cselect_b32 s{sWr}, 0, s{sWr}")
                if role < 2:
                    a(f"s_cmp_lt_u32 s{sI}, {32-DIST}")
                    a(f"s_cselect_b32 s6, s{sSize}, 0")
            for _ in range(RPM):
                if ri < 16:
                    a(R[ri]); ri += 1
                    if ri == 16:
                        for x in advance(cur == 1): a(x)
                        a(f"s_add_u32 s{sI}, s{sI}, 1")
            while dm and pos[4 - len(dm)] == m:
                a(dm.pop(0))
                if not dm:
                    for d in dv: a(d)
            if role == 2 and m == 6 and cur == 1 and PFC:
                a(f"s_cmp_eq_u32 s{sI}, {PFCI}")
                a(f"s_cbranch_scc1 k1_pfc_{part}")
                a.label(f"k1_pfc_back_{part}")
                if PF3POS >= 4:
                    a(f"s_cmp_eq_u32 s{sI}, {2*(PF3POS-4)+1}")
                    a(f"s_cbranch_scc1 k1_pf3_{part}")
                    a.label(f"k1_pf3_back_{part}")
        assert ri == 16 and not dm

    for part in range(2):
        for role in range(3):
            a.label(f"k1_main_{part}_{role}")
            a(f"""
            {'s_memtime s[76:77]' if ST else ''}
            {[f's_waitcnt vmcnt({4*(DIST-2)})', f's_waitcnt vmcnt({4*(DIST-1)})', ''][role]}
            s_barrier
            {'s_memtime s[52:53]' if ST else ''}
            """)
            for r in reads(0): a(r)
            for x in advance(True): a(x)
            if role == 2 and PF3POS == 3: pf3()
            lp = f"k1_loop_{part}_{role}"
            a.label(lp)
            if 'cst' in DBG:
                a("s_memtime s[88:89]")
            iteration(part, role, 0)
            if 'cst' in DBG:
                a(f"s_lshr_b32 s90, s{sI}, 1")
                a(f"v_cmp_eq_u32_e64 s[92:93], s90, v{vLane}")
                a(f"v_mov_b32 v193, s88")
                a("s_nop 3")
                a(f"v_cndmask_b32_e64 v192, v192, v193, s[92:93]")
            iteration(part, role, 1)
            a(f"s_cmp_lt_u32 s{sI}, 30")
            a(f"s_cbranch_scc1 {lp}")
            iteration(part, role, 0)
            a("s_waitcnt lgkmcnt(0)")
            for m in mfmas(part, 1): a(m)
            if ST: a('s_memtime s[54:55]')
            a(f"s_branch k1_epi_{part}")
            if role == 2 and PFC:
                a.label(f"k1_pfc_{part}")
                for c in range(1, PFC):
                    a(f"v_add_u32 v{vTmp}, {c*8192}, v{vPfD}")
                    a(f"v_min_u32 v{vTmp}, text_end-qkv_kernel-4, v{vTmp}")
                    a(f"global_load_dword v15, v{vTmp}, s[44:45]")
                a(f"s_branch k1_pfc_back_{part}")
                if PF3POS >= 4:
                    a.label(f"k1_pf3_{part}")
                    pf3()
                    a(f"s_branch k1_pf3_back_{part}")

    a.label("k1_epi_0")
    a(f"""
    s_lshl_b32 s{t0}, s{sMt}, 3
    s_lshl_b32 s{t1}, s{sWm}, 1
    s_add_u32 s{t0}, s{t0}, s{t1}
    s_lshl_b32 s{t1}, s{sH}, 6
    s_add_u32 s{t0}, s{t0}, s{t1}
    s_lshl_b32 s{t1}, s{t0}, 11
    s_lshl_b32 s{t2}, s{t0}, 12
    s_add_u32 s{t2}, s{t2}, {WS_KV}
    s_add_u32 s{t3}, s{t2}, 4096
    s_mov_b32 s{sI}, {f2u(QSCALE):#x}
    v_lshrrev_b32 v{vTmp}, 4, v{vLane}
    v_lshlrev_b32 v{vTmp}, 9, v{vTmp}
    v_and_b32 v{vTmp2}, 15, v{vLane}
    v_lshl_add_u32 v{vSt}, v{vTmp2}, 4, v{vTmp}
    v_and_b32 v{vTmp2}, 12, v{vLane}
    v_lshl_add_u32 v{vTmp}, v{vTmp2}, 4, v{vSt}
    """)
    T = F
    ti = 0
    for mb in range(2):
        for t in range(3):
            b = AC(mb, t)
            if t == 0:
                for r in range(16):
                    a(f"v_mul_f32 v{b+r}, s{sI}, v{b+r}")
            for r in range(8):
                a(f"v_cvt_pk_bf16_f32 v{T+ti+r}, v{b+2*r}, v{b+2*r+1}")
            for u in range(2):
                if t == 0:
                    a(f"buffer_store_dwordx4 {vr(T+ti+4*u,4)}, v{vSt}, s[12:15], s{t1} offen offset:{mb*2048+u*256}")
                elif t == 1:
                    a(f"buffer_store_dwordx4 {vr(T+ti+4*u,4)}, v{vTmp}, s[12:15], s{t2 if mb == 0 else t3} offen offset:{u*64}")
                else:
                    a(f"buffer_store_dwordx4 {vr(T+ti+4*u,4)}, v{vSt}, s[12:15], s{t2 if mb == 0 else t3} offen offset:{2048+u*256}")
            ti += 8
    a(f"s_branch {'k1_stamp' if 'stamp' in DBG else end}")

    a.label("k1_epi_1")
    a(f"""
    s_lshl_b32 s{t0}, s{sMt}, 3
    s_lshl_b32 s{t1}, s{sWm}, 1
    s_add_u32 s{t0}, s{t0}, s{t1}
    s_lshl_b32 s{t1}, s{sH}, 6
    s_add_u32 s{t0}, s{t0}, s{t1}
    s_lshl_b32 s{t3}, s{t0}, 11
    s_add_u32 s{t3}, s{t3}, {WS_QB}
    s_mov_b32 s{sI}, {f2u(LOG2E):#x}
    s_mov_b32 s{t2}, {f2u(1e-6):#x}
    v_lshrrev_b32 v{vTmp}, 4, v{vLane}
    v_lshlrev_b32 v{vTmp}, 9, v{vTmp}
    v_and_b32 v{vTmp2}, 15, v{vLane}
    v_lshl_add_u32 v{vLd}, v{vTmp2}, 4, v{vTmp}
    v_and_b32 v{vTmp}, 32, v{vLane}
    v_lshl_add_u32 v{vLd2}, v{vTmp}, 5, v{vLd}
    s_waitcnt vmcnt(0)
    """)
    VF, PK, ONE, PQ = T + 16, T + 32, T + 48, T + 52
    KVA, ZA = AC(0, 1), AC(1, 1)
    def phi(b, e, dst):
        for r in range(16):
            a(f"v_mul_f32 v{e+r}, s{sI}, v{b+r}")
        for r in range(16):
            a(f"v_exp_f32_e64 v{e+r}, v{e+r} clamp")
        for r in range(16):
            a(f"v_max_f32 v{b+r}, s{t2}, v{b+r}")
        for r in range(16):
            a(f"v_add_f32 v{b+r}, v{b+r}, v{e+r}")
        for r in range(8):
            a(f"v_cvt_pk_bf16_f32 v{dst+r}, v{b+2*r}, v{b+2*r+1}")
    def phiq(mb):
        phi(AC(mb, 0), AC(mb, 2), PQ + mb * 8)
        for u in range(2):
            a(f"buffer_store_dwordx4 {vr(PQ+mb*8+4*u,4)}, v{vLd}, s[12:15], s{t3} offen offset:{mb*2048+u*256}")
    for mb in range(2):
        b = AC(mb, 2)
        for r in range(8):
            a(f"v_cvt_pk_bf16_f32 v{VF+mb*8+r}, v{b+2*r}, v{b+2*r+1}")
    for r in range(4):
        a(f"v_mov_b32 v{ONE+r}, 0x3f803f80")
    if QORD == 0:
        phiq(0); phiq(1)
    for mb in range(2):
        phi(AC(mb, 1), AC(mb, 2), PK + mb * 8)
    a("s_nop 1")
    for mb in range(2):
        z = (mb == 0)
        for dk in range(2):
            for dv in range(2):
                d = KVA + (dk * 2 + dv) * 4
                a(f"v_mfma_f32_16x16x32_bf16 {vr(d,4)}, {vr(PK+mb*8+4*dk,4)}, {vr(VF+mb*8+4*dv,4)}, {'0' if z else vr(d,4)}")
            d = ZA + dk * 4
            a(f"v_mfma_f32_16x16x32_bf16 {vr(d,4)}, {vr(PK+mb*8+4*dk,4)}, {vr(ONE,4)}, {'0' if z else vr(d,4)}")
    a(f"""
    s_barrier
    s_lshl_b32 s{t0}, s{sW}, 13
    v_add_u32 v{vTmp}, s{t0}, v{vLd2}
    s_nop 4
    """)
    for dk in range(2):
        for dv in range(2):
            a(f"ds_write_b128 v{vTmp}, {vr(KVA+(dk*2+dv)*4,4)} offset:{dk*1024+dv*256}")
    for dk in range(2):
        for dv in range(2):
            a(f"ds_write_b128 v{vTmp}, {vr(ZA+dk*4,4)} offset:{4096+dk*1024+dv*256}")
    a(f"""
    s_lshl_b32 s{t0}, s{sWn}, 15
    s_lshl_b32 s{t1}, s{sWm}, 11
    s_add_u32 s{t0}, s{t0}, s{t1}
    v_add_u32 v{vTmp}, s{t0}, v{vSt}
    """)
    if QORD == 1: phiq(0)
    a(f"""
    s_waitcnt lgkmcnt(0)
    s_barrier
    """)
    RB = T
    for j in range(4):
        for q in range(2):
            a(f"ds_read_b128 {vr(RB+(j*2+q)*4,4)}, v{vTmp} offset:{j*8192+q*1024}")
    a(f"""
    s_lshl_b32 s{t0}, s{sH}, 3
    s_add_u32 s{t0}, s{t0}, s{sMt}
    s_lshl_b32 s{t0}, s{t0}, 13
    s_add_u32 s{t0}, s{t0}, s{t1}
    s_add_u32 s{t0}, s{t0}, {WS_KVP}
    """)
    if QORD == 1: phiq(1)
    if QORD == 2: phiq(0)
    a("s_waitcnt lgkmcnt(0)")
    for r in range(8):
        a(f"v_add_f32 v{RB+r}, v{RB+r}, v{RB+8+r}")
        a(f"v_add_f32 v{RB+16+r}, v{RB+16+r}, v{RB+24+r}")
    for r in range(8):
        a(f"v_add_f32 v{RB+r}, v{RB+r}, v{RB+16+r}")
    a(f"""
    s_cmp_lt_u32 s{sWm}, 2
    s_cselect_b32 exec_lo, -1, 1
    s_cselect_b32 exec_hi, -1, 1
    """)
    assert QORD != 2
    for q in range(2):
        a(f"buffer_store_dwordx4 {vr(RB+4*q,4)}, v{vSt}, s[12:15], s{t0} offen offset:{q*1024}")
    if QORD == 2: phiq(1)
    if 'stamp' in DBG:
        a.label("k1_stamp")
        a(f'''
        s_waitcnt vmcnt(0)
        s_memtime s[56:57]
        s_memrealtime s[60:61]
        s_waitcnt lgkmcnt(0)
        s_lshl_b32 s{t0}, s2, 3
        s_add_u32 s{t0}, s{t0}, s{sW}
        s_lshl_b32 s{t0}, s{t0}, 6
        s_add_u32 s{t0}, s{t0}, {64*MB}
        v_mov_b32 v20, s50
        v_mov_b32 v21, s52
        v_mov_b32 v22, s54
        v_mov_b32 v23, s56
        v_mov_b32 v24, s58
        v_mov_b32 v25, s60
        v_mov_b32 v26, s70
        v_mov_b32 v27, s72
        v_mov_b32 v28, 0
        v_mov_b32 v30, s74
        v_mov_b32 v31, s76
        buffer_store_dwordx4 v[20:23], v28, s[12:15], s{t0} offen
        buffer_store_dwordx4 v[24:27], v28, s[12:15], s{t0} offen offset:16
        buffer_store_dwordx2 v[30:31], v28, s[12:15], s{t0} offen offset:32
        ''')
        if 'cst' in DBG:
            a(f'''
            s_add_u32 s{t0}, s{t0}, {4*MB}
            s_mov_b64 exec, 0xffff
            v_lshlrev_b32 v28, 2, v{vLane}
            buffer_store_dword v192, v28, s[12:15], s{t0} offen
            ''')
    a.label(end)
    a("s_endpgm")
    return name, NV
```

```python
from asmlib import *
import struct, os

def f2u(x):
    return struct.unpack("<I", struct.pack("<f", x))[0]

LOG2E = 1.4426950408889634
DBG = os.environ.get('K2DBG', '')
SCHED = os.environ.get('K2SCHED', 'a')
RAMP = [int(x) for x in os.environ.get('K2RAMP', '').split(',') if x]
GOFF = int(os.environ.get('K2GOFF', '1'))
SV = int(os.environ.get('K2SV', '0'))

CH = 32768
NCH = 4
KVF = CH * NCH
WOST = KVF + 4096
K2_LDS = WOST + 16384

def gen_k2(a):
    name = "attn_kernel"
    kernel_head(a, name)
    vLane, vSt, vTmp, vTmp2, vRd, vRdN, vWo = 1, 2, 3, 4, 5, 6, 7
    Q = 8
    KB = [16, 24]
    VB = [32, 40]
    S = [48, 64]
    C = 80
    O = 96
    PB = [112, 120]
    LS = 128
    SEL = 132
    KP = 136
    QBR = 168
    KF = 176
    WF = 192
    vWr, vKw, vKr, vT3 = 200, 201, 202, 203
    vCs = 204
    vIx = 206
    vWs = 207
    vKp, vZl, vZw, vZr = 208, 209, 210, 211
    NV = 212
    sHk, sZ = 76, 45
    ZC = KVF + 2048
    sH, sQb, sW, sBlk = 16, 17, 18, 19
    sKv, sC, sRd, sRdN, sWr, sM0off, sSize = 20, 21, 22, 23, 24, 25, 26
    t0, t1, t2, t3 = 27, 28, 29, 30
    sOut = 31
    sWoS, sWoD, sWoD2, sWoM = 32, 34, 35, 38
    sKvp, sQB, sOutB = 39, 40, 41
    cL2E, cEps, cHi = 42, 43, 44
    end = "k2_end"
    st = 'stamp' in DBG
    vq = []
    def vm(s, tag, load=True):
        a(s); vq.append((tag, load))
    def after(tag):
        idx = max(i for i, (t, l) in enumerate(vq) if t == tag)
        return sum(1 for (t, l) in vq[idx+1:] if l)

    a(f"""
    s_cmp_ge_u32 s2, 256
    s_cbranch_scc1 {end}
    {'s_memtime s[50:51]' if st else ''}
    {'s_memrealtime s[58:59]' if st else ''}
    s_load_dwordx2 s[12:13], s[0:1], 64
    s_load_dwordx2 s[8:9], s[0:1], 16
    s_load_dwordx2 s[36:37], s[0:1], 40
    v_and_b32 v{vLane}, 63, v0
    v_lshrrev_b32 v{vTmp}, 6, v0
    s_and_b32 s{t0}, s2, 7
    s_lshr_b32 s{t1}, s2, 3
    v_readfirstlane_b32 s{sW}, v{vTmp}
    s_lshl_b32 s{sH}, s{t0}, 2
    s_lshr_b32 s{t2}, s{t1}, 3
    s_add_u32 s{sH}, s{sH}, s{t2}
    s_and_b32 s{sQb}, s{t1}, 7
    s_lshl_b32 s{sBlk}, s{sQb}, 3
    s_add_u32 s{sBlk}, s{sBlk}, s{sW}
    s_mov_b32 s14, {WS_SIZE}
    s_mov_b32 s15, 0x00020000
    s_mov_b32 s{sSize}, {WS_SIZE}
    s_mov_b32 s6, {WS_SIZE}
    s_mov_b32 s7, 0x00020000
    v_lshlrev_b32 v{vSt}, 4, v{vLane}
    s_lshl_b32 s{t0}, s{sH}, 6
    s_add_u32 s{t0}, s{t0}, s{sBlk}
    s_lshl_b32 s{t0}, s{t0}, 11
    s_add_u32 s{sQB}, s{t0}, {WS_QB}
    s_lshl_b32 s{sKv}, s{sH}, 18
    s_lshl_b32 s{sM0off}, s{sW}, 12
    s_add_u32 s{sKv}, s{sKv}, s{sM0off}
    s_add_u32 s{sKv}, s{sKv}, {WS_KV}
    s_mov_b32 m0, s{sM0off}
    s_waitcnt lgkmcnt(0)
    {'s_memtime s[62:63]' if st else ''}
    s_mov_b32 s4, s12
    s_mov_b32 s5, s13
    """)
    def dma1(j, tag):
        vm(f"buffer_load_dwordx4 v{vSt}, s[4:7], s{sKv} offen offset:{j*1024} lds", tag)
        if j == 3:
            a(f"s_add_u32 s{sKv}, s{sKv}, {CH}")
    for j in range(4): dma1(j, 'c0')
    for u in range(2):
        vm(f"buffer_load_dwordx4 {vr(Q+4*u,4)}, v{vSt}, s[12:15], s{t0} offen offset:{u*1024}", 'qa')
    if st: a('s_memtime s[64:65]')
    a(f"""
    s_add_u32 m0, s{sM0off}, {CH}
    s_lshl_b32 s{sKvp}, s{sH}, 16
    s_add_u32 s{sZ}, s{sKvp}, {WS_KVP + 4096}
    s_lshl_b32 s{t3}, s{sW}, 9
    s_add_u32 s{sKvp}, s{sKvp}, s{t3}
    s_add_u32 s{sKvp}, s{sKvp}, {WS_KVP}
    s_lshr_b32 s{sHk}, s{sW}, 2
    s_mul_i32 s{sHk}, s{sHk}, {GOFF}
    s_add_u32 s{sHk+1}, s{sHk}, 1
    s_add_u32 s{sHk+2}, s{sHk}, 2
    s_add_u32 s{sHk+3}, s{sHk}, 3
    s_add_u32 s{sHk+4}, s{sHk}, 4
    s_add_u32 s{sHk+5}, s{sHk}, 5
    s_lshl_b32 s{sOut}, s{sBlk}, 5
    s_add_u32 s{sOut}, s{sOut}, s{sH}
    s_lshl_b32 s{sOut}, s{sOut}, 11
    s_add_u32 s{sOut}, s{sOut}, {WS_O}
    s_add_u32 s{sOutB}, s{sOut}, {4*MB}
    s_cmp_lt_u32 s2, 128
    s_cselect_b32 s8, s8, s36
    s_cselect_b32 s9, s9, s37
    s_mov_b32 s10, {2*MB}
    s_mov_b32 s11, 0x00020000
    s_bfe_u32 s{t0}, s2, 0x40003
    s_lshl_b32 s{t0}, s{t0}, 2
    s_lshr_b32 s{t1}, s{sW}, 1
    s_add_u32 s{t0}, s{t0}, s{t1}
    s_and_b32 s{t1}, s2, 7
    s_lshl_b32 s{t1}, s{t1}, 1
    s_and_b32 s{t2}, s{sW}, 1
    s_add_u32 s{t1}, s{t1}, s{t2}
    s_lshl_b32 s{sWoS}, s{t0}, 15
    s_lshl_b32 s{t2}, s{t1}, 7
    s_add_u32 s{sWoS}, s{sWoS}, s{t2}
    s_add_u32 s{sWoS+1}, s{sWoS}, {16384-1024}
    s_lshr_b32 s{t2}, s2, 7
    s_lshl_b32 s{sWoD}, s{t2}, 21
    s_lshl_b32 s{t2}, s{t1}, 17
    s_add_u32 s{sWoD}, s{sWoD}, s{t2}
    s_lshl_b32 s{t2}, s{t0}, 10
    s_add_u32 s{sWoD}, s{sWoD}, s{t2}
    s_add_u32 s{sWoD}, s{sWoD}, {WS_WO}
    s_add_u32 s{sWoD2}, s{sWoD}, 65536
    s_lshl_b32 s{sWoM}, s{sW}, 11
    s_add_u32 s{sWoM}, s{sWoM}, {WOST}
    v_lshrrev_b32 v{vTmp}, 3, v{vLane}
    v_lshlrev_b32 v{vTmp}, 11, v{vTmp}
    v_and_b32 v{vTmp2}, 7, v{vLane}
    v_lshlrev_b32 v{vTmp2}, 4, v{vTmp2}
    v_add_u32 v{vWo}, v{vTmp}, v{vTmp2}
    v_lshrrev_b32 v{vTmp}, 5, v{vLane}
    v_lshlrev_b32 v{vWr}, 9, v{vTmp}
    v_bfe_u32 v{vTmp}, v{vLane}, 2, 2
    v_lshlrev_b32 v{vTmp}, 7, v{vTmp}
    v_add_u32 v{vWr}, v{vWr}, v{vTmp}
    v_bfe_u32 v{vTmp}, v{vLane}, 4, 1
    v_lshlrev_b32 v{vTmp}, 5, v{vTmp}
    v_add_u32 v{vWr}, v{vWr}, v{vTmp}
    v_and_b32 v{vTmp}, 3, v{vLane}
    v_lshlrev_b32 v{vTmp}, 3, v{vTmp}
    v_add_u32 v{vWr}, v{vWr}, v{vTmp}
    v_add_u32 v{vWr}, s{sWoM}, v{vWr}
    v_bfe_u32 v{vTmp2}, v{vLane}, 2, 1
    v_cmp_eq_u32 vcc, 0, v{vTmp2}
    v_mov_b32 v{vTmp}, 0x3f803f80
    s_lshr_b32 s{t0}, s{sW}, 2
    s_lshl_b32 s{t0}, s{t0}, 10
    v_cndmask_b32 v{SEL}, 0, v{vTmp}, vcc
    s_and_b32 s{t1}, s{sW}, 1
    s_lshl_b32 s{t1}, s{t1}, 9
    s_add_u32 s{t0}, s{t0}, s{t1}
    s_and_b32 s{t1}, s{sW}, 2
    s_lshl_b32 s{t1}, s{t1}, 2
    s_add_u32 s{t0}, s{t0}, s{t1}
    s_add_u32 s{t0}, s{t0}, {KVF}
    v_mov_b32 v{SEL+1}, v{SEL}
    v_xor_b32 v{SEL+2}, v{SEL}, v{vTmp}
    v_xor_b32 v{SEL+3}, v{SEL}, v{vTmp}
    v_and_b32 v{vWs}, 0x23, v{vLane}
    v_lshl_add_u32 v{vWs}, v{vTmp2}, 4, v{vWs}
    v_bfe_u32 v{vTmp2}, v{vLane}, 3, 2
    v_lshl_add_u32 v{vWs}, v{vTmp2}, 2, v{vWs}
    v_lshlrev_b32 v{vWs}, 4, v{vWs}
    v_and_b32 v{vTmp}, 0x1f0, v{vSt}
    v_lshrrev_b32 v{vTmp2}, 5, v{vLane}
    v_lshl_add_u32 v{vKp}, v{vTmp2}, 13, v{vTmp}
    v_lshl_add_u32 v{vKw}, v{vTmp2}, 2, v{vTmp}
    v_add_u32 v{vKw}, s{t0}, v{vKw}
    v_lshlrev_b32 v{vZr}, 4, v{vTmp2}
    v_add_u32 v{vZr}, {ZC}, v{vZr}
    v_lshlrev_b32 v{vZw}, 5, v{vTmp2}
    v_bfe_u32 v{vTmp}, v{vLane}, 3, 1
    v_lshl_add_u32 v{vZw}, v{vTmp}, 4, v{vZw}
    v_bfe_u32 v{vTmp}, v{vLane}, 4, 1
    v_lshl_add_u32 v{vZw}, v{vTmp}, 3, v{vZw}
    v_add_u32 v{vZw}, {ZC}, v{vZw}
    v_lshrrev_b32 v{vTmp}, 3, v{vLane}
    v_lshlrev_b32 v{vZl}, 9, v{vTmp}
    v_and_b32 v{vTmp}, 7, v{vLane}
    v_lshl_add_u32 v{vZl}, v{vTmp}, 13, v{vZl}
    v_add_u32 v{vKr}, {KVF}, v{vSt}
    s_mov_b32 s{cEps}, {f2u(1e-6):#x}
    s_mov_b32 s{sC}, 0
    s_mov_b32 s{sRd}, 0
    s_mov_b32 s{sRdN}, {CH}
    s_mov_b32 s{sWr}, {3*CH}
    v_mov_b32 v{vRd}, v{vSt}
    v_add_u32 v{vRdN}, {CH}, v{vSt}
    """)
    for r in range(16):
        a(f"v_mov_b32 v{O+r}, 0")
    for r in range(4):
        a(f"v_mov_b32 v{LS+r}, 0")
    for r in range(8):
        a(f"v_mov_b32 v{S[1]+8+r}, 0")
    for r in range(4):
        a(f"v_mov_b32 v{VB[1]+4+r}, 0")
    a(f"v_mov_b32 v{vIx}, 0xdddddddd")
    a(f"""
    {'s_memtime s[66:67]' if st else ''}
    s_waitcnt vmcnt({after('qa')})
    {'s_memtime s[68:69]' if st else ''}
    s_barrier
    {'s_memtime s[52:53]' if st else ''}
    """)
    for u in range(2):
        a(f"ds_read_b128 {vr(KB[0]+4*u,4)}, v{vSt} offset:{u*1024}")
    for u in range(2):
        a(f"ds_read_b128 {vr(KB[1]+4*u,4)}, v{vSt} offset:{4096+u*1024}")
    for u in range(2):
        a(f"ds_read_b128 {vr(VB[0]+4*u,4)}, v{vSt} offset:{2048+u*1024}")
    s0 = S[0]
    for j in range(2): dma1(j, 'c1')
    a(f"""
    s_waitcnt lgkmcnt(4)
    v_mfma_f32_32x32x16_bf16 {vr(s0,16)}, {vr(KB[0],4)}, {vr(Q,4)}, 0
    v_mfma_f32_32x32x16_bf16 {vr(s0,16)}, {vr(KB[0]+4,4)}, {vr(Q+4,4)}, {vr(s0,16)}
    """)
    for j in range(2, 4): dma1(j, 'c1')
    a(f"""
    s_add_u32 m0, s{sM0off}, {2*CH}
    s_nop 8
    """)
    a(f"v_max3_f32 v{vTmp}, v{s0}, v{s0+1}, v{s0+2}")
    a(f"v_max3_f32 v{vTmp2}, v{s0+3}, v{s0+4}, v{s0+5}")
    for r in range(6, 14, 4):
        a(f"v_max3_f32 v{vTmp}, v{vTmp}, v{s0+r}, v{s0+r+1}")
        a(f"v_max3_f32 v{vTmp2}, v{vTmp2}, v{s0+r+2}, v{s0+r+3}")
    a(f"""
    v_max3_f32 v{vTmp}, v{vTmp}, v{s0+14}, v{s0+15}
    v_max_f32 v{vTmp}, v{vTmp}, v{vTmp2}
    v_mov_b32 v{vTmp2}, v{vTmp}
    s_nop 1
    v_permlane32_swap_b32 v{vTmp}, v{vTmp2}
    s_nop 1
    v_max_f32 v{vTmp}, v{vTmp}, v{vTmp2}
    """)
    for j in range(2): dma1(j, 'c2')
    for r in range(16):
        a(f"v_sub_f32 v{C+r}, 0, v{vTmp}")
    for r in range(16):
        a(f"v_sub_f32 v{s0+r}, v{s0+r}, v{vTmp}")

    OB, DEN = KP, KP + 16
    ZR = KP + 16
    def s_wo():
        a(f"s_mov_b32 m0, s{sWoM}")
        a("s_nop 0")
        a(f"buffer_load_dwordx4 v{vWo}, s[8:11], s{sWoS} offen lds")
        a(f"buffer_load_dwordx4 v{vWo}, s[8:11], s{sWoS+1} offen offset:1024 lds")
    def s_kvp(m):
        for mm in (m, m + 1):
            a(f"buffer_load_dwordx4 {vr(KP+4*mm,4)}, v{vKp}, s[12:15], s{sKvp} offen")
            a(f"s_add_u32 s{sKvp}, s{sKvp}, 16384")
    def s_pq():
        for u in range(2):
            a(f"buffer_load_dwordx4 {vr(QBR+4*u,4)}, v{vSt}, s[12:15], s{sQB} offen offset:{u*1024}")
    def s_zld(t):
        a(f"s_cmp_lg_u32 s{sW}, 0")
        a(f"s_cbranch_scc1 k2_back_{t}")
        a(f"buffer_load_dwordx4 {vr(ZR,4)}, v{vZl}, s[12:15], s{sZ} offen")
    def wotr(i):
        nb, rd = i >> 1, i & 1
        a(f"ds_read_b64_tr_b16 {vr(WF+4*nb+2*rd,2)}, v{vWr} offset:{nb*64+rd*1024}")
    def s_wost():
        a(f"buffer_store_dwordx4 {vr(WF,4)}, v{vWs}, s[12:15], s{sWoD} offen")
        a(f"buffer_store_dwordx4 {vr(WF+4,4)}, v{vWs}, s[12:15], s{sWoD2} offen")
    def add4(d, x):
        for r in range(4):
            a(f"v_add_f32 v{KP+4*d+r}, v{KP+4*d+r}, v{KP+4*x+r}")
    def s_red(n, t):
        a(f"s_waitcnt vmcnt({n})")
        add4(0, 1); add4(2, 3); add4(0, 2)
        wotr(0); wotr(1)
        a(f"v_permlane32_swap_b32 v{KP}, v{KP+2}")
        a(f"v_permlane32_swap_b32 v{KP+1}, v{KP+3}")
        wotr(2); wotr(3)
        a(f"v_add_f32 v{KP}, v{KP}, v{KP+2}")
        a(f"v_add_f32 v{KP+1}, v{KP+1}, v{KP+3}")
        a(f"s_cmp_lg_u32 s{sW}, 0")
        a(f"v_cvt_pk_bf16_f32 v{KP+4}, v{KP}, v{KP+1}")
        a(f"ds_write_b32 v{vKw}, v{KP+4}")
        a(f"s_cbranch_scc1 k2_back_{t}")
        for dpp in ("quad_perm:[1,0,3,2]", "quad_perm:[2,3,0,1]", "row_half_mirror"):
            for r in range(4):
                a(f"v_add_f32_dpp v{ZR+r}, v{ZR+r}, v{ZR+r} {dpp} row_mask:0xf bank_mask:0xf")
        a(f"v_cvt_pk_bf16_f32 v{ZR+4}, v{ZR}, v{ZR+1}")
        a(f"v_cvt_pk_bf16_f32 v{ZR+5}, v{ZR+2}, v{ZR+3}")
        a(f"ds_write_b64 v{vZw}, {vr(ZR+4,2)}")
    def s_kf():
        for f in range(2):
            a(f"ds_read_b128 {vr(KF+4*f,4)}, v{vKr} offset:{f*1024}")
        for f in range(2):
            a(f"ds_read_b128 {vr(KF+8+4*f,4)}, v{vZr} offset:{f*32}")
    def s_mm(h):
        a(f"v_mfma_f32_32x32x16_bf16 {vr(OB,16)}, {vr(KF+4*h,4)}, {vr(QBR+4*h,4)}, {vr(OB,16) if h else 0}")
        a(f"v_mfma_f32_32x32x16_bf16 {vr(DEN,16)}, {vr(KF+8+4*h,4)}, {vr(QBR+4*h,4)}, {vr(DEN,16) if h else 0}")
    def s_norm():
        a(f"v_add_f32 v{vT3}, s{cEps}, v{DEN}")
        a(f"v_rcp_f32 v{vT3}, v{vT3}")
        a("s_nop 0")
        for r in range(16):
            a(f"v_mul_f32 v{OB+r}, v{OB+r}, v{vT3}")
        for r in range(8):
            a(f"v_cvt_pk_bf16_f32 v{QBR+r}, v{OB+2*r}, v{OB+2*r+1}")
        for u in range(2):
            a(f"buffer_store_dwordx4 {vr(QBR+4*u,4)}, v{vSt}, s[12:15], s{sOutB} offen offset:{u*1024}")
    G = 1 if GOFF else 0
    SIDE = {
        (0, 4): [s_wo, lambda: s_kvp(0)],
        (0, 7): [lambda: s_kvp(2), s_pq, lambda: s_zld(7)],
        (2, 0): [lambda: s_red(5, 0)],
        (2+G, 6): [s_kf, s_wost],
        (3+G, 1): [lambda: s_mm(0), lambda: s_mm(1)],
        (3+G, 3): [s_norm],
    }
    HOOKS = {t: c for (c, t) in SIDE}
    assert len(HOOKS) == len(SIDE)
    def side_blocks():
        for t in range(8 if RAMP else 0):
            a.label(f"k2_ramp_{t}")
            for c, n in enumerate(RAMP):
                a(f"s_cmp_eq_u32 s{sC}, {c}")
                a(f"s_cbranch_scc0 k2_ramp_{t}_{c}")
                a(f"s_sleep {n}")
                a.label(f"k2_ramp_{t}_{c}")
            a(f"s_branch k2_rampb_{t}")
        for (c, t) in sorted(SIDE):
            a.label(f"k2_side_{t}")
            for f in SIDE[(c, t)]: f()
            a(f"s_branch k2_back_{t}")

    def mS(t, h):
        sb = S[(t + 1) & 1]; kn = KB[(t + 1) & 1]
        return f"v_mfma_f32_32x32x16_bf16 {vr(sb,16)}, {vr(kn+4*h,4)}, {vr(Q+4*h,4)}, {vr(C if h == 0 else sb,16)}"
    def mO(t, h):
        return f"v_smfmac_f32_32x32x32_bf16 {vr(O,16)}, {vr(VB[t&1]+4*h,4)}, {vr(S[t&1]+8*h,8)}, v{vIx}"
    def mL(t, h):
        return f"v_smfmac_f32_16x16x64_bf16 {vr(LS,4)}, {vr(SEL,4)}, {vr(S[t&1]+8*h,8)}, v{vIx}"

    def chunk(c):
        for t in range(8):
            sa = S[t & 1]
            kl = KB[t & 1]
            vl = VB[t & 1]
            P = PB[t & 1]
            ex = [f"v_exp_f32 v{sa+r}, v{sa+r}" for r in range(16)]
            cv = [f"v_cvt_pk_bf16_f32 v{P+r}, v{sa+2*r}, v{sa+2*r+1}" for r in range(8)]
            if t == 6:
                n = 4 if c is None else after(f'c{c+1}')
                a(f"s_waitcnt vmcnt({n}) lgkmcnt(0)")
                if not ('nobar' in DBG and c is None): a("s_barrier")
            else:
                a("s_waitcnt lgkmcnt(0)")
            if 'cst' in DBG and t in (0, 4):
                a(f"s_lshl_b32 s72, s{sC}, 1")
                if t == 4: a("s_add_u32 s72, s72, 1")
                a(f"v_cmp_eq_u32_e64 s[74:75], s72, v{vLane}")
                a(f"v_mov_b32 v{vCs+1}, s70")
                a("s_nop 3")
                a(f"v_cndmask_b32_e64 v{vCs}, v{vCs}, v{vCs+1}, s[74:75]")
            if 'cst' in DBG and t in (3, 7):
                a("s_memrealtime s[70:71]" if 'rt' in DBG else "s_memtime s[70:71]")
            a(ex[0]); a(ex[1])
            a(mO(t - 1, 1))
            if t == 6:
                a(f"s_add_u32 m0, s{sWr}, s{sM0off}")
                a(f"s_cmp_lt_u32 s{sC}, 5")
                a(f"s_cselect_b32 s6, s{sSize}, 0")
            for u in range(2):
                tt = t + 2
                a(f"ds_read_b128 {vr(kl+4*u,4)}, v{vRd if tt < 8 else vRdN} offset:{(tt & 7)*4096+u*1024}")
            for x in ex[2:5]: a(x)
            a(mL(t - 1, 1))
            if t in (6, 7):
                dma1(t - 6, 'cl')
            elif t in (0, 1):
                dma1(t + 2, 'cl')
            for x in ex[5:7]: a(x)
            a(mS(t, 0))
            for u in range(2):
                tt = t + 1
                a(f"ds_read_b128 {vr(VB[tt&1]+4*u,4)}, v{vRd if tt < 8 else vRdN} offset:{(tt & 7)*4096+2048+u*1024}")
            for x in ex[7:10]: a(x)
            a(mS(t, 1))
            for x in ex[10:13]: a(x)
            a(mO(t, 0))
            for x in ex[13:16]: a(x)
            a(mL(t, 0))
            if RAMP:
                a(f"s_cmp_lt_u32 s{sC}, {len(RAMP)}")
                a(f"s_cbranch_scc1 k2_ramp_{t}")
                a.label(f"k2_rampb_{t}")
            if t in HOOKS:
                a(f"s_cmp_eq_u32 s{sC}, s{sHk+HOOKS[t]}")
                a(f"s_cbranch_scc1 k2_side_{t}")
                a.label(f"k2_back_{t}")
            if t == 7:
                a(f"""
                s_mov_b32 s{sWr}, s{sRd}
                s_mov_b32 s{sRd}, s{sRdN}
                s_add_u32 s{sRdN}, s{sRdN}, {CH}
                s_and_b32 s{sRdN}, s{sRdN}, {NCH*CH-1}
                v_mov_b32 v{vRd}, v{vRdN}
                v_add_u32 v{vRdN}, s{sRdN}, v{vSt}
                s_add_u32 s{sC}, s{sC}, 1
                """)
    if 'lst' in DBG: a('s_memtime s[52:53]')
    if 'cst' in DBG: a("s_memrealtime s[70:71]" if 'rt' in DBG else "s_memtime s[70:71]")
    a.label("k2_loop")
    chunk(None)
    a(f"s_cmp_lt_u32 s{sC}, 8")
    a("s_cbranch_scc1 k2_loop")
    a("s_nop 0")
    a(mO(7, 1)); a(mL(7, 1))
    if st: a('s_memtime s[54:55]')
    P = PB[0]
    a(f"""
    s_mov_b32 s{t0}, {f2u(2.0**40):#x}
    s_nop 8
    v_cmp_nle_f32 vcc, v{LS}, s{t0}
    s_cbranch_vccnz k2_fallback
    """)
    a.label("k2_fin")
    a(f"""
    v_rcp_f32 v{vTmp}, v{LS}
    s_nop 0
    """)
    for r in range(16):
        a(f"v_mul_f32 v{O+r}, v{O+r}, v{vTmp}")
    for r in range(8):
        a(f"v_cvt_pk_bf16_f32 v{P+r}, v{O+2*r}, v{O+2*r+1}")
    for u in range(2):
        a(f"buffer_store_dwordx4 {vr(P+4*u,4)}, v{vSt}, s[12:15], s{sOut} offen offset:{u*1024}")
    if st:
        a(f'''
        s_waitcnt vmcnt(0)
        s_memtime s[56:57]
        s_memrealtime s[60:61]
        s_waitcnt lgkmcnt(0)
        s_lshl_b32 s{t0}, s2, 3
        s_add_u32 s{t0}, s{t0}, s{sW}
        s_lshl_b32 s{t0}, s{t0}, 6
        s_add_u32 s{t0}, s{t0}, {65*MB}
        v_mov_b32 v20, s50
        v_mov_b32 v21, s52
        v_mov_b32 v22, s54
        v_mov_b32 v23, s56
        v_mov_b32 v24, s58
        v_mov_b32 v25, s60
        v_mov_b32 v26, s62
        v_mov_b32 v27, s64
        v_mov_b32 v28, 0
        v_mov_b32 v32, s66
        v_mov_b32 v33, s68
        buffer_store_dwordx4 v[20:23], v28, s[12:15], s{t0} offen
        buffer_store_dwordx4 v[24:27], v28, s[12:15], s{t0} offen offset:16
        buffer_store_dwordx2 v[32:33], v28, s[12:15], s{t0} offen offset:32
        s_add_u32 s{t0}, s{t0}, {2*MB}
        v_and_b32 v28, 15, v{vLane}
        v_lshlrev_b32 v28, 2, v28
        s_mov_b64 exec, 0xffff
        buffer_store_dword v{vCs}, v28, s[12:15], s{t0} offen
        ''')
    a.label(end)
    a("s_endpgm")
    side_blocks()
    a.label("k2_fallback")
    k0, v0_ = KB[0], VB[0]
    a(f"""
    s_waitcnt vmcnt(0) lgkmcnt(0)
    s_lshl_b32 s{sKv}, s{sH}, 18
    s_add_u32 s{sKv}, s{sKv}, {WS_KV}
    s_mov_b32 s{t1}, s{sKv}
    s_mov_b32 s{sC}, 0
    v_mov_b32 v{vTmp}, 0xff800000
    """)
    a.label("k2_fb1")
    for u in range(2):
        a(f"buffer_load_dwordx4 {vr(k0+4*u,4)}, v{vSt}, s[12:15], s{t1} offen offset:{u*1024}")
    a(f"""
    s_waitcnt vmcnt(0)
    v_mfma_f32_32x32x16_bf16 {vr(s0,16)}, {vr(k0,4)}, {vr(Q,4)}, 0
    v_mfma_f32_32x32x16_bf16 {vr(s0,16)}, {vr(k0+4,4)}, {vr(Q+4,4)}, {vr(s0,16)}
    s_nop 15
    """)
    for r in range(0, 16, 2):
        a(f"v_max3_f32 v{vTmp}, v{vTmp}, v{s0+r}, v{s0+r+1}")
    a(f"""
    s_add_u32 s{t1}, s{t1}, 4096
    s_add_u32 s{sC}, s{sC}, 1
    s_cmp_lt_u32 s{sC}, 64
    s_cbranch_scc1 k2_fb1
    v_mov_b32 v{vTmp2}, v{vTmp}
    s_nop 1
    v_permlane32_swap_b32 v{vTmp}, v{vTmp2}
    s_nop 1
    v_max_f32 v{vTmp}, v{vTmp}, v{vTmp2}
    """)
    for r in range(16):
        a(f"v_sub_f32 v{C+r}, 0, v{vTmp}")
    for r in range(16):
        a(f"v_mov_b32 v{O+r}, 0")
    for r in range(4):
        a(f"v_mov_b32 v{LS+r}, 0")
    a(f"""
    s_mov_b32 s{t1}, s{sKv}
    s_mov_b32 s{sC}, 0
    """)
    a.label("k2_fb2")
    for u in range(2):
        a(f"buffer_load_dwordx4 {vr(k0+4*u,4)}, v{vSt}, s[12:15], s{t1} offen offset:{u*1024}")
    for u in range(2):
        a(f"buffer_load_dwordx4 {vr(v0_+4*u,4)}, v{vSt}, s[12:15], s{t1} offen offset:{2048+u*1024}")
    a(f"""
    s_waitcnt vmcnt(0)
    v_mfma_f32_32x32x16_bf16 {vr(s0,16)}, {vr(k0,4)}, {vr(Q,4)}, {vr(C,16)}
    v_mfma_f32_32x32x16_bf16 {vr(s0,16)}, {vr(k0+4,4)}, {vr(Q+4,4)}, {vr(s0,16)}
    s_nop 15
    """)
    for r in range(16):
        a(f"v_exp_f32 v{s0+r}, v{s0+r}")
    a(f"""
    s_nop 2
    {mO(0, 0)}
    {mL(0, 0)}
    {mO(0, 1)}
    {mL(0, 1)}
    s_add_u32 s{t1}, s{t1}, 4096
    s_add_u32 s{sC}, s{sC}, 1
    s_cmp_lt_u32 s{sC}, 64
    s_nop 7
    s_cbranch_scc1 k2_fb2
    s_nop 7
    s_branch k2_fin
    """)
    return name, NV
```

```python
from asmlib import *
import struct

def f2u(x):
    return struct.unpack("<I", struct.pack("<f", x))[0]

LOG2E = 1.4426950408889634
QSCALE = (32 ** -0.5) * LOG2E

XSLOT = 32768
NXS = 3
WBASE = XSLOT * NXS
WSLOT = 12288
NWS = 5
K1_LDS = WBASE + WSLOT * NWS

import os
DBG = os.environ.get('K1DBG', '')
PFP = int(os.environ.get('PFP', '5'))
PFT = int(os.environ.get('PFT', '1'))
PFDELAY = int(os.environ.get('PFDELAY', '0'))
PFC = int(os.environ.get('PFC', '3'))
PFCI = int(os.environ.get('PFCI', '25'))
PHASE = [int(x) for x in os.environ.get('K1PHASE', '1,2').split(',') if x]
PF3POS = int(os.environ.get('PF3POS', '2'))
DIST = int(os.environ.get('K1DIST', '4'))
MAP = int(os.environ.get('K1MAP', '3'))
CPOS = int(os.environ.get('K1CPOS', '1'))
PFS = int(os.environ.get('PFS', '2'))
SPREAD = int(os.environ.get('K1SPREAD', '1'))
PFM = int(os.environ.get('PFM', '1'))
PD = int(os.environ.get('K1PD', '4'))
QORD = int(os.environ.get('K1QORD', '1'))
ROT = int(os.environ.get('K1ROT', '0'))
def gen_k1(a):
    name = "qkv_kernel"
    kernel_head(a, name)
    vLane, vTmp, vTmp2 = 1, 2, 3
    vLd = 4
    vXb0, vLd2, vWb = 5, 6, 7
    vXa0, vXa1, vWa = 8, 9, 10
    vSt = 11
    vPfA, vPfB, vPfD = 12, 13, 14
    sPf, sPfInc = 37, 38
    F = 16
    def XF(s, mb, tb): return F + s * 40 + (mb * 2 + tb) * 4
    def WF(s, t, db): return F + s * 40 + 16 + (t * 2 + db) * 4
    ACC = 96
    def AC(mb, t): return ACC + (mb * 3 + t) * 16
    NV = 194 if 'cst' in DBG else 192
    sLd = 4
    sWS = 12
    sSo = 62
    sXr, sXw, sM0off2 = 16, 17, 18
    sInc, sRd, sWr, sM0off, sI, sSize = 20, 21, 22, 23, 24, 25
    sPart, sMt, sNt, sW, sWm, sWn, sH = 26, 27, 28, 29, 30, 31, 32
    t0, t1, t2, t3 = 33, 34, 35, 36
    end = "k1_end"
    sStep, sHalf, sA, sB, sAdv = 40, 41, 42, 43, 39
    ST = 'stamp' in DBG
    MAPC = "s_mov_b32 s3, s2"
    if MAP:
        MAPC = f'''s_and_b32 s{t0}, s2, 1
        s_xor_b32 s{t0}, s{t0}, {MAP & 1}
        s_lshl_b32 s{t0}, s{t0}, 2
        s_bfe_u32 s{t1}, s2, 0x10002
        s_and_b32 s3, s2, 2
        s_or_b32 s3, s3, s{t0}
        s_or_b32 s3, s3, s{t1}'''
    MAPC += f'''
    s_and_b32 s{t0}, s3, 7
    s_lshr_b32 s{t1}, s2, 3
    s_lshr_b32 s{sPart}, s{t0}, 2
    s_bfe_u32 s{t2}, s{t0}, 0x10001
    s_lshl_b32 s{t2}, s{t2}, 2
    s_lshr_b32 s{t3}, s{t1}, 3
    s_add_u32 s{sMt}, s{t2}, s{t3}
    s_and_b32 s{t2}, s{t0}, 1
    s_lshl_b32 s{t2}, s{t2}, 3
    s_and_b32 s{t3}, s{t1}, 7
    s_add_u32 s{sNt}, s{t2}, s{t3}'''
    if MAP in (2, 3):
        assert PFM == 1
        MAPC = f'''s_bfe_u32 s{sPart}, s2, {0x10007 if MAP == 2 else 0x10003}
        s_and_b32 s{t0}, s2, 1
        s_lshl_b32 s{t0}, s{t0}, 2
        s_bfe_u32 s{t1}, s2, {0x20005 if MAP == 2 else 0x20006}
        s_add_u32 s{sMt}, s{t0}, s{t1}
        s_and_b32 s{t0}, s2, 6
        s_lshl_b32 s{t0}, s{t0}, 1
        s_bfe_u32 s{t1}, s2, {0x20003 if MAP == 2 else 0x20004}
        s_add_u32 s{sNt}, s{t0}, s{t1}'''
    if MAP >= 4:
        BM = {4: ([3], [7, 0, 1], [4, 5, 6, 2]), 5: ([3], [5, 6, 7], [4, 0, 1, 2]), 6: ([3], [6, 7, 2], [4, 5, 0, 1]),
              7: ([3], [4, 5, 0], [6, 7, 1, 2]), 8: ([4], [6, 7, 0], [3, 5, 1, 2]), 9: ([3], [6, 7, 1], [4, 5, 0, 2])}[MAP]
        L = []
        for dst, bits in zip((sPart, sMt, sNt), BM):
            for i, b in enumerate(bits):
                if i == 0: L.append(f"s_bfe_u32 s{dst}, s2, {0x10000 + b}")
                else:
                    L.append(f"s_bfe_u32 s{t0}, s2, {0x10000 + b}")
                    L.append(f"s_lshl_b32 s{t0}, s{t0}, {i}")
                    L.append(f"s_or_b32 s{dst}, s{dst}, s{t0}")
        MAPC = "\n".join(L)
    a(f"""
    s_cmp_ge_u32 s2, 256
    s_cbranch_scc1 {end}
    {'s_memtime s[50:51]' if ST else ''}
    {'s_memrealtime s[58:59]' if ST else ''}
    s_load_dwordx4 s[80:83], s[0:1], 0
    s_load_dwordx4 s[84:87], s[0:1], 24
    s_load_dwordx2 s[12:13], s[0:1], 64
    v_lshrrev_b32 v{vTmp}, 6, v0
    v_and_b32 v{vLane}, 63, v0
    {MAPC}
    v_readfirstlane_b32 s{sW}, v{vTmp}
    s_and_b32 s{sWm}, s{sW}, 3
    s_lshr_b32 s{sWn}, s{sW}, 2
    s_mov_b32 s7, 0x00020000
    s_cmp_lg_u32 s{sW}, 7
    s_cbranch_scc1 k1_ld_setup
    s_getpc_b64 s[44:45]
    k1_pc:
    s_sub_u32 s44, s44, k1_pc-qkv_kernel
    s_subb_u32 s45, s45, 0
    v_lshlrev_b32 v{vPfD}, 7, v{vLane}
    global_load_dword v15, v{vPfD}, s[44:45]
    v_add_u32 v{vTmp}, 8192, v{vPfD}
    v_min_u32 v{vTmp}, text_end-qkv_kernel-4, v{vTmp}
    global_load_dword v15, v{vTmp}, s[44:45]
    s_branch k1_pf_setup
    k1_ld_setup:
    s_lshl_b32 s{t0}, s{sMt}, 19
    s_lshl_b32 s{t1}, s{sW}, 17
    s_add_u32 s{t0}, s{t0}, s{t1}
    s_lshl_b32 s{t1}, s{sNt}, 7
    s_lshl_b32 s{t2}, s{sWm}, 11
    s_add_u32 s{t1}, s{t1}, s{t2}
    s_lshl_b32 s{t2}, s{sW}, 13
    s_lshl_b32 s{t3}, s{sWm}, 12
    s_add_u32 s{t3}, s{t3}, {WBASE}
    s_cmp_lt_u32 s{sW}, 4
    s_cselect_b32 s{sSo}, s{t0}, s{t1}
    s_cselect_b32 s{sM0off}, s{t2}, s{t3}
    s_cselect_b32 s{t0}, 1, 3
    s_cselect_b32 s{sB}, 4, 3
    s_cselect_b32 s{sAdv}, 1, 3072
    s_cselect_b32 s{sSize}, 2, 3
    s_cselect_b32 s{t1}, 3, 1
    s_cselect_b32 s{t2}, 0, 2
    s_cselect_b32 s{t3}, 64, 32
    s_lshl_b32 s{sStep}, s{t0}, 14
    s_sub_u32 s{sStep}, s{sStep}, 1024
    s_lshl_b32 s{sHalf}, s{t0}, 16
    s_lshl_b32 s{sA}, s{t0}, 12
    s_lshl_b32 s{sB}, s{sB}, 13
    s_lshl_b32 s{sAdv}, s{sAdv}, 7
    s_lshl_b32 s{sSize}, s{sSize}, 21
    s_lshl_b32 s{t0}, s{t0}, 11
    v_lshrrev_b32 v{vTmp}, 3, v{vLane}
    v_mul_u32_u24 v{vLd}, s{t0}, v{vTmp}
    v_lshrrev_b32 v{vTmp}, 4, v{vLane}
    v_and_b32 v{vTmp}, s{t1}, v{vTmp}
    v_lshlrev_b32 v{vTmp}, s{t2}, v{vTmp}
    v_and_b32 v{vTmp2}, 7, v{vLane}
    v_xor_b32 v{vTmp}, v{vTmp}, v{vTmp2}
    v_lshlrev_b32 v{vTmp}, 4, v{vTmp}
    v_add_u32 v{vLd}, v{vLd}, v{vTmp}
    v_xor_b32 v{vLd2}, s{t3}, v{vLd}
    s_add_u32 s{sSo+1}, s{sSo}, s{sStep}
    s_add_u32 s{sSo+2}, s{sSo+1}, s{sStep}
    s_add_u32 s{sSo+3}, s{sSo+2}, s{sStep}
    s_add_u32 s{sSo+4}, s{sSo}, s{sHalf}
    s_add_u32 s{sSo+5}, s{sSo+1}, s{sHalf}
    s_add_u32 s{sSo+6}, s{sSo+2}, s{sHalf}
    s_add_u32 s{sSo+7}, s{sSo+3}, s{sHalf}
    s_mov_b32 s6, s{sSize}
    s_mov_b32 m0, s{sM0off}
    {'s_memtime s[70:71]' if ST else ''}
    s_waitcnt lgkmcnt(0)
    {'s_memtime s[72:73]' if ST else ''}
    s_cmp_eq_u32 s{sPart}, 0
    s_cselect_b32 s80, s80, s84
    s_cselect_b32 s81, s81, s85
    s_cselect_b32 s82, s82, s86
    s_cselect_b32 s83, s83, s87
    s_cmp_lt_u32 s{sW}, 4
    s_cselect_b32 s4, s80, s82
    s_cselect_b32 s5, s81, s83
    """)

    def dma(role, half=0):
        L = []
        if role == 2:
            return L
        for j in range(4):
            L.append(f"buffer_load_dwordx4 v{vLd2 if j & 1 else vLd}, s[4:7], s{sSo+4*half+j} offen offset:{j*1024} lds")
        if half:
            L.append(f"v_add_u32 v{vLd}, s{sAdv}, v{vLd}")
            L.append(f"v_add_u32 v{vLd2}, s{sAdv}, v{vLd2}")
        return L

    def common():
        a(f"""
        s_lshl_b32 s{sH}, s{sNt}, 1
        s_add_u32 s{sH}, s{sH}, s{sWn}
        s_mov_b32 s14, {WS_SIZE}
        s_mov_b32 s15, 0x00020000
        v_lshlrev_b32 v{vSt}, 4, v{vLane}
        """)
        a(f"""
        v_and_b32 v{vTmp}, 15, v{vLane}
        s_lshl_b32 s{t0}, s{sWm}, 13
        v_lshlrev_b32 v{vTmp}, 7, v{vTmp}
        v_add_u32 v{vTmp}, s{t0}, v{vTmp}
        v_lshrrev_b32 v{vTmp2}, 4, v{vLane}
        v_bfe_u32 v{vXb0}, v{vLane}, 1, 3
        v_xor_b32 v{vTmp2}, v{vTmp2}, v{vXb0}
        v_lshlrev_b32 v{vTmp2}, 4, v{vTmp2}
        v_add_u32 v{vXb0}, v{vTmp}, v{vTmp2}
        """)
        a(f"""
        v_lshrrev_b32 v{vTmp}, 4, v{vLane}
        v_lshlrev_b32 v{vWb}, 10, v{vTmp}
        v_bfe_u32 v{vTmp}, v{vLane}, 2, 2
        v_lshlrev_b32 v{vTmp}, 7, v{vTmp}
        v_add_u32 v{vWb}, v{vWb}, v{vTmp}
        v_bfe_u32 v{vTmp}, v{vLane}, 3, 1
        v_xor_b32 v{vTmp}, s{sWn}, v{vTmp}
        v_lshlrev_b32 v{vTmp}, 6, v{vTmp}
        v_add_u32 v{vWb}, v{vWb}, v{vTmp}
        v_bfe_u32 v{vTmp}, v{vLane}, 4, 1
        v_lshlrev_b32 v{vTmp}, 5, v{vTmp}
        v_add_u32 v{vWb}, v{vWb}, v{vTmp}
        v_and_b32 v{vTmp}, 3, v{vLane}
        v_lshlrev_b32 v{vTmp}, 3, v{vTmp}
        v_add_u32 v{vWb}, v{vWb}, v{vTmp}
        v_add_u32 v{vWb}, {WBASE}, v{vWb}
        """)
        for r in range(96):
            a(f"v_mov_b32 v{ACC + r}, 0")
        a(f"""
        s_add_u32 s{sM0off2}, s{sM0off}, 4096
        s_mov_b32 s{sRd}, 0
        s_mov_b32 s{sI}, 0
        s_mov_b32 s{sXr}, 0
        s_mov_b32 s{sXw}, {(DIST // 2)*XSLOT}
        s_mov_b32 s{sWr}, {(DIST % NWS)*WSLOT}
        v_mov_b32 v{vXa0}, v{vXb0}
        v_mov_b32 v{vWa}, v{vWb}
        v_xor_b32 v{vXa1}, 32, v{vWb}
        """)

    PG = min(DIST, int(os.environ.get('K1PG', '4')))
    for g in range(PG):
        for d in dma(0, g & 1): a(d)
        if g == PG - 1 and PG < DIST:
            assert PG == 4 and DIST == 5
            a(f"s_add_u32 s48, s48, s{sB}")
            a(f"s_mov_b32 m0, s48")
        if g < PG - 1:
            if g & 1:
                a(f"s_add_u32 s48, s{sM0off}, s{sB}" if g == 1 else f"s_add_u32 s48, s48, s{sB}")
                a(f"s_mov_b32 m0, s48")
            else:
                a(f"s_add_u32 m0, m0, s{sA}")
            if g == CPOS: common()
            a("s_barrier" if g in PHASE else "s_nop 0")
    if ST: a('s_memtime s[74:75]')
    a("s_mov_b32 s47, 0")
    a("s_branch k1_common")

    a.label("k1_pf_setup")
    if PFM == 0:
        a(f"""
        v_and_b32 v{vTmp}, 31, v{vLane}
        v_lshlrev_b32 v{vPfA}, 11, v{vTmp}
        v_lshrrev_b32 v{vTmp}, 5, v{vLane}
        v_lshlrev_b32 v{vTmp}, 10, v{vTmp}
        v_add_u32 v{vPfA}, v{vPfA}, v{vTmp}
        s_bfe_u32 s{t0}, s3, 0x10001
        s_lshl_b32 s{t0}, s{t0}, 21
        s_lshr_b32 s{t1}, s2, 3
        s_lshl_b32 s{t2}, s{t1}, 16
        s_add_u32 s{sPf}, s{t0}, s{t2}
        v_lshlrev_b32 v{vPfB}, 11, v{vLane}
        v_min_u32 v{vTmp}, 31, v{vLane}
        v_add_u32 v{vTmp}, 64, v{vTmp}
        v_lshlrev_b32 v{vTmp2}, 11, v{vTmp}
        s_mul_i32 s{sPfInc}, s{t1}, {96*2048}
        s_and_b32 s{t0}, s3, 1
        s_lshl_b32 s{t0}, s{t0}, 10
        s_add_u32 s{sPfInc}, s{sPfInc}, s{t0}
        s_mov_b32 s6, {2048*2048}
        s_mov_b32 s10, {1024*6144}
        s_mov_b32 s11, 0x00020000
        s_mov_b32 s47, 1
        s_waitcnt lgkmcnt(0)
        s_cmp_eq_u32 s{sPart}, 0
        s_cselect_b32 s4, s80, s84
        s_cselect_b32 s5, s81, s85
        s_cselect_b32 s8, s82, s86
        s_cselect_b32 s9, s83, s87
        s_sub_u32 s{t0}, {3*128}, s4
        s_and_b32 s{t0}, s{t0}, {7*128}
        s_add_u32 s{sPf}, s{sPf}, s{t0}
        s_sub_u32 s{t0}, {3*128}, s8
        s_and_b32 s{t0}, s{t0}, {7*128}
        s_add_u32 s{sPfInc}, s{sPfInc}, s{t0}
        v_mov_b32 v{vLd}, v{vTmp2}
        """)
    elif PFM == 2:
        a(f"""
        v_and_b32 v{vTmp}, 31, v{vLane}
        v_lshlrev_b32 v{vPfA}, 11, v{vTmp}
        v_min_u32 v{vTmp}, 47, v{vLane}
        v_subrev_u32 v{vTmp2}, 24, v{vTmp}
        v_cmp_gt_u32 vcc, 24, v{vTmp}
        v_mov_b32 v{vPfB}, 6144
        s_nop 1
        v_cndmask_b32 v{vTmp}, v{vTmp2}, v{vTmp}, vcc
        v_cndmask_b32 v{vPfB}, v{vPfB}, 0, vcc
        v_lshrrev_b32 v{vTmp2}, 3, v{vTmp}
        v_lshl_add_u32 v{vPfB}, v{vTmp2}, 11, v{vPfB}
        v_and_b32 v{vTmp2}, 7, v{vTmp}
        v_lshl_add_u32 v{vPfB}, v{vTmp2}, 7, v{vPfB}
        s_bfe_u32 s{t0}, s3, 0x10001
        s_lshl_b32 s{t0}, s{t0}, 21
        s_lshr_b32 s{t1}, s2, 3
        s_lshl_b32 s{t2}, s{t1}, 16
        s_add_u32 s{sPf}, s{t0}, s{t2}
        s_add_u32 s{sPf}, s{sPf}, {2*128}
        s_mul_i32 s{sPfInc}, s{t1}, {2*6144}
        s_and_b32 s{t0}, s3, 1
        s_lshl_b32 s{t0}, s{t0}, 10
        s_add_u32 s{sPfInc}, s{sPfInc}, s{t0}
        s_add_u32 s{sPfInc}, s{sPfInc}, {2*64*6144}
        s_mov_b32 s6, {2048*2048}
        s_mov_b32 s10, {1024*6144}
        s_mov_b32 s11, 0x00020000
        s_mov_b32 s47, 1
        s_waitcnt lgkmcnt(0)
        s_cmp_eq_u32 s{sPart}, 0
        s_cselect_b32 s4, s80, s84
        s_cselect_b32 s5, s81, s85
        s_cselect_b32 s8, s82, s86
        s_cselect_b32 s9, s83, s87
        """)
    else:
        a(f"""
        v_and_b32 v{vTmp}, 31, v{vLane}
        v_lshlrev_b32 v{vPfA}, 11, v{vTmp}
        v_min_u32 v{vTmp}, 47, v{vLane}
        v_lshlrev_b32 v{vPfB}, 11, v{vTmp}
        s_lshl_b32 s{t1}, s{sMt}, 3
        s_and_b32 s{t2}, s{sNt}, 7
        s_add_u32 s{t1}, s{t1}, s{t2}
        s_lshr_b32 s{t0}, s{sNt}, 3
        s_lshl_b32 s{t0}, s{t0}, 10
        s_lshl_b32 s{sPf}, s{t1}, 16
        s_add_u32 s{sPf}, s{sPf}, s{t0}
        s_mul_i32 s{sPfInc}, s{t1}, {48*2048}
        s_add_u32 s{sPfInc}, s{sPfInc}, s{t0}
        s_mov_b32 s6, {2048*2048}
        s_mov_b32 s10, {1024*6144}
        s_mov_b32 s11, 0x00020000
        s_mov_b32 s42, {2048*2048}
        s_mov_b32 s43, 0x00020000
        s_mov_b32 s66, {1024*6144}
        s_mov_b32 s67, 0x00020000
        s_mov_b32 s47, 1
        s_waitcnt lgkmcnt(0)
        s_mov_b32 s4, s84
        s_mov_b32 s5, s85
        s_mov_b32 s8, s86
        s_mov_b32 s9, s87
        s_mov_b32 s40, s80
        s_mov_b32 s41, s81
        s_mov_b32 s64, s82
        s_mov_b32 s65, s83
        s_sub_u32 s{t0}, {3*128}, s40
        s_and_b32 s{t0}, s{t0}, {7*128}
        s_add_u32 s62, s{sPf}, s{t0}
        s_sub_u32 s{t0}, {3*128}, s64
        s_and_b32 s{t0}, s{t0}, {7*128}
        s_add_u32 s63, s{sPfInc}, s{t0}
        s_sub_u32 s{t0}, {3*128}, s4
        s_and_b32 s{t0}, s{t0}, {7*128}
        s_add_u32 s{sPf}, s{sPf}, s{t0}
        s_sub_u32 s{t0}, {3*128}, s8
        s_and_b32 s{t0}, s{t0}, {7*128}
        s_add_u32 s{sPfInc}, s{sPfInc}, s{t0}
        """)
    a(f"""
    {'s_memtime s[70:71]' if ST else ''}
    {'s_memtime s[72:73]' if ST else ''}
    {'s_memtime s[74:75]' if ST else ''}
    """)
    a(f"s_mov_b32 s{sM0off}, 0")
    common()
    def pfx():
        return [f"buffer_load_dword v15, v{vPfA}, s[4:7], s{sPf} offen", f"s_add_u32 s{sPf}, s{sPf}, 128"]
    def pfw():
        return [f"buffer_load_dword v15, v{vPfB}, s[8:11], s{sPfInc} offen", f"s_add_u32 s{sPfInc}, s{sPfInc}, {64*6144}"]
    def pf3():
        if PFM == 2:
            for sl in range(2, PD):
                for x in pfx() + pfw(): a(x)
        elif PFM == 0:
            a(f"""
            buffer_load_dword v15, v{vPfB}, s[8:11], s{sPfInc} offen
            buffer_load_dword v15, v{vLd}, s[8:11], s{sPfInc} offen
            buffer_load_dword v15, v{vPfA}, s[4:7], s{sPf} offen
            """)
        else:
            lb = a.newlabel("k1_nopf")
            a(f"""
            s_cmp_eq_u32 s{sPart}, 0
            s_cbranch_scc1 {lb}
            buffer_load_dword v15, v{vPfB}, s[64:67], s63 offen
            buffer_load_dword v15, v{vPfA}, s[40:43], s62 offen
            buffer_load_dword v15, v{vPfB}, s[8:11], s{sPfInc} offen
            buffer_load_dword v15, v{vPfA}, s[4:7], s{sPf} offen
            """)
            a.label(lb)
    for ph in range(len(PHASE) + 1):
        if ph == PF3POS:
            if PFDELAY: a(f"s_sleep {PFDELAY}")
            pf3()
        if ph < len(PHASE): a("s_barrier")

    a.label("k1_common")
    a(f"""
    s_cmp_eq_u32 s47, 1
    s_cbranch_scc0 k1_sel_ld
    s_cmp_eq_u32 s{sPart}, 0
    s_cbranch_scc1 k1_main_0_2
    s_branch k1_main_1_2
    """)
    a.label("k1_sel_ld")
    a(f"""
    s_cmp_eq_u32 s{sPart}, 0
    s_cbranch_scc1 k1_sel_0
    s_cmp_lt_u32 s{sW}, 4
    s_cbranch_scc1 k1_main_1_0
    s_branch k1_main_1_1
    """)
    a.label("k1_sel_0")
    a(f"""
    s_cmp_ge_u32 s{sW}, 4
    s_cbranch_scc1 k1_main_0_1
    """)

    vWa1 = vXa1
    def reads(s):
        L = []
        for i in range(4):
            L.append(f"ds_read_b128 {vr(XF(s,i>>1,i&1),4)}, v{vXa0} offset:{i*2048}")
        for t in range(3):
            for db in range(2):
                for rd in range(2):
                    L.append(f"ds_read_b64_tr_b16 {vr(WF(s,t,db)+2*rd,2)}, v{vWa1 if db else vWa} offset:{t*4096+rd*512}")
        return L

    def mfmas(part, s):
        L = []
        for t in range(3):
            for db in range(2):
                for mb in range(2):
                    for tb in range(2):
                        wfirst = (t == 0) or (t == 1 and part == 0)
                        if wfirst:
                            A, B, D = WF(s,t,db), XF(s,mb,tb), AC(mb,t) + tb * 8 + db * 4
                        else:
                            A, B, D = XF(s,mb,tb), WF(s,t,db), AC(mb,t) + db * 8 + tb * 4
                        L.append(f"v_mfma_f32_16x16x32_bf16 {vr(D,4)}, {vr(A,4)}, {vr(B,4)}, {vr(D,4)}")
        return L

    def advance(next_even):
        L = [
            f"s_add_u32 s{sRd}, s{sRd}, {WSLOT}",
            f"s_cmp_eq_u32 s{sRd}, {WSLOT*NWS}",
            f"s_cselect_b32 s{sRd}, 0, s{sRd}",
            f"v_add_u32 v{vWa}, s{sRd}, v{vWb}",
            f"v_xor_b32 v{vWa1}, 32, v{vWa}",
        ]
        if next_even:
            L += [f"v_xor_b32 v{vXa0}, 64, v{vXa0}"]
        else:
            L += [
                f"s_add_u32 s{sXr}, s{sXr}, {XSLOT}",
                f"s_cmp_eq_u32 s{sXr}, {XSLOT*NXS}",
                f"s_cselect_b32 s{sXr}, 0, s{sXr}",
                f"v_add_u32 v{vXa0}, s{sXr}, v{vXb0}",
            ]
        return L

    RPM = int(os.environ.get('K1RPM', '1'))
    PREM = int(os.environ.get('K1PREM', '0'))
    def iteration(part, role, cur):
        M = mfmas(part, cur)
        R = reads(1 - cur)
        half = (cur + DIST) & 1
        D = dma(role, half)
        wv = ""
        if role == 0 and cur == 1: wv = f"vmcnt({4*(DIST-3)})"
        if role == 1: wv = f"vmcnt({4*(DIST-2)})"
        if PREM:
            a("s_waitcnt lgkmcnt(0)")
            for m in range(PREM): a(M[m])
            if wv: a(f"s_waitcnt {wv}")
        else:
            a(f"s_waitcnt {wv} lgkmcnt(0)")
        if not (('hb0' in DBG and cur == 0) or ('hb1' in DBG and cur == 1) or 'nb' in DBG): a("s_barrier")
        dm = [d for d in D if d.startswith('buffer')]
        dv = [d for d in D if not d.startswith('buffer')]
        pos = (2, 8, 14, 20) if role == 0 else (5, 11, 17, 22)
        pos = [max(p, PREM + 1) for p in pos]
        ri = 0
        for m in range(PREM, 24):
            a(M[m])
            if m == PREM:
                if role == 0:
                    a(f"s_add_u32 m0, s{sXw}, s{sM0off2 if half else sM0off}")
                    if half:
                        a(f"s_add_u32 s{sXw}, s{sXw}, {XSLOT}")
                        a(f"s_cmp_eq_u32 s{sXw}, {XSLOT*NXS}")
                        a(f"s_cselect_b32 s{sXw}, 0, s{sXw}")
                elif role == 1:
                    a(f"s_add_u32 m0, s{sWr}, s{sM0off}")
                    a(f"s_add_u32 s{sWr}, s{sWr}, {WSLOT}")
                    a(f"s_cmp_eq_u32 s{sWr}, {WSLOT*NWS}")
                    a(f"s_cselect_b32 s{sWr}, 0, s{sWr}")
                if role < 2:
                    a(f"s_cmp_lt_u32 s{sI}, {0 if 'nd' in DBG else 32-DIST}")
                    a(f"s_cselect_b32 s6, s{sSize}, 0")
            for _ in range(RPM):
                if ri < 16:
                    skip = ('nx' in DBG and ri < 4) or ('nw' in DBG and ri >= 4) or ('hw' in DBG and ri >= 4 and ri & 1)
                    if not skip: a(R[ri])
                    ri += 1
                    if ri == 16:
                        for x in advance(cur == 1): a(x)
                        a(f"s_add_u32 s{sI}, s{sI}, 1")
            while dm and pos[4 - len(dm)] == m:
                a(dm.pop(0))
                if not dm:
                    for d in dv: a(d)
            if role == 2 and m == 8 and PFM == 2:
                a(f"s_cmp_lt_u32 s{sI}, {32-2*PD}")
                a(f"s_cselect_b32 s6, {2048*2048}, 0")
                for x in (pfw() if cur else pfx()): a(x)
            if role == 2 and m == 6 and cur == 1 and PFC:
                a(f"s_cmp_eq_u32 s{sI}, {PFCI}")
                a(f"s_cbranch_scc1 k1_pfc_{part}")
                a.label(f"k1_pfc_back_{part}")
                if PF3POS >= 4:
                    a(f"s_cmp_eq_u32 s{sI}, {2*(PF3POS-4)+1}")
                    a(f"s_cbranch_scc1 k1_pf3_{part}")
                    a.label(f"k1_pf3_back_{part}")
        assert ri == 16 and not dm

    PP = int(os.environ.get('K1PP', '0'))
    PPL = int(os.environ.get('K1PPL', '2'))
    PPO = int(os.environ.get('K1PPO', '0'))
    PPB = int(os.environ.get('K1PPB', '0'))
    def iteration_pp(part, role, cur, first=False):
        M = mfmas(part, cur)
        Mp = mfmas(part, 1 - cur)
        R = reads(1 - cur)
        half = (cur + DIST) & 1
        D = dma(role, half)
        dm = [d for d in D if d.startswith('buffer')]
        dv = [d for d in D if not d.startswith('buffer')]
        S = []
        if role == 0:
            S.append(f"s_add_u32 m0, s{sXw}, s{sM0off2 if half else sM0off}")
            if half:
                S += [f"s_add_u32 s{sXw}, s{sXw}, {XSLOT}", f"s_cmp_eq_u32 s{sXw}, {XSLOT*NXS}", f"s_cselect_b32 s{sXw}, 0, s{sXw}"]
        elif role == 1:
            S += [f"s_add_u32 m0, s{sWr}, s{sM0off}", f"s_add_u32 s{sWr}, s{sWr}, {WSLOT}", f"s_cmp_eq_u32 s{sWr}, {WSLOT*NWS}", f"s_cselect_b32 s{sWr}, 0, s{sWr}"]
        if role < 2:
            S += [f"s_cmp_lt_u32 s{sI}, {32-DIST}", f"s_cselect_b32 s6, s{sSize}, 0"]
        if role == 2 and PFM == 2:
            S += [f"s_cmp_lt_u32 s{sI}, {32-2*PD}", f"s_cselect_b32 s6, {2048*2048}, 0"] + (pfw() if cur else pfx())
        N = []
        PPE = int(os.environ.get('K1PPE', '1'))
        DP = {}
        if role == 0 and PPE in (1, 2):
            S = [S[0]] + S[-2:] + dm + dv + S[1:-2]
            dm = []; dv = []
        if role == 0 and PPE == 3:
            DP = dict(zip([int(x) for x in os.environ.get('K1PPD', '10,14,18,22').split(',')], dm))
            dm = []
        if role == 0 and PPE == 4:
            dv = dm + dv; dm = []
        if role == 1 and PPE == 2:
            S = [S[0]] + S[-2:] + dm + dv + S[1:-2]
            dm = []; dv = []
        for i in range(16):
            N.append(R[i])
            if dm and i % 4 == 1: N.append(dm[i // 4])
        N += dv + advance(cur == 1) + [f"s_add_u32 s{sI}, s{sI}, 1"]
        def hooks():
            if role == 2 and cur == 1 and PFC:
                a(f"s_cmp_eq_u32 s{sI}, {PFCI+1}")
                a(f"s_cbranch_scc1 k1_pfc_{part}")
                a.label(f"k1_pfc_back_{part}")
        if role == 0:
            wv = f"vmcnt({4*(DIST-3)})" if cur == 1 else ""
            a(f"s_waitcnt {wv} lgkmcnt(0)")
            a("s_barrier")
            for m in range(24):
                a(M[m])
                if S and m >= 0: a(S.pop(0))
                if m in DP: a(DP[m])
                if m >= 24 - PPO - 1 and m < 23: a(N.pop(0))
            for x in N: a(x)
        else:
            for x in S: a(x)
            mi = 0
            for i, x in enumerate(N):
                a(x)
                if mi < PPB and i % 4 == 3: a(M[mi]); mi += 1
            hooks()
            for m in range(mi, 24 - PPL): a(M[m])
            wv = f"vmcnt({4*(DIST-2)})" if role == 1 else ""
            a(f"s_waitcnt {wv} lgkmcnt(0)")
            if PPL: a("s_setprio 2")
            a("s_barrier")
            for m in range(24 - PPL, 24): a(M[m])
            if PPL: a("s_setprio 0")

    for part in range(2):
        for role in range(3):
            a.label(f"k1_main_{part}_{role}")
            a(f"""
            {'s_memtime s[76:77]' if ST else ''}
            {[f's_waitcnt vmcnt({4*(PG-2)})', f's_waitcnt vmcnt({4*(PG-1)})', ''][role]}
            s_barrier
            {'s_memtime s[52:53]' if ST else ''}
            """)
            for r in reads(0): a(r)
            for x in advance(True): a(x)
            if PG < DIST:
                for d in dma(role, 0): a(d)
            if role == 2 and PF3POS == 3: pf3()
            if PP and role == 0: a("s_setprio 1")
            if PP and role > 0:
                a(f"s_waitcnt {f'vmcnt({4*(DIST-2)}) ' if role == 1 else ''}lgkmcnt(0)")
                a("s_barrier")
            lp = f"k1_loop_{part}_{role}"
            a.label(lp)
            if 'cst' in DBG:
                a("s_memtime s[88:89]")
            it = iteration_pp if PP else iteration
            it(part, role, 0)
            if 'cst' in DBG:
                a(f"s_lshr_b32 s90, s{sI}, 1")
                a(f"v_cmp_eq_u32_e64 s[92:93], s90, v{vLane}")
                a(f"v_mov_b32 v193, s88")
                a("s_nop 3")
                a(f"v_cndmask_b32_e64 v192, v192, v193, s[92:93]")
            it(part, role, 1)
            a(f"s_cmp_lt_u32 s{sI}, 30")
            a(f"s_cbranch_scc1 {lp}")
            it(part, role, 0)
            a("s_waitcnt lgkmcnt(0)")
            if PP and role == 0: a("s_barrier")
            for m in mfmas(part, 1): a(m)
            if PP and role == 0: a("s_setprio 0")
            if ST: a('s_memtime s[54:55]')
            a(f"s_branch k1_epi_{part}")
            if role == 2 and PFC:
                a.label(f"k1_pfc_{part}")
                for c in range(1, PFC):
                    a(f"v_add_u32 v{vTmp}, {c*8192}, v{vPfD}")
                    a(f"v_min_u32 v{vTmp}, text_end-qkv_kernel-4, v{vTmp}")
                    a(f"global_load_dword v15, v{vTmp}, s[44:45]")
                a(f"s_branch k1_pfc_back_{part}")
                if PF3POS >= 4:
                    a.label(f"k1_pf3_{part}")
                    pf3()
                    a(f"s_branch k1_pf3_back_{part}")

    a.label("k1_epi_0")
    a(f"""
    s_lshl_b32 s{t0}, s{sMt}, 3
    s_lshl_b32 s{t1}, s{sWm}, 1
    s_add_u32 s{t0}, s{t0}, s{t1}
    s_lshl_b32 s{t1}, s{sH}, 6
    s_add_u32 s{t0}, s{t0}, s{t1}
    s_lshl_b32 s{t1}, s{t0}, 11
    s_lshl_b32 s{t2}, s{t0}, 12
    s_add_u32 s{t2}, s{t2}, {WS_KV}
    s_add_u32 s{t3}, s{t2}, 4096
    s_mov_b32 s{sI}, {f2u(QSCALE):#x}
    v_lshrrev_b32 v{vTmp}, 4, v{vLane}
    v_lshlrev_b32 v{vTmp}, 9, v{vTmp}
    v_and_b32 v{vTmp2}, 15, v{vLane}
    v_lshl_add_u32 v{vSt}, v{vTmp2}, 4, v{vTmp}
    v_and_b32 v{vTmp2}, 12, v{vLane}
    v_lshl_add_u32 v{vTmp}, v{vTmp2}, 4, v{vSt}
    """)
    T = F
    ti = 0
    for mb in range(2):
        for t in range(3):
            b = AC(mb, t)
            if t == 0:
                for r in range(16):
                    a(f"v_mul_f32 v{b+r}, s{sI}, v{b+r}")
            for r in range(8):
                a(f"v_cvt_pk_bf16_f32 v{T+ti+r}, v{b+2*r}, v{b+2*r+1}")
            for u in range(2):
                if t == 0:
                    a(f"buffer_store_dwordx4 {vr(T+ti+4*u,4)}, v{vSt}, s[12:15], s{t1} offen offset:{mb*2048+u*256}")
                elif t == 1:
                    a(f"buffer_store_dwordx4 {vr(T+ti+4*u,4)}, v{vTmp}, s[12:15], s{t2 if mb == 0 else t3} offen offset:{u*64}")
                else:
                    a(f"buffer_store_dwordx4 {vr(T+ti+4*u,4)}, v{vSt}, s[12:15], s{t2 if mb == 0 else t3} offen offset:{2048+u*256}")
            ti += 8
    a(f"s_branch {'k1_stamp' if 'stamp' in DBG else end}")

    a.label("k1_epi_1")
    a(f"""
    s_lshl_b32 s{t0}, s{sMt}, 3
    s_lshl_b32 s{t1}, s{sWm}, 1
    s_add_u32 s{t0}, s{t0}, s{t1}
    s_lshl_b32 s{t1}, s{sH}, 6
    s_add_u32 s{t0}, s{t0}, s{t1}
    s_lshl_b32 s{t3}, s{t0}, 11
    s_add_u32 s{t3}, s{t3}, {WS_QB}
    s_mov_b32 s{sI}, {f2u(LOG2E):#x}
    s_mov_b32 s{t2}, {f2u(1e-6):#x}
    v_lshrrev_b32 v{vTmp}, 4, v{vLane}
    v_lshlrev_b32 v{vTmp}, 9, v{vTmp}
    v_and_b32 v{vTmp2}, 15, v{vLane}
    v_lshl_add_u32 v{vLd}, v{vTmp2}, 4, v{vTmp}
    v_and_b32 v{vTmp}, 32, v{vLane}
    v_lshl_add_u32 v{vLd2}, v{vTmp}, 5, v{vLd}
    s_waitcnt vmcnt(0)
    """)
    VF, PK, ONE, PQ = T + 16, T + 32, T + 48, T + 52
    KVA, ZA = AC(0, 1), AC(1, 1)
    def phi(b, e, dst):
        for r in range(16):
            a(f"v_mul_f32 v{e+r}, s{sI}, v{b+r}")
        for r in range(16):
            a(f"v_exp_f32_e64 v{e+r}, v{e+r} clamp")
        for r in range(16):
            a(f"v_max_f32 v{b+r}, s{t2}, v{b+r}")
        for r in range(16):
            a(f"v_add_f32 v{b+r}, v{b+r}, v{e+r}")
        for r in range(8):
            a(f"v_cvt_pk_bf16_f32 v{dst+r}, v{b+2*r}, v{b+2*r+1}")
    def phiq(mb):
        phi(AC(mb, 0), AC(mb, 2), PQ + mb * 8)
        for u in range(2):
            a(f"buffer_store_dwordx4 {vr(PQ+mb*8+4*u,4)}, v{vLd}, s[12:15], s{t3} offen offset:{mb*2048+u*256}")
    for mb in range(2):
        b = AC(mb, 2)
        for r in range(8):
            a(f"v_cvt_pk_bf16_f32 v{VF+mb*8+r}, v{b+2*r}, v{b+2*r+1}")
    for r in range(4):
        a(f"v_mov_b32 v{ONE+r}, 0x3f803f80")
    if QORD == 0:
        phiq(0); phiq(1)
    for mb in range(2):
        phi(AC(mb, 1), AC(mb, 2), PK + mb * 8)
    a("s_nop 1")
    for mb in range(2):
        z = (mb == 0)
        for dk in range(2):
            for dv in range(2):
                d = KVA + (dk * 2 + dv) * 4
                a(f"v_mfma_f32_16x16x32_bf16 {vr(d,4)}, {vr(PK+mb*8+4*dk,4)}, {vr(VF+mb*8+4*dv,4)}, {'0' if z else vr(d,4)}")
            d = ZA + dk * 4
            a(f"v_mfma_f32_16x16x32_bf16 {vr(d,4)}, {vr(PK+mb*8+4*dk,4)}, {vr(ONE,4)}, {'0' if z else vr(d,4)}")
    a(f"""
    s_barrier
    s_lshl_b32 s{t0}, s{sW}, 13
    v_add_u32 v{vTmp}, s{t0}, v{vLd2}
    s_nop 4
    """)
    for dk in range(2):
        for dv in range(2):
            a(f"ds_write_b128 v{vTmp}, {vr(KVA+(dk*2+dv)*4,4)} offset:{dk*1024+dv*256}")
    for dk in range(2):
        for dv in range(2):
            a(f"ds_write_b128 v{vTmp}, {vr(ZA+dk*4,4)} offset:{4096+dk*1024+dv*256}")
    a(f"""
    s_lshl_b32 s{t0}, s{sWn}, 15
    s_lshl_b32 s{t1}, s{sWm}, 11
    s_add_u32 s{t0}, s{t0}, s{t1}
    v_add_u32 v{vTmp}, s{t0}, v{vSt}
    """)
    if QORD == 1: phiq(0)
    a(f"""
    s_waitcnt lgkmcnt(0)
    s_barrier
    """)
    RB = T
    for j in range(4):
        for q in range(2):
            a(f"ds_read_b128 {vr(RB+(j*2+q)*4,4)}, v{vTmp} offset:{j*8192+q*1024}")
    a(f"""
    s_lshl_b32 s{t0}, s{sH}, 3
    s_add_u32 s{t0}, s{t0}, s{sMt}
    s_lshl_b32 s{t0}, s{t0}, 13
    s_add_u32 s{t0}, s{t0}, s{t1}
    s_add_u32 s{t0}, s{t0}, {WS_KVP}
    """)
    if QORD == 1: phiq(1)
    if QORD == 2: phiq(0)
    a("s_waitcnt lgkmcnt(0)")
    for r in range(8):
        a(f"v_add_f32 v{RB+r}, v{RB+r}, v{RB+8+r}")
        a(f"v_add_f32 v{RB+16+r}, v{RB+16+r}, v{RB+24+r}")
    for r in range(8):
        a(f"v_add_f32 v{RB+r}, v{RB+r}, v{RB+16+r}")
    a(f"""
    s_cmp_lt_u32 s{sWm}, 2
    s_cselect_b32 exec_lo, -1, 1
    s_cselect_b32 exec_hi, -1, 1
    """)
    assert QORD != 2
    for q in range(2):
        a(f"buffer_store_dwordx4 {vr(RB+4*q,4)}, v{vSt}, s[12:15], s{t0} offen offset:{q*1024}")
    if QORD == 2: phiq(1)
    if 'stamp' in DBG:
        a.label("k1_stamp")
        a(f'''
        s_waitcnt vmcnt(0)
        s_memtime s[56:57]
        s_memrealtime s[60:61]
        s_waitcnt lgkmcnt(0)
        s_lshl_b32 s{t0}, s2, 3
        s_add_u32 s{t0}, s{t0}, s{sW}
        s_lshl_b32 s{t0}, s{t0}, 6
        s_add_u32 s{t0}, s{t0}, {64*MB}
        v_mov_b32 v20, s50
        v_mov_b32 v21, s52
        v_mov_b32 v22, s54
        v_mov_b32 v23, s56
        v_mov_b32 v24, s58
        v_mov_b32 v25, s60
        v_mov_b32 v26, s70
        v_mov_b32 v27, s72
        v_mov_b32 v28, 0
        v_mov_b32 v30, s74
        v_mov_b32 v31, s76
        buffer_store_dwordx4 v[20:23], v28, s[12:15], s{t0} offen
        buffer_store_dwordx4 v[24:27], v28, s[12:15], s{t0} offen offset:16
        buffer_store_dwordx2 v[30:31], v28, s[12:15], s{t0} offen offset:32
        ''')
        if 'cst' in DBG:
            a(f'''
            s_add_u32 s{t0}, s{t0}, {4*MB}
            s_mov_b64 exec, 0xffff
            v_lshlrev_b32 v28, 2, v{vLane}
            buffer_store_dword v192, v28, s[12:15], s{t0} offen
            ''')
    a.label(end)
    a("s_endpgm")
    return name, NV
```

```python
from asmlib import *
import struct

def f2u(x):
    return struct.unpack("<I", struct.pack("<f", x))[0]

LOG2E = 1.4426950408889634
QSCALE = (32 ** -0.5) * LOG2E

XSLOT = 32768
NXS = 3
WBASE = XSLOT * NXS
WSLOT = 12288
NWS = 5
K1_LDS = WBASE + WSLOT * NWS

import os
DBG = os.environ.get('K1DBG', '')
PFP = int(os.environ.get('PFP', '5'))
PFT = int(os.environ.get('PFT', '1'))
PFDELAY = int(os.environ.get('PFDELAY', '0'))
PFC = int(os.environ.get('PFC', '3'))
PFCI = int(os.environ.get('PFCI', '25'))
PHASE = [int(x) for x in os.environ.get('K1PHASE', '1,2').split(',') if x]
PF3POS = int(os.environ.get('PF3POS', '2'))
DIST = int(os.environ.get('K1DIST', '4'))
MAP = int(os.environ.get('K1MAP', '3'))
CPOS = int(os.environ.get('K1CPOS', '1'))
PFS = int(os.environ.get('PFS', '2'))
SPREAD = int(os.environ.get('K1SPREAD', '1'))
PFM = int(os.environ.get('PFM', '1'))
PD = int(os.environ.get('K1PD', '4'))
QORD = int(os.environ.get('K1QORD', '1'))
ROT = int(os.environ.get('K1ROT', '0'))
FUSE = int(os.environ.get('FUSE', '0'))
def gen_k1(a):
    name = "qkv_kernel"
    kernel_head(a, name)
    vLane, vTmp, vTmp2 = 1, 2, 3
    vLd = 4
    vXb0, vLd2, vWb = 5, 6, 7
    vXa0, vXa1, vWa = 8, 9, 10
    vSt = 11
    vPfA, vPfB, vPfD = 12, 13, 14
    sPf, sPfInc = 37, 38
    F = 16
    def XF(s, mb, tb): return F + s * 40 + (mb * 2 + tb) * 4
    def WF(s, t, db): return F + s * 40 + 16 + (t * 2 + db) * 4
    ACC = 96
    def AC(mb, t): return ACC + (mb * 3 + t) * 16
    NV = 194 if 'cst' in DBG else 192
    sLd = 4
    sWS = 12
    sSo = 62
    sXr, sXw, sM0off2 = 16, 17, 18
    sInc, sRd, sWr, sM0off, sI, sSize = 20, 21, 22, 23, 24, 25
    sPart, sMt, sNt, sW, sWm, sWn, sH = 26, 27, 28, 29, 30, 31, 32
    t0, t1, t2, t3 = 33, 34, 35, 36
    end = "k1_end"
    sStep, sHalf, sA, sB, sAdv = 40, 41, 42, 43, 39
    ST = 'stamp' in DBG
    MAPC = "s_mov_b32 s3, s2"
    if MAP:
        MAPC = f'''s_and_b32 s{t0}, s2, 1
        s_xor_b32 s{t0}, s{t0}, {MAP & 1}
        s_lshl_b32 s{t0}, s{t0}, 2
        s_bfe_u32 s{t1}, s2, 0x10002
        s_and_b32 s3, s2, 2
        s_or_b32 s3, s3, s{t0}
        s_or_b32 s3, s3, s{t1}'''
    MAPC += f'''
    s_and_b32 s{t0}, s3, 7
    s_lshr_b32 s{t1}, s2, 3
    s_lshr_b32 s{sPart}, s{t0}, 2
    s_bfe_u32 s{t2}, s{t0}, 0x10001
    s_lshl_b32 s{t2}, s{t2}, 2
    s_lshr_b32 s{t3}, s{t1}, 3
    s_add_u32 s{sMt}, s{t2}, s{t3}
    s_and_b32 s{t2}, s{t0}, 1
    s_lshl_b32 s{t2}, s{t2}, 3
    s_and_b32 s{t3}, s{t1}, 7
    s_add_u32 s{sNt}, s{t2}, s{t3}'''
    if MAP in (2, 3):
        assert PFM == 1
        MAPC = f'''s_bfe_u32 s{sPart}, s2, {0x10007 if MAP == 2 else 0x10003}
        s_and_b32 s{t0}, s2, 1
        s_lshl_b32 s{t0}, s{t0}, 2
        s_bfe_u32 s{t1}, s2, {0x20005 if MAP == 2 else 0x20006}
        s_add_u32 s{sMt}, s{t0}, s{t1}
        s_and_b32 s{t0}, s2, 6
        s_lshl_b32 s{t0}, s{t0}, 1
        s_bfe_u32 s{t1}, s2, {0x20003 if MAP == 2 else 0x20004}
        s_add_u32 s{sNt}, s{t0}, s{t1}'''
    if MAP >= 4:
        BM = {4: ([3], [7, 0, 1], [4, 5, 6, 2]), 5: ([3], [5, 6, 7], [4, 0, 1, 2]), 6: ([3], [6, 7, 2], [4, 5, 0, 1]),
              7: ([3], [4, 5, 0], [6, 7, 1, 2]), 8: ([4], [6, 7, 0], [3, 5, 1, 2]), 9: ([3], [6, 7, 1], [4, 5, 0, 2])}[MAP]
        L = []
        for dst, bits in zip((sPart, sMt, sNt), BM):
            for i, b in enumerate(bits):
                if i == 0: L.append(f"s_bfe_u32 s{dst}, s2, {0x10000 + b}")
                else:
                    L.append(f"s_bfe_u32 s{t0}, s2, {0x10000 + b}")
                    L.append(f"s_lshl_b32 s{t0}, s{t0}, {i}")
                    L.append(f"s_or_b32 s{dst}, s{dst}, s{t0}")
        MAPC = "\n".join(L)
    a(f"""
    s_cmp_ge_u32 s2, 256
    s_cbranch_scc1 {end}
    {'s_memtime s[50:51]' if ST else ''}
    {'s_memrealtime s[58:59]' if ST else ''}
    s_load_dwordx4 s[80:83], s[0:1], 0
    s_load_dwordx4 s[84:87], s[0:1], 24
    s_load_dwordx2 s[12:13], s[0:1], 64
    v_lshrrev_b32 v{vTmp}, 6, v0
    v_and_b32 v{vLane}, 63, v0
    {MAPC}
    v_readfirstlane_b32 s{sW}, v{vTmp}
    s_and_b32 s{sWm}, s{sW}, 3
    s_lshr_b32 s{sWn}, s{sW}, 2
    s_mov_b32 s7, 0x00020000
    s_cmp_lg_u32 s{sW}, 7
    s_cbranch_scc1 k1_ld_setup
    s_getpc_b64 s[44:45]
    k1_pc:
    s_sub_u32 s44, s44, k1_pc-qkv_kernel
    s_subb_u32 s45, s45, 0
    v_lshlrev_b32 v{vPfD}, 7, v{vLane}
    global_load_dword v15, v{vPfD}, s[44:45]
    v_add_u32 v{vTmp}, 8192, v{vPfD}
    v_min_u32 v{vTmp}, text_end-qkv_kernel-4, v{vTmp}
    global_load_dword v15, v{vTmp}, s[44:45]
    s_branch k1_pf_setup
    k1_ld_setup:
    s_lshl_b32 s{t0}, s{sMt}, 19
    s_lshl_b32 s{t1}, s{sW}, 17
    s_add_u32 s{t0}, s{t0}, s{t1}
    s_lshl_b32 s{t1}, s{sNt}, 7
    s_lshl_b32 s{t2}, s{sWm}, 11
    s_add_u32 s{t1}, s{t1}, s{t2}
    s_lshl_b32 s{t2}, s{sW}, 13
    s_lshl_b32 s{t3}, s{sWm}, 12
    s_add_u32 s{t3}, s{t3}, {WBASE}
    s_cmp_lt_u32 s{sW}, 4
    s_cselect_b32 s{sSo}, s{t0}, s{t1}
    s_cselect_b32 s{sM0off}, s{t2}, s{t3}
    s_cselect_b32 s{t0}, 1, 3
    s_cselect_b32 s{sB}, 4, 3
    s_cselect_b32 s{sAdv}, 1, 3072
    s_cselect_b32 s{sSize}, 2, 3
    s_cselect_b32 s{t1}, 3, 1
    s_cselect_b32 s{t2}, 0, 2
    s_cselect_b32 s{t3}, 64, 32
    s_lshl_b32 s{sStep}, s{t0}, 14
    s_sub_u32 s{sStep}, s{sStep}, 1024
    s_lshl_b32 s{sHalf}, s{t0}, 16
    s_lshl_b32 s{sA}, s{t0}, 12
    s_lshl_b32 s{sB}, s{sB}, 13
    s_lshl_b32 s{sAdv}, s{sAdv}, 7
    s_lshl_b32 s{sSize}, s{sSize}, 21
    s_lshl_b32 s{t0}, s{t0}, 11
    v_lshrrev_b32 v{vTmp}, 3, v{vLane}
    v_mul_u32_u24 v{vLd}, s{t0}, v{vTmp}
    v_lshrrev_b32 v{vTmp}, 4, v{vLane}
    v_and_b32 v{vTmp}, s{t1}, v{vTmp}
    v_lshlrev_b32 v{vTmp}, s{t2}, v{vTmp}
    v_and_b32 v{vTmp2}, 7, v{vLane}
    v_xor_b32 v{vTmp}, v{vTmp}, v{vTmp2}
    v_lshlrev_b32 v{vTmp}, 4, v{vTmp}
    v_add_u32 v{vLd}, v{vLd}, v{vTmp}
    v_xor_b32 v{vLd2}, s{t3}, v{vLd}
    s_add_u32 s{sSo+1}, s{sSo}, s{sStep}
    s_add_u32 s{sSo+2}, s{sSo+1}, s{sStep}
    s_add_u32 s{sSo+3}, s{sSo+2}, s{sStep}
    s_add_u32 s{sSo+4}, s{sSo}, s{sHalf}
    s_add_u32 s{sSo+5}, s{sSo+1}, s{sHalf}
    s_add_u32 s{sSo+6}, s{sSo+2}, s{sHalf}
    s_add_u32 s{sSo+7}, s{sSo+3}, s{sHalf}
    s_mov_b32 s6, s{sSize}
    s_mov_b32 m0, s{sM0off}
    {'s_memtime s[70:71]' if ST else ''}
    s_waitcnt lgkmcnt(0)
    {'s_memtime s[72:73]' if ST else ''}
    s_cmp_eq_u32 s{sPart}, 0
    s_cselect_b32 s80, s80, s84
    s_cselect_b32 s81, s81, s85
    s_cselect_b32 s82, s82, s86
    s_cselect_b32 s83, s83, s87
    s_cmp_lt_u32 s{sW}, 4
    s_cselect_b32 s4, s80, s82
    s_cselect_b32 s5, s81, s83
    """)

    def dma(role, half=0):
        L = []
        if role == 2:
            return L
        for j in range(4):
            L.append(f"buffer_load_dwordx4 v{vLd2 if j & 1 else vLd}, s[4:7], s{sSo+4*half+j} offen offset:{j*1024} lds")
        if half:
            L.append(f"v_add_u32 v{vLd}, s{sAdv}, v{vLd}")
            L.append(f"v_add_u32 v{vLd2}, s{sAdv}, v{vLd2}")
        return L

    def common():
        a(f"""
        s_lshl_b32 s{sH}, s{sNt}, 1
        s_add_u32 s{sH}, s{sH}, s{sWn}
        s_mov_b32 s14, {WS_SIZE}
        s_mov_b32 s15, 0x00020000
        v_lshlrev_b32 v{vSt}, 4, v{vLane}
        """)
        a(f"""
        v_and_b32 v{vTmp}, 15, v{vLane}
        s_lshl_b32 s{t0}, s{sWm}, 13
        v_lshlrev_b32 v{vTmp}, 7, v{vTmp}
        v_add_u32 v{vTmp}, s{t0}, v{vTmp}
        v_lshrrev_b32 v{vTmp2}, 4, v{vLane}
        v_bfe_u32 v{vXb0}, v{vLane}, 1, 3
        v_xor_b32 v{vTmp2}, v{vTmp2}, v{vXb0}
        v_lshlrev_b32 v{vTmp2}, 4, v{vTmp2}
        v_add_u32 v{vXb0}, v{vTmp}, v{vTmp2}
        """)
        a(f"""
        v_lshrrev_b32 v{vTmp}, 4, v{vLane}
        v_lshlrev_b32 v{vWb}, 10, v{vTmp}
        v_bfe_u32 v{vTmp}, v{vLane}, 2, 2
        v_lshlrev_b32 v{vTmp}, 7, v{vTmp}
        v_add_u32 v{vWb}, v{vWb}, v{vTmp}
        v_bfe_u32 v{vTmp}, v{vLane}, 3, 1
        v_xor_b32 v{vTmp}, s{sWn}, v{vTmp}
        v_lshlrev_b32 v{vTmp}, 6, v{vTmp}
        v_add_u32 v{vWb}, v{vWb}, v{vTmp}
        v_bfe_u32 v{vTmp}, v{vLane}, 4, 1
        v_lshlrev_b32 v{vTmp}, 5, v{vTmp}
        v_add_u32 v{vWb}, v{vWb}, v{vTmp}
        v_and_b32 v{vTmp}, 3, v{vLane}
        v_lshlrev_b32 v{vTmp}, 3, v{vTmp}
        v_add_u32 v{vWb}, v{vWb}, v{vTmp}
        v_add_u32 v{vWb}, {WBASE}, v{vWb}
        """)
        for r in range(96):
            a(f"v_mov_b32 v{ACC + r}, 0")
        a(f"""
        s_add_u32 s{sM0off2}, s{sM0off}, 4096
        s_mov_b32 s{sRd}, 0
        s_mov_b32 s{sI}, 0
        s_mov_b32 s{sXr}, 0
        s_mov_b32 s{sXw}, {(DIST // 2)*XSLOT}
        s_mov_b32 s{sWr}, {(DIST % NWS)*WSLOT}
        v_mov_b32 v{vXa0}, v{vXb0}
        v_mov_b32 v{vWa}, v{vWb}
        v_xor_b32 v{vXa1}, 32, v{vWb}
        """)

    PG = min(DIST, int(os.environ.get('K1PG', '4')))
    for g in range(PG):
        for d in dma(0, g & 1): a(d)
        if g == PG - 1 and PG < DIST:
            assert PG == 4 and DIST == 5
            a(f"s_add_u32 s48, s48, s{sB}")
            a(f"s_mov_b32 m0, s48")
        if g < PG - 1:
            if g & 1:
                a(f"s_add_u32 s48, s{sM0off}, s{sB}" if g == 1 else f"s_add_u32 s48, s48, s{sB}")
                a(f"s_mov_b32 m0, s48")
            else:
                a(f"s_add_u32 m0, m0, s{sA}")
            if g == CPOS: common()
            a("s_barrier" if g in PHASE else "s_nop 0")
    if ST: a('s_memtime s[74:75]')
    a("s_mov_b32 s47, 0")
    a("s_branch k1_common")

    a.label("k1_pf_setup")
    if PFM == 0:
        a(f"""
        v_and_b32 v{vTmp}, 31, v{vLane}
        v_lshlrev_b32 v{vPfA}, 11, v{vTmp}
        v_lshrrev_b32 v{vTmp}, 5, v{vLane}
        v_lshlrev_b32 v{vTmp}, 10, v{vTmp}
        v_add_u32 v{vPfA}, v{vPfA}, v{vTmp}
        s_bfe_u32 s{t0}, s3, 0x10001
        s_lshl_b32 s{t0}, s{t0}, 21
        s_lshr_b32 s{t1}, s2, 3
        s_lshl_b32 s{t2}, s{t1}, 16
        s_add_u32 s{sPf}, s{t0}, s{t2}
        v_lshlrev_b32 v{vPfB}, 11, v{vLane}
        v_min_u32 v{vTmp}, 31, v{vLane}
        v_add_u32 v{vTmp}, 64, v{vTmp}
        v_lshlrev_b32 v{vTmp2}, 11, v{vTmp}
        s_mul_i32 s{sPfInc}, s{t1}, {96*2048}
        s_and_b32 s{t0}, s3, 1
        s_lshl_b32 s{t0}, s{t0}, 10
        s_add_u32 s{sPfInc}, s{sPfInc}, s{t0}
        s_mov_b32 s6, {2048*2048}
        s_mov_b32 s10, {1024*6144}
        s_mov_b32 s11, 0x00020000
        s_mov_b32 s47, 1
        s_waitcnt lgkmcnt(0)
        s_cmp_eq_u32 s{sPart}, 0
        s_cselect_b32 s4, s80, s84
        s_cselect_b32 s5, s81, s85
        s_cselect_b32 s8, s82, s86
        s_cselect_b32 s9, s83, s87
        s_sub_u32 s{t0}, {3*128}, s4
        s_and_b32 s{t0}, s{t0}, {7*128}
        s_add_u32 s{sPf}, s{sPf}, s{t0}
        s_sub_u32 s{t0}, {3*128}, s8
        s_and_b32 s{t0}, s{t0}, {7*128}
        s_add_u32 s{sPfInc}, s{sPfInc}, s{t0}
        v_mov_b32 v{vLd}, v{vTmp2}
        """)
    elif PFM == 2:
        a(f"""
        v_and_b32 v{vTmp}, 31, v{vLane}
        v_lshlrev_b32 v{vPfA}, 11, v{vTmp}
        v_min_u32 v{vTmp}, 47, v{vLane}
        v_subrev_u32 v{vTmp2}, 24, v{vTmp}
        v_cmp_gt_u32 vcc, 24, v{vTmp}
        v_mov_b32 v{vPfB}, 6144
        s_nop 1
        v_cndmask_b32 v{vTmp}, v{vTmp2}, v{vTmp}, vcc
        v_cndmask_b32 v{vPfB}, v{vPfB}, 0, vcc
        v_lshrrev_b32 v{vTmp2}, 3, v{vTmp}
        v_lshl_add_u32 v{vPfB}, v{vTmp2}, 11, v{vPfB}
        v_and_b32 v{vTmp2}, 7, v{vTmp}
        v_lshl_add_u32 v{vPfB}, v{vTmp2}, 7, v{vPfB}
        s_bfe_u32 s{t0}, s3, 0x10001
        s_lshl_b32 s{t0}, s{t0}, 21
        s_lshr_b32 s{t1}, s2, 3
        s_lshl_b32 s{t2}, s{t1}, 16
        s_add_u32 s{sPf}, s{t0}, s{t2}
        s_add_u32 s{sPf}, s{sPf}, {2*128}
        s_mul_i32 s{sPfInc}, s{t1}, {2*6144}
        s_and_b32 s{t0}, s3, 1
        s_lshl_b32 s{t0}, s{t0}, 10
        s_add_u32 s{sPfInc}, s{sPfInc}, s{t0}
        s_add_u32 s{sPfInc}, s{sPfInc}, {2*64*6144}
        s_mov_b32 s6, {2048*2048}
        s_mov_b32 s10, {1024*6144}
        s_mov_b32 s11, 0x00020000
        s_mov_b32 s47, 1
        s_waitcnt lgkmcnt(0)
        s_cmp_eq_u32 s{sPart}, 0
        s_cselect_b32 s4, s80, s84
        s_cselect_b32 s5, s81, s85
        s_cselect_b32 s8, s82, s86
        s_cselect_b32 s9, s83, s87
        """)
    else:
        a(f"""
        v_and_b32 v{vTmp}, 31, v{vLane}
        v_lshlrev_b32 v{vPfA}, 11, v{vTmp}
        v_min_u32 v{vTmp}, 47, v{vLane}
        v_lshlrev_b32 v{vPfB}, 11, v{vTmp}
        s_lshl_b32 s{t1}, s{sMt}, 3
        s_and_b32 s{t2}, s{sNt}, 7
        s_add_u32 s{t1}, s{t1}, s{t2}
        s_lshr_b32 s{t0}, s{sNt}, 3
        s_lshl_b32 s{t0}, s{t0}, 10
        s_lshl_b32 s{sPf}, s{t1}, 16
        s_add_u32 s{sPf}, s{sPf}, s{t0}
        s_mul_i32 s{sPfInc}, s{t1}, {48*2048}
        s_add_u32 s{sPfInc}, s{sPfInc}, s{t0}
        s_mov_b32 s6, {2048*2048}
        s_mov_b32 s10, {1024*6144}
        s_mov_b32 s11, 0x00020000
        s_mov_b32 s42, {2048*2048}
        s_mov_b32 s43, 0x00020000
        s_mov_b32 s66, {1024*6144}
        s_mov_b32 s67, 0x00020000
        s_mov_b32 s47, 1
        s_waitcnt lgkmcnt(0)
        s_mov_b32 s4, s84
        s_mov_b32 s5, s85
        s_mov_b32 s8, s86
        s_mov_b32 s9, s87
        s_mov_b32 s40, s80
        s_mov_b32 s41, s81
        s_mov_b32 s64, s82
        s_mov_b32 s65, s83
        s_sub_u32 s{t0}, {3*128}, s40
        s_and_b32 s{t0}, s{t0}, {7*128}
        s_add_u32 s62, s{sPf}, s{t0}
        s_sub_u32 s{t0}, {3*128}, s64
        s_and_b32 s{t0}, s{t0}, {7*128}
        s_add_u32 s63, s{sPfInc}, s{t0}
        s_sub_u32 s{t0}, {3*128}, s4
        s_and_b32 s{t0}, s{t0}, {7*128}
        s_add_u32 s{sPf}, s{sPf}, s{t0}
        s_sub_u32 s{t0}, {3*128}, s8
        s_and_b32 s{t0}, s{t0}, {7*128}
        s_add_u32 s{sPfInc}, s{sPfInc}, s{t0}
        """)
    a(f"""
    {'s_memtime s[70:71]' if ST else ''}
    {'s_memtime s[72:73]' if ST else ''}
    {'s_memtime s[74:75]' if ST else ''}
    """)
    a(f"s_mov_b32 s{sM0off}, 0")
    common()
    def pfx():
        return [f"buffer_load_dword v15, v{vPfA}, s[4:7], s{sPf} offen", f"s_add_u32 s{sPf}, s{sPf}, 128"]
    def pfw():
        return [f"buffer_load_dword v15, v{vPfB}, s[8:11], s{sPfInc} offen", f"s_add_u32 s{sPfInc}, s{sPfInc}, {64*6144}"]
    def pf3():
        if PFM == 2:
            for sl in range(2, PD):
                for x in pfx() + pfw(): a(x)
        elif PFM == 0:
            a(f"""
            buffer_load_dword v15, v{vPfB}, s[8:11], s{sPfInc} offen
            buffer_load_dword v15, v{vLd}, s[8:11], s{sPfInc} offen
            buffer_load_dword v15, v{vPfA}, s[4:7], s{sPf} offen
            """)
        else:
            lb = a.newlabel("k1_nopf")
            a(f"""
            s_cmp_eq_u32 s{sPart}, 0
            s_cbranch_scc1 {lb}
            buffer_load_dword v15, v{vPfB}, s[64:67], s63 offen
            buffer_load_dword v15, v{vPfA}, s[40:43], s62 offen
            buffer_load_dword v15, v{vPfB}, s[8:11], s{sPfInc} offen
            buffer_load_dword v15, v{vPfA}, s[4:7], s{sPf} offen
            """)
            a.label(lb)
    for ph in range(len(PHASE) + 1):
        if ph == PF3POS:
            if PFDELAY: a(f"s_sleep {PFDELAY}")
            pf3()
        if ph < len(PHASE): a("s_barrier")

    a.label("k1_common")
    a(f"""
    s_cmp_eq_u32 s47, 1
    s_cbranch_scc0 k1_sel_ld
    s_cmp_eq_u32 s{sPart}, 0
    s_cbranch_scc1 k1_main_0_2
    s_branch k1_main_1_2
    """)
    a.label("k1_sel_ld")
    a(f"""
    s_cmp_eq_u32 s{sPart}, 0
    s_cbranch_scc1 k1_sel_0
    s_cmp_lt_u32 s{sW}, 4
    s_cbranch_scc1 k1_main_1_0
    s_branch k1_main_1_1
    """)
    a.label("k1_sel_0")
    a(f"""
    s_cmp_ge_u32 s{sW}, 4
    s_cbranch_scc1 k1_main_0_1
    """)

    vWa1 = vXa1
    def reads(s):
        L = []
        for i in range(4):
            L.append(f"ds_read_b128 {vr(XF(s,i>>1,i&1),4)}, v{vXa0} offset:{i*2048}")
        for t in range(3):
            for db in range(2):
                for rd in range(2):
                    L.append(f"ds_read_b64_tr_b16 {vr(WF(s,t,db)+2*rd,2)}, v{vWa1 if db else vWa} offset:{t*4096+rd*512}")
        return L

    def mfmas(part, s):
        L = []
        for t in range(3):
            for db in range(2):
                for mb in range(2):
                    for tb in range(2):
                        wfirst = (t == 0) or (t == 1 and part == 0)
                        if wfirst:
                            A, B, D = WF(s,t,db), XF(s,mb,tb), AC(mb,t) + tb * 8 + db * 4
                        else:
                            A, B, D = XF(s,mb,tb), WF(s,t,db), AC(mb,t) + db * 8 + tb * 4
                        L.append(f"v_mfma_f32_16x16x32_bf16 {vr(D,4)}, {vr(A,4)}, {vr(B,4)}, {vr(D,4)}")
        return L

    def advance(next_even):
        L = [
            f"s_add_u32 s{sRd}, s{sRd}, {WSLOT}",
            f"s_cmp_eq_u32 s{sRd}, {WSLOT*NWS}",
            f"s_cselect_b32 s{sRd}, 0, s{sRd}",
            f"v_add_u32 v{vWa}, s{sRd}, v{vWb}",
            f"v_xor_b32 v{vWa1}, 32, v{vWa}",
        ]
        if next_even:
            L += [f"v_xor_b32 v{vXa0}, 64, v{vXa0}"]
        else:
            L += [
                f"s_add_u32 s{sXr}, s{sXr}, {XSLOT}",
                f"s_cmp_eq_u32 s{sXr}, {XSLOT*NXS}",
                f"s_cselect_b32 s{sXr}, 0, s{sXr}",
                f"v_add_u32 v{vXa0}, s{sXr}, v{vXb0}",
            ]
        return L

    RPM = int(os.environ.get('K1RPM', '1'))
    PREM = int(os.environ.get('K1PREM', '0'))
    def iteration(part, role, cur):
        M = mfmas(part, cur)
        R = reads(1 - cur)
        half = (cur + DIST) & 1
        D = dma(role, half)
        wv = ""
        if role == 0 and cur == 1: wv = f"vmcnt({4*(DIST-3)})"
        if role == 1: wv = f"vmcnt({4*(DIST-2)})"
        if PREM:
            a("s_waitcnt lgkmcnt(0)")
            for m in range(PREM): a(M[m])
            if wv: a(f"s_waitcnt {wv}")
        else:
            a(f"s_waitcnt {wv} lgkmcnt(0)")
        if not (('hb0' in DBG and cur == 0) or ('hb1' in DBG and cur == 1) or 'nb' in DBG): a("s_barrier")
        dm = [d for d in D if d.startswith('buffer')]
        dv = [d for d in D if not d.startswith('buffer')]
        pos = (2, 8, 14, 20) if role == 0 else (5, 11, 17, 22)
        pos = [max(p, PREM + 1) for p in pos]
        ri = 0
        for m in range(PREM, 24):
            a(M[m])
            if m == PREM:
                if role == 0:
                    a(f"s_add_u32 m0, s{sXw}, s{sM0off2 if half else sM0off}")
                    if half:
                        a(f"s_add_u32 s{sXw}, s{sXw}, {XSLOT}")
                        a(f"s_cmp_eq_u32 s{sXw}, {XSLOT*NXS}")
                        a(f"s_cselect_b32 s{sXw}, 0, s{sXw}")
                elif role == 1:
                    a(f"s_add_u32 m0, s{sWr}, s{sM0off}")
                    a(f"s_add_u32 s{sWr}, s{sWr}, {WSLOT}")
                    a(f"s_cmp_eq_u32 s{sWr}, {WSLOT*NWS}")
                    a(f"s_cselect_b32 s{sWr}, 0, s{sWr}")
                if role < 2:
                    a(f"s_cmp_lt_u32 s{sI}, {0 if 'nd' in DBG else 32-DIST}")
                    a(f"s_cselect_b32 s6, s{sSize}, 0")
            for _ in range(RPM):
                if ri < 16:
                    skip = ('nx' in DBG and ri < 4) or ('nw' in DBG and ri >= 4) or ('hw' in DBG and ri >= 4 and ri & 1)
                    if not skip: a(R[ri])
                    ri += 1
                    if ri == 16:
                        for x in advance(cur == 1): a(x)
                        a(f"s_add_u32 s{sI}, s{sI}, 1")
            while dm and pos[4 - len(dm)] == m:
                a(dm.pop(0))
                if not dm:
                    for d in dv: a(d)
            if role == 2 and m == 8 and PFM == 2:
                a(f"s_cmp_lt_u32 s{sI}, {32-2*PD}")
                a(f"s_cselect_b32 s6, {2048*2048}, 0")
                for x in (pfw() if cur else pfx()): a(x)
            if role == 2 and m == 6 and cur == 1 and PFC:
                a(f"s_cmp_eq_u32 s{sI}, {PFCI}")
                a(f"s_cbranch_scc1 k1_pfc_{part}")
                a.label(f"k1_pfc_back_{part}")
                if PF3POS >= 4:
                    a(f"s_cmp_eq_u32 s{sI}, {2*(PF3POS-4)+1}")
                    a(f"s_cbranch_scc1 k1_pf3_{part}")
                    a.label(f"k1_pf3_back_{part}")
        assert ri == 16 and not dm

    PP = int(os.environ.get('K1PP', '0'))
    PPL = int(os.environ.get('K1PPL', '2'))
    PPO = int(os.environ.get('K1PPO', '0'))
    PPB = int(os.environ.get('K1PPB', '0'))
    def iteration_pp(part, role, cur, first=False):
        M = mfmas(part, cur)
        Mp = mfmas(part, 1 - cur)
        R = reads(1 - cur)
        half = (cur + DIST) & 1
        D = dma(role, half)
        dm = [d for d in D if d.startswith('buffer')]
        dv = [d for d in D if not d.startswith('buffer')]
        S = []
        if role == 0:
            S.append(f"s_add_u32 m0, s{sXw}, s{sM0off2 if half else sM0off}")
            if half:
                S += [f"s_add_u32 s{sXw}, s{sXw}, {XSLOT}", f"s_cmp_eq_u32 s{sXw}, {XSLOT*NXS}", f"s_cselect_b32 s{sXw}, 0, s{sXw}"]
        elif role == 1:
            S += [f"s_add_u32 m0, s{sWr}, s{sM0off}", f"s_add_u32 s{sWr}, s{sWr}, {WSLOT}", f"s_cmp_eq_u32 s{sWr}, {WSLOT*NWS}", f"s_cselect_b32 s{sWr}, 0, s{sWr}"]
        if role < 2:
            S += [f"s_cmp_lt_u32 s{sI}, {32-DIST}", f"s_cselect_b32 s6, s{sSize}, 0"]
        if role == 2 and PFM == 2:
            S += [f"s_cmp_lt_u32 s{sI}, {32-2*PD}", f"s_cselect_b32 s6, {2048*2048}, 0"] + (pfw() if cur else pfx())
        N = []
        PPE = int(os.environ.get('K1PPE', '1'))
        DP = {}
        if role == 0 and PPE in (1, 2):
            S = [S[0]] + S[-2:] + dm + dv + S[1:-2]
            dm = []; dv = []
        if role == 0 and PPE == 3:
            DP = dict(zip([int(x) for x in os.environ.get('K1PPD', '10,14,18,22').split(',')], dm))
            dm = []
        if role == 0 and PPE == 4:
            dv = dm + dv; dm = []
        if role == 1 and PPE == 2:
            S = [S[0]] + S[-2:] + dm + dv + S[1:-2]
            dm = []; dv = []
        for i in range(16):
            N.append(R[i])
            if dm and i % 4 == 1: N.append(dm[i // 4])
        N += dv + advance(cur == 1) + [f"s_add_u32 s{sI}, s{sI}, 1"]
        def hooks():
            if role == 2 and cur == 1 and PFC:
                a(f"s_cmp_eq_u32 s{sI}, {PFCI+1}")
                a(f"s_cbranch_scc1 k1_pfc_{part}")
                a.label(f"k1_pfc_back_{part}")
        if role == 0:
            wv = f"vmcnt({4*(DIST-3)})" if cur == 1 else ""
            a(f"s_waitcnt {wv} lgkmcnt(0)")
            a("s_barrier")
            for m in range(24):
                a(M[m])
                if S and m >= 0: a(S.pop(0))
                if m in DP: a(DP[m])
                if m >= 24 - PPO - 1 and m < 23: a(N.pop(0))
            for x in N: a(x)
        else:
            for x in S: a(x)
            mi = 0
            for i, x in enumerate(N):
                a(x)
                if mi < PPB and i % 4 == 3: a(M[mi]); mi += 1
            hooks()
            for m in range(mi, 24 - PPL): a(M[m])
            wv = f"vmcnt({4*(DIST-2)})" if role == 1 else ""
            a(f"s_waitcnt {wv} lgkmcnt(0)")
            if PPL: a("s_setprio 2")
            a("s_barrier")
            for m in range(24 - PPL, 24): a(M[m])
            if PPL: a("s_setprio 0")

    for part in range(2):
        for role in range(3):
            a.label(f"k1_main_{part}_{role}")
            a(f"""
            {'s_memtime s[76:77]' if ST else ''}
            {[f's_waitcnt vmcnt({4*(PG-2)})', f's_waitcnt vmcnt({4*(PG-1)})', ''][role]}
            s_barrier
            {'s_memtime s[52:53]' if ST else ''}
            """)
            for r in reads(0): a(r)
            for x in advance(True): a(x)
            if PG < DIST:
                for d in dma(role, 0): a(d)
            if role == 2 and PF3POS == 3: pf3()
            if PP and role == 0: a("s_setprio 1")
            if PP and role > 0:
                a(f"s_waitcnt {f'vmcnt({4*(DIST-2)}) ' if role == 1 else ''}lgkmcnt(0)")
                a("s_barrier")
            lp = f"k1_loop_{part}_{role}"
            a.label(lp)
            if 'cst' in DBG:
                a("s_memtime s[88:89]")
            it = iteration_pp if PP else iteration
            it(part, role, 0)
            if 'cst' in DBG:
                a(f"s_lshr_b32 s90, s{sI}, 1")
                a(f"v_cmp_eq_u32_e64 s[92:93], s90, v{vLane}")
                a(f"v_mov_b32 v193, s88")
                a("s_nop 3")
                a(f"v_cndmask_b32_e64 v192, v192, v193, s[92:93]")
            it(part, role, 1)
            a(f"s_cmp_lt_u32 s{sI}, 30")
            a(f"s_cbranch_scc1 {lp}")
            it(part, role, 0)
            a("s_waitcnt lgkmcnt(0)")
            if PP and role == 0: a("s_barrier")
            for m in mfmas(part, 1): a(m)
            if PP and role == 0: a("s_setprio 0")
            if ST: a('s_memtime s[54:55]')
            a(f"s_branch k1_epi_{part}")
            if role == 2 and PFC:
                a.label(f"k1_pfc_{part}")
                for c in range(1, PFC):
                    a(f"v_add_u32 v{vTmp}, {c*8192}, v{vPfD}")
                    a(f"v_min_u32 v{vTmp}, text_end-qkv_kernel-4, v{vTmp}")
                    a(f"global_load_dword v15, v{vTmp}, s[44:45]")
                if FUSE:
                    a(f"v_lshrrev_b32 v{vTmp}, 2, v{vSt}")
                    a(f"v_mov_b32 v{vTmp2}, 0")
                    a(f"s_lshl_b32 s{t0}, s2, 9")
                    a(f"s_add_u32 s{t0}, s{t0}, {30*MB}")
                    a(f"buffer_store_dword v{vTmp2}, v{vTmp}, s[12:15], s{t0} offen")
                    a(f"buffer_store_dword v{vTmp2}, v{vTmp}, s[12:15], s{t0} offen offset:256")
                a(f"s_branch k1_pfc_back_{part}")
                if PF3POS >= 4:
                    a.label(f"k1_pf3_{part}")
                    pf3()
                    a(f"s_branch k1_pf3_back_{part}")

    a.label("k1_epi_0")
    a(f"""
    s_lshl_b32 s{t0}, s{sMt}, 3
    s_lshl_b32 s{t1}, s{sWm}, 1
    s_add_u32 s{t0}, s{t0}, s{t1}
    s_lshl_b32 s{t1}, s{sH}, 6
    s_add_u32 s{t0}, s{t0}, s{t1}
    s_lshl_b32 s{t1}, s{t0}, 11
    s_lshl_b32 s{t2}, s{t0}, 12
    s_add_u32 s{t2}, s{t2}, {WS_KV}
    s_add_u32 s{t3}, s{t2}, 4096
    s_mov_b32 s{sI}, {f2u(QSCALE):#x}
    v_lshrrev_b32 v{vTmp}, 4, v{vLane}
    v_lshlrev_b32 v{vTmp}, 9, v{vTmp}
    v_and_b32 v{vTmp2}, 15, v{vLane}
    v_lshl_add_u32 v{vSt}, v{vTmp2}, 4, v{vTmp}
    v_and_b32 v{vTmp2}, 12, v{vLane}
    v_lshl_add_u32 v{vTmp}, v{vTmp2}, 4, v{vSt}
    """)
    T = F
    ti = 0
    for mb in range(2):
        for t in range(3):
            b = AC(mb, t)
            if t == 0:
                for r in range(16):
                    a(f"v_mul_f32 v{b+r}, s{sI}, v{b+r}")
            for r in range(8):
                a(f"v_cvt_pk_bf16_f32 v{T+ti+r}, v{b+2*r}, v{b+2*r+1}")
            for u in range(2):
                if t == 0:
                    a(f"buffer_store_dwordx4 {vr(T+ti+4*u,4)}, v{vSt}, s[12:15], s{t1} offen offset:{mb*2048+u*256}")
                elif t == 1:
                    a(f"buffer_store_dwordx4 {vr(T+ti+4*u,4)}, v{vTmp}, s[12:15], s{t2 if mb == 0 else t3} offen offset:{u*64}")
                else:
                    a(f"buffer_store_dwordx4 {vr(T+ti+4*u,4)}, v{vSt}, s[12:15], s{t2 if mb == 0 else t3} offen offset:{2048+u*256}")
            ti += 8
    a(f"s_branch {'k1_stamp' if 'stamp' in DBG else end}")

    a.label("k1_epi_1")
    a(f"""
    s_lshl_b32 s{t0}, s{sMt}, 3
    s_lshl_b32 s{t1}, s{sWm}, 1
    s_add_u32 s{t0}, s{t0}, s{t1}
    s_lshl_b32 s{t1}, s{sH}, 6
    s_add_u32 s{t0}, s{t0}, s{t1}
    s_lshl_b32 s{t3}, s{t0}, 11
    s_add_u32 s{t3}, s{t3}, {WS_QB}
    s_mov_b32 s{sI}, {f2u(LOG2E):#x}
    s_mov_b32 s{t2}, {f2u(1e-6):#x}
    v_lshrrev_b32 v{vTmp}, 4, v{vLane}
    v_lshlrev_b32 v{vTmp}, 9, v{vTmp}
    v_and_b32 v{vTmp2}, 15, v{vLane}
    v_lshl_add_u32 v{vLd}, v{vTmp2}, 4, v{vTmp}
    v_and_b32 v{vTmp}, 32, v{vLane}
    v_lshl_add_u32 v{vLd2}, v{vTmp}, 5, v{vLd}
    s_waitcnt vmcnt(0)
    """)
    VF, PK, ONE, PQ = T + 16, T + 32, T + 48, T + 52
    KVA, ZA = AC(0, 1), AC(1, 1)
    def phi(b, e, dst):
        for r in range(16):
            a(f"v_mul_f32 v{e+r}, s{sI}, v{b+r}")
        for r in range(16):
            a(f"v_exp_f32_e64 v{e+r}, v{e+r} clamp")
        for r in range(16):
            a(f"v_max_f32 v{b+r}, s{t2}, v{b+r}")
        for r in range(16):
            a(f"v_add_f32 v{b+r}, v{b+r}, v{e+r}")
        for r in range(8):
            a(f"v_cvt_pk_bf16_f32 v{dst+r}, v{b+2*r}, v{b+2*r+1}")
    def phiq(mb):
        if int(os.environ.get('K2PHI', '1')):
            for r in range(8):
                a(f"v_cvt_pk_bf16_f32 v{PQ+mb*8+r}, v{AC(mb,0)+2*r}, v{AC(mb,0)+2*r+1}")
        else:
            phi(AC(mb, 0), AC(mb, 2), PQ + mb * 8)
        for u in range(2):
            a(f"buffer_store_dwordx4 {vr(PQ+mb*8+4*u,4)}, v{vLd}, s[12:15], s{t3} offen offset:{mb*2048+u*256}")
    for mb in range(2):
        b = AC(mb, 2)
        for r in range(8):
            a(f"v_cvt_pk_bf16_f32 v{VF+mb*8+r}, v{b+2*r}, v{b+2*r+1}")
    for r in range(4):
        a(f"v_mov_b32 v{ONE+r}, 0x3f803f80")
    if QORD == 0:
        phiq(0); phiq(1)
    for mb in range(2):
        phi(AC(mb, 1), AC(mb, 2), PK + mb * 8)
    a("s_nop 1")
    for mb in range(2):
        z = (mb == 0)
        for dk in range(2):
            for dv in range(2):
                d = KVA + (dk * 2 + dv) * 4
                a(f"v_mfma_f32_16x16x32_bf16 {vr(d,4)}, {vr(PK+mb*8+4*dk,4)}, {vr(VF+mb*8+4*dv,4)}, {'0' if z else vr(d,4)}")
            d = ZA + dk * 4
            a(f"v_mfma_f32_16x16x32_bf16 {vr(d,4)}, {vr(PK+mb*8+4*dk,4)}, {vr(ONE,4)}, {'0' if z else vr(d,4)}")
    a(f"""
    s_barrier
    s_lshl_b32 s{t0}, s{sW}, 13
    v_add_u32 v{vTmp}, s{t0}, v{vLd2}
    s_nop 4
    """)
    for dk in range(2):
        for dv in range(2):
            a(f"ds_write_b128 v{vTmp}, {vr(KVA+(dk*2+dv)*4,4)} offset:{dk*1024+dv*256}")
    for dk in range(2):
        for dv in range(2):
            a(f"ds_write_b128 v{vTmp}, {vr(ZA+dk*4,4)} offset:{4096+dk*1024+dv*256}")
    a(f"""
    s_lshl_b32 s{t0}, s{sWn}, 15
    s_lshl_b32 s{t1}, s{sWm}, 11
    s_add_u32 s{t0}, s{t0}, s{t1}
    v_add_u32 v{vTmp}, s{t0}, v{vSt}
    """)
    if QORD == 1: phiq(0)
    a(f"""
    s_waitcnt lgkmcnt(0)
    s_barrier
    """)
    RB = T
    for j in range(4):
        for q in range(2):
            a(f"ds_read_b128 {vr(RB+(j*2+q)*4,4)}, v{vTmp} offset:{j*8192+q*1024}")
    a(f"""
    s_lshl_b32 s{t0}, s{sH}, 3
    s_add_u32 s{t0}, s{t0}, s{sMt}
    s_lshl_b32 s{t0}, s{t0}, 13
    s_add_u32 s{t0}, s{t0}, s{t1}
    s_add_u32 s{t0}, s{t0}, {WS_KVP}
    """)
    if QORD == 1: phiq(1)
    if QORD == 2: phiq(0)
    a("s_waitcnt lgkmcnt(0)")
    for r in range(8):
        a(f"v_add_f32 v{RB+r}, v{RB+r}, v{RB+8+r}")
        a(f"v_add_f32 v{RB+16+r}, v{RB+16+r}, v{RB+24+r}")
    for r in range(8):
        a(f"v_add_f32 v{RB+r}, v{RB+r}, v{RB+16+r}")
    a(f"""
    s_cmp_lt_u32 s{sWm}, 2
    s_cselect_b32 exec_lo, -1, 1
    s_cselect_b32 exec_hi, -1, 1
    """)
    assert QORD != 2
    for q in range(2):
        a(f"buffer_store_dwordx4 {vr(RB+4*q,4)}, v{vSt}, s[12:15], s{t0} offen offset:{q*1024}")
    if QORD == 2: phiq(1)
    if 'stamp' in DBG:
        a.label("k1_stamp")
        a(f'''
        s_waitcnt vmcnt(0)
        s_memtime s[56:57]
        s_memrealtime s[60:61]
        s_waitcnt lgkmcnt(0)
        s_lshl_b32 s{t0}, s2, 3
        s_add_u32 s{t0}, s{t0}, s{sW}
        s_lshl_b32 s{t0}, s{t0}, 6
        s_add_u32 s{t0}, s{t0}, {64*MB}
        v_mov_b32 v20, s50
        v_mov_b32 v21, s52
        v_mov_b32 v22, s54
        v_mov_b32 v23, s56
        v_mov_b32 v24, s58
        v_mov_b32 v25, s60
        v_mov_b32 v26, s70
        v_mov_b32 v27, s72
        v_mov_b32 v28, 0
        v_mov_b32 v30, s74
        v_mov_b32 v31, s76
        buffer_store_dwordx4 v[20:23], v28, s[12:15], s{t0} offen
        buffer_store_dwordx4 v[24:27], v28, s[12:15], s{t0} offen offset:16
        buffer_store_dwordx2 v[30:31], v28, s[12:15], s{t0} offen offset:32
        ''')
        if 'cst' in DBG:
            a(f'''
            s_add_u32 s{t0}, s{t0}, {4*MB}
            s_mov_b64 exec, 0xffff
            v_lshlrev_b32 v28, 2, v{vLane}
            buffer_store_dword v192, v28, s[12:15], s{t0} offen
            ''')
    a.label(end)
    a("s_endpgm")
    return name, NV
```

```python
from asmlib import *
import struct, os

def f2u(x):
    return struct.unpack("<I", struct.pack("<f", x))[0]

LOG2E = 1.4426950408889634
DBG = os.environ.get('K2DBG', '')
SCHED = os.environ.get('K2SCHED', 'a')
RAMP = [int(x) for x in os.environ.get('K2RAMP', '').split(',') if x]
GOFF = int(os.environ.get('K2GOFF', '1'))
SV = int(os.environ.get('K2SV', '0'))
FUSE = int(os.environ.get('FUSE', '0'))
K3V = int(os.environ.get('K3V', '1'))
if K3V == 1: import gen_k3f_v1 as gen_k3f
else: import gen_k3f
PHI = int(os.environ.get('K2PHI', '1'))

CH = 32768
NCH = 4
KVF = CH * NCH
WOST = KVF + 4096
K2_LDS = WOST + 16384

def gen_k2(a):
    name = "attn_kernel"
    kernel_head(a, name)
    vLane, vSt, vTmp, vTmp2, vRd, vRdN, vWo = 1, 2, 3, 4, 5, 6, 7
    Q = 8
    KB = [16, 24]
    VB = [32, 40]
    S = [48, 64]
    C = 80
    O = 96
    PB = [112, 120]
    LS = 128
    SEL = 132
    KP = 136
    QBR = 168
    KF = 176
    WF = 192
    vWr, vKw, vKr, vT3 = 200, 201, 202, 203
    vCs = 204
    vIx = 206
    vWs = 207
    vKp, vZl, vZw, vZr = 208, 209, 210, 211
    NV = 212
    sHk, sZ = 76, 45
    ZC = KVF + 2048
    sH, sQb, sW, sBlk = 16, 17, 18, 19
    sKv, sC, sRd, sRdN, sWr, sM0off, sSize = 20, 21, 22, 23, 24, 25, 26
    t0, t1, t2, t3 = 27, 28, 29, 30
    sOut = 31
    sWoS, sWoD, sWoD2, sWoM = 32, 34, 35, 38
    sKvp, sQB, sOutB = 39, 40, 41
    cL2E, cEps, cHi = 42, 43, 44
    end = "k2_end"
    st = 'stamp' in DBG
    vq = []
    def vm(s, tag, load=True):
        a(s); vq.append((tag, load))
    def after(tag):
        idx = max(i for i, (t, l) in enumerate(vq) if t == tag)
        return sum(1 for (t, l) in vq[idx+1:] if l)

    a(f"""
    s_cmp_ge_u32 s2, 256
    s_cbranch_scc1 {end}
    {'s_memtime s[50:51]' if st else ''}
    {'s_memrealtime s[58:59]' if st else ''}
    s_load_dwordx2 s[12:13], s[0:1], 64
    s_load_dwordx2 s[8:9], s[0:1], 16
    s_load_dwordx2 s[36:37], s[0:1], 40
    {'s_load_dwordx2 s[88:89], s[0:1], 48' if FUSE else ''}
    {'s_memrealtime s[58:59]' if FUSE and 'stamp' in os.environ.get('K3DBG', '') else ''}
    v_and_b32 v{vLane}, 63, v0
    v_lshrrev_b32 v{vTmp}, 6, v0
    s_and_b32 s{t0}, s2, 7
    s_lshr_b32 s{t1}, s2, 3
    v_readfirstlane_b32 s{sW}, v{vTmp}
    s_lshl_b32 s{sH}, s{t0}, 2
    s_lshr_b32 s{t2}, s{t1}, 3
    s_add_u32 s{sH}, s{sH}, s{t2}
    s_and_b32 s{sQb}, s{t1}, 7
    s_lshl_b32 s{sBlk}, s{sQb}, 3
    s_add_u32 s{sBlk}, s{sBlk}, s{sW}
    s_mov_b32 s14, {WS_SIZE}
    s_mov_b32 s15, 0x00020000
    s_mov_b32 s{sSize}, {WS_SIZE}
    s_mov_b32 s6, {WS_SIZE}
    s_mov_b32 s7, 0x00020000
    v_lshlrev_b32 v{vSt}, 4, v{vLane}
    s_lshl_b32 s{t0}, s{sH}, 6
    s_add_u32 s{t0}, s{t0}, s{sBlk}
    s_lshl_b32 s{t0}, s{t0}, 11
    s_add_u32 s{sQB}, s{t0}, {WS_QB}
    s_lshl_b32 s{sKv}, s{sH}, 18
    s_lshl_b32 s{sM0off}, s{sW}, 12
    s_add_u32 s{sKv}, s{sKv}, s{sM0off}
    s_add_u32 s{sKv}, s{sKv}, {WS_KV}
    s_mov_b32 m0, s{sM0off}
    s_waitcnt lgkmcnt(0)
    {'s_memtime s[62:63]' if st else ''}
    s_mov_b32 s4, s12
    s_mov_b32 s5, s13
    """)
    def dma1(j, tag):
        vm(f"buffer_load_dwordx4 v{vSt}, s[4:7], s{sKv} offen offset:{j*1024} lds", tag)
        if j == 3:
            a(f"s_add_u32 s{sKv}, s{sKv}, {CH}")
    for j in range(4): dma1(j, 'c0')
    for u in range(2):
        vm(f"buffer_load_dwordx4 {vr(Q+4*u,4)}, v{vSt}, s[12:15], s{t0} offen offset:{u*1024}", 'qa')
    HKINIT = f'''s_lshr_b32 s{sHk}, s{sW}, 2
    s_mul_i32 s{sHk}, s{sHk}, {GOFF}
    s_add_u32 s{sHk+1}, s{sHk}, 1
    s_add_u32 s{sHk+2}, s{sHk}, 2
    s_add_u32 s{sHk+3}, s{sHk}, 3
    s_add_u32 s{sHk+4}, s{sHk}, 4
    s_add_u32 s{sHk+5}, s{sHk}, 5'''
    sG = 84
    if PHI:
        HKINIT = f'''s_lshr_b32 s{sG}, s{sW}, 2
        s_mul_i32 s{sG}, s{sG}, {GOFF}
        @HKI@
        s_mov_b32 s{cL2E}, {f2u(LOG2E):#x}
        s_mov_b32 s{cHi}, 0xffff0000'''
    if st: a('s_memtime s[64:65]')
    a(f"""
    s_add_u32 m0, s{sM0off}, {CH}
    s_lshl_b32 s{sKvp}, s{sH}, 16
    s_add_u32 s{sZ}, s{sKvp}, {WS_KVP + 4096}
    s_lshl_b32 s{t3}, s{sW}, 9
    s_add_u32 s{sKvp}, s{sKvp}, s{t3}
    s_add_u32 s{sKvp}, s{sKvp}, {WS_KVP}
    {HKINIT}
    s_lshl_b32 s{sOut}, s{sBlk}, 5
    s_add_u32 s{sOut}, s{sOut}, s{sH}
    s_lshl_b32 s{sOut}, s{sOut}, 11
    s_add_u32 s{sOut}, s{sOut}, {WS_O}
    s_add_u32 s{sOutB}, s{sOut}, {4*MB}
    s_cmp_lt_u32 s2, 128
    s_cselect_b32 s8, s8, s36
    s_cselect_b32 s9, s9, s37
    s_mov_b32 s10, {2*MB}
    s_mov_b32 s90, {2048*4096}
    s_mov_b32 s91, 0x00020000
    s_mov_b32 s11, 0x00020000
    s_bfe_u32 s{t0}, s2, 0x40003
    s_lshl_b32 s{t0}, s{t0}, 2
    s_lshr_b32 s{t1}, s{sW}, 1
    s_add_u32 s{t0}, s{t0}, s{t1}
    s_and_b32 s{t1}, s2, 7
    s_lshl_b32 s{t1}, s{t1}, 1
    s_and_b32 s{t2}, s{sW}, 1
    s_add_u32 s{t1}, s{t1}, s{t2}
    s_lshl_b32 s{sWoS}, s{t0}, 15
    s_lshl_b32 s{t2}, s{t1}, 7
    s_add_u32 s{sWoS}, s{sWoS}, s{t2}
    s_add_u32 s{sWoS+1}, s{sWoS}, {16384-1024}
    s_lshr_b32 s{t2}, s2, 7
    s_lshl_b32 s{sWoD}, s{t2}, 21
    s_lshl_b32 s{t2}, s{t1}, 17
    s_add_u32 s{sWoD}, s{sWoD}, s{t2}
    s_lshl_b32 s{t2}, s{t0}, 10
    s_add_u32 s{sWoD}, s{sWoD}, s{t2}
    s_add_u32 s{sWoD}, s{sWoD}, {WS_WO}
    s_add_u32 s{sWoD2}, s{sWoD}, 65536
    s_lshl_b32 s{sWoM}, s{sW}, 11
    s_add_u32 s{sWoM}, s{sWoM}, {WOST}
    v_lshrrev_b32 v{vTmp}, 3, v{vLane}
    v_lshlrev_b32 v{vTmp}, 11, v{vTmp}
    v_and_b32 v{vTmp2}, 7, v{vLane}
    v_lshlrev_b32 v{vTmp2}, 4, v{vTmp2}
    v_add_u32 v{vWo}, v{vTmp}, v{vTmp2}
    v_lshrrev_b32 v{vTmp}, 5, v{vLane}
    v_lshlrev_b32 v{vWr}, 9, v{vTmp}
    v_bfe_u32 v{vTmp}, v{vLane}, 2, 2
    v_lshlrev_b32 v{vTmp}, 7, v{vTmp}
    v_add_u32 v{vWr}, v{vWr}, v{vTmp}
    v_bfe_u32 v{vTmp}, v{vLane}, 4, 1
    v_lshlrev_b32 v{vTmp}, 5, v{vTmp}
    v_add_u32 v{vWr}, v{vWr}, v{vTmp}
    v_and_b32 v{vTmp}, 3, v{vLane}
    v_lshlrev_b32 v{vTmp}, 3, v{vTmp}
    v_add_u32 v{vWr}, v{vWr}, v{vTmp}
    v_add_u32 v{vWr}, s{sWoM}, v{vWr}
    v_bfe_u32 v{vTmp2}, v{vLane}, 2, 1
    v_cmp_eq_u32 vcc, 0, v{vTmp2}
    v_mov_b32 v{vTmp}, 0x3f803f80
    s_lshr_b32 s{t0}, s{sW}, 2
    s_lshl_b32 s{t0}, s{t0}, 10
    v_cndmask_b32 v{SEL}, 0, v{vTmp}, vcc
    s_and_b32 s{t1}, s{sW}, 1
    s_lshl_b32 s{t1}, s{t1}, 9
    s_add_u32 s{t0}, s{t0}, s{t1}
    s_and_b32 s{t1}, s{sW}, 2
    s_lshl_b32 s{t1}, s{t1}, 2
    s_add_u32 s{t0}, s{t0}, s{t1}
    s_add_u32 s{t0}, s{t0}, {KVF}
    v_mov_b32 v{SEL+1}, v{SEL}
    v_xor_b32 v{SEL+2}, v{SEL}, v{vTmp}
    v_xor_b32 v{SEL+3}, v{SEL}, v{vTmp}
    v_and_b32 v{vWs}, 0x23, v{vLane}
    v_lshl_add_u32 v{vWs}, v{vTmp2}, 4, v{vWs}
    v_bfe_u32 v{vTmp2}, v{vLane}, 3, 2
    v_lshl_add_u32 v{vWs}, v{vTmp2}, 2, v{vWs}
    v_lshlrev_b32 v{vWs}, 4, v{vWs}
    v_and_b32 v{vTmp}, 0x1f0, v{vSt}
    v_lshrrev_b32 v{vTmp2}, 5, v{vLane}
    v_lshl_add_u32 v{vKp}, v{vTmp2}, 13, v{vTmp}
    v_lshl_add_u32 v{vKw}, v{vTmp2}, 2, v{vTmp}
    v_add_u32 v{vKw}, s{t0}, v{vKw}
    v_lshlrev_b32 v{vZr}, 4, v{vTmp2}
    v_add_u32 v{vZr}, {ZC}, v{vZr}
    v_lshlrev_b32 v{vZw}, 5, v{vTmp2}
    v_bfe_u32 v{vTmp}, v{vLane}, 3, 1
    v_lshl_add_u32 v{vZw}, v{vTmp}, 4, v{vZw}
    v_bfe_u32 v{vTmp}, v{vLane}, 4, 1
    v_lshl_add_u32 v{vZw}, v{vTmp}, 3, v{vZw}
    v_add_u32 v{vZw}, {ZC}, v{vZw}
    v_lshrrev_b32 v{vTmp}, 3, v{vLane}
    v_lshlrev_b32 v{vZl}, 9, v{vTmp}
    v_and_b32 v{vTmp}, 7, v{vLane}
    v_lshl_add_u32 v{vZl}, v{vTmp}, 13, v{vZl}
    v_add_u32 v{vKr}, {KVF}, v{vSt}
    s_mov_b32 s{cEps}, {f2u(1e-6):#x}
    s_mov_b32 s{sC}, 0
    s_mov_b32 s{sRd}, 0
    s_mov_b32 s{sRdN}, {CH}
    s_mov_b32 s{sWr}, {3*CH}
    v_mov_b32 v{vRd}, v{vSt}
    v_add_u32 v{vRdN}, {CH}, v{vSt}
    """)
    if FUSE:
        gen_k3f.init(a, sW, sH, sQb, t0)
        if K3V != 1:
            gen_k3f.init2(a, (46, 47, 48, t0, t1, t2, t3), vTmp)
            NV = 214
    for r in range(16):
        a(f"v_mov_b32 v{O+r}, 0")
    for r in range(4):
        a(f"v_mov_b32 v{LS+r}, 0")
    for r in range(8):
        a(f"v_mov_b32 v{S[1]+8+r}, 0")
    for r in range(4):
        a(f"v_mov_b32 v{VB[1]+4+r}, 0")
    a(f"v_mov_b32 v{vIx}, 0xdddddddd")
    DLY = os.environ.get('K2DLY', '')
    if DLY:
        for i, n in enumerate(DLY.split(',')):
            a(f"s_bfe_u32 s{t0}, s2, 0x20003")
            a(f"s_cmp_lg_u32 s{t0}, {i}")
            a(f"s_cbranch_scc1 k2_dly_{i}")
            a(f"s_sleep {n}")
            a.label(f"k2_dly_{i}")
    a(f"""
    {'s_memtime s[66:67]' if st else ''}
    s_waitcnt vmcnt({after('qa')})
    {'s_memtime s[68:69]' if st else ''}
    s_barrier
    {'s_memtime s[52:53]' if st else ''}
    """)
    for u in range(2):
        a(f"ds_read_b128 {vr(KB[0]+4*u,4)}, v{vSt} offset:{u*1024}")
    for u in range(2):
        a(f"ds_read_b128 {vr(KB[1]+4*u,4)}, v{vSt} offset:{4096+u*1024}")
    for u in range(2):
        a(f"ds_read_b128 {vr(VB[0]+4*u,4)}, v{vSt} offset:{2048+u*1024}")
    s0 = S[0]
    if PHI:
        for u in range(2):
            a(f"buffer_load_dwordx4 {vr(QBR+4*u,4)}, v{vSt}, s[12:15], s{sQB} offen offset:{u*1024}")
    for j in range(2): dma1(j, 'c1')
    a(f"""
    s_waitcnt lgkmcnt(4)
    v_mfma_f32_32x32x16_bf16 {vr(s0,16)}, {vr(KB[0],4)}, {vr(Q,4)}, 0
    v_mfma_f32_32x32x16_bf16 {vr(s0,16)}, {vr(KB[0]+4,4)}, {vr(Q+4,4)}, {vr(s0,16)}
    """)
    for j in range(2, 4): dma1(j, 'c1')
    a(f"""
    s_add_u32 m0, s{sM0off}, {2*CH}
    s_nop 8
    """)
    a(f"v_max3_f32 v{vTmp}, v{s0}, v{s0+1}, v{s0+2}")
    a(f"v_max3_f32 v{vTmp2}, v{s0+3}, v{s0+4}, v{s0+5}")
    for r in range(6, 14, 4):
        a(f"v_max3_f32 v{vTmp}, v{vTmp}, v{s0+r}, v{s0+r+1}")
        a(f"v_max3_f32 v{vTmp2}, v{vTmp2}, v{s0+r+2}, v{s0+r+3}")
    a(f"""
    v_max3_f32 v{vTmp}, v{vTmp}, v{s0+14}, v{s0+15}
    v_max_f32 v{vTmp}, v{vTmp}, v{vTmp2}
    v_mov_b32 v{vTmp2}, v{vTmp}
    s_nop 1
    v_permlane32_swap_b32 v{vTmp}, v{vTmp2}
    s_nop 1
    v_max_f32 v{vTmp}, v{vTmp}, v{vTmp2}
    """)
    for j in range(2): dma1(j, 'c2')
    for r in range(16):
        a(f"v_sub_f32 v{C+r}, 0, v{vTmp}")
    for r in range(16):
        a(f"v_sub_f32 v{s0+r}, v{s0+r}, v{vTmp}")

    OB, DEN = KP, KP + 16
    ZR = KP + 16
    def s_wo():
        a(f"s_mov_b32 m0, s{sWoM}")
        a("s_nop 0")
        a(f"buffer_load_dwordx4 v{vWo}, s[8:11], s{sWoS} offen lds")
        a(f"buffer_load_dwordx4 v{vWo}, s[8:11], s{sWoS+1} offen offset:1024 lds")
    def s_kvp(m):
        for mm in (m, m + 1):
            a(f"buffer_load_dwordx4 {vr(KP+4*mm,4)}, v{vKp}, s[12:15], s{sKvp} offen")
            a(f"s_add_u32 s{sKvp}, s{sKvp}, 16384")
    def s_pq():
        for u in range(2):
            a(f"buffer_load_dwordx4 {vr(QBR+4*u,4)}, v{vSt}, s[12:15], s{sQB} offen offset:{u*1024}")
    def s_zld(t):
        a(f"s_cmp_lg_u32 s{sW}, 0")
        a(f"s_cbranch_scc1 k2_back_{t}")
        a(f"buffer_load_dwordx4 {vr(ZR,4)}, v{vZl}, s[12:15], s{sZ} offen")
    def wotr(i):
        nb, rd = i >> 1, i & 1
        a(f"ds_read_b64_tr_b16 {vr(WF+4*nb+2*rd,2)}, v{vWr} offset:{nb*64+rd*1024}")
    def s_wost():
        a(f"buffer_store_dwordx4 {vr(WF,4)}, v{vWs}, s[12:15], s{sWoD} offen")
        a(f"buffer_store_dwordx4 {vr(WF+4,4)}, v{vWs}, s[12:15], s{sWoD2} offen")
    def add4(d, x):
        for r in range(4):
            a(f"v_add_f32 v{KP+4*d+r}, v{KP+4*d+r}, v{KP+4*x+r}")
    def s_red(n, t):
        a(f"s_waitcnt vmcnt({n})")
        add4(0, 1); add4(2, 3); add4(0, 2)
        wotr(0); wotr(1)
        a(f"v_permlane32_swap_b32 v{KP}, v{KP+2}")
        a(f"v_permlane32_swap_b32 v{KP+1}, v{KP+3}")
        wotr(2); wotr(3)
        a(f"v_add_f32 v{KP}, v{KP}, v{KP+2}")
        a(f"v_add_f32 v{KP+1}, v{KP+1}, v{KP+3}")
        a(f"s_cmp_lg_u32 s{sW}, 0")
        a(f"v_cvt_pk_bf16_f32 v{KP+4}, v{KP}, v{KP+1}")
        a(f"ds_write_b32 v{vKw}, v{KP+4}")
        a(f"s_cbranch_scc1 k2_back_{t}")
        for dpp in ("quad_perm:[1,0,3,2]", "quad_perm:[2,3,0,1]", "row_half_mirror"):
            for r in range(4):
                a(f"v_add_f32_dpp v{ZR+r}, v{ZR+r}, v{ZR+r} {dpp} row_mask:0xf bank_mask:0xf")
        a(f"v_cvt_pk_bf16_f32 v{ZR+4}, v{ZR}, v{ZR+1}")
        a(f"v_cvt_pk_bf16_f32 v{ZR+5}, v{ZR+2}, v{ZR+3}")
        a(f"ds_write_b64 v{vZw}, {vr(ZR+4,2)}")
    def s_kf():
        for f in range(2):
            a(f"ds_read_b128 {vr(KF+4*f,4)}, v{vKr} offset:{f*1024}")
        for f in range(2):
            a(f"ds_read_b128 {vr(KF+8+4*f,4)}, v{vZr} offset:{f*32}")
    def s_mm(h):
        a(f"v_mfma_f32_32x32x16_bf16 {vr(OB,16)}, {vr(KF+4*h,4)}, {vr(QBR+4*h,4)}, {vr(OB,16) if h else 0}")
        a(f"v_mfma_f32_32x32x16_bf16 {vr(DEN,16)}, {vr(KF+8+4*h,4)}, {vr(QBR+4*h,4)}, {vr(DEN,16) if h else 0}")
    def s_norm():
        a(f"v_add_f32 v{vT3}, s{cEps}, v{DEN}")
        a(f"v_rcp_f32 v{vT3}, v{vT3}")
        a("s_nop 0")
        for r in range(16):
            a(f"v_mul_f32 v{OB+r}, v{OB+r}, v{vT3}")
        for r in range(8):
            a(f"v_cvt_pk_bf16_f32 v{QBR+r}, v{OB+2*r}, v{OB+2*r+1}")
        for u in range(2):
            a(f"buffer_store_dwordx4 {vr(QBR+4*u,4)}, v{vSt}, s[12:15], s{sOutB} offen offset:{u*1024}")
    G = 1 if GOFF else 0
    SIDE = {
        (0, 4): [s_wo, lambda: s_kvp(0)],
        (0, 7): [lambda: s_kvp(2), s_pq, lambda: s_zld(7)],
        (2, 0): [lambda: s_red(5, 0)],
        (2+G, 6): [s_kf, s_wost],
        (3+G, 1): [lambda: s_mm(0), lambda: s_mm(1)],
        (3+G, 3): [s_norm],
    }
    if FUSE:
        def s_e4():
            a(f"s_cmp_lt_u32 s{sC}, 6")
            a(f"s_cbranch_scc1 k2_side_4a")
            a(f"s_waitcnt vmcnt(0)")
            a(f"s_branch k2_back_4")
            a.label("k2_side_4a")
        def s_e7():
            a(f"s_cmp_lt_u32 s{sC}, 6")
            a(f"s_cbranch_scc1 k2_side_7a")
            a(f"s_cmp_lg_u32 s{sW}, 4")
            a(f"s_cbranch_scc1 k2_back_7")
            gen_k3f.early(a, t0, vTmp, vTmp2)
            a(f"s_branch k2_back_7")
            a.label("k2_side_7a")
            a(f"s_mov_b32 s{sHk}, 6")
        def s_e6():
            a(f"s_cmp_lt_u32 s{sC}, 7")
            a(f"s_cbranch_scc1 k2_side_6a")
            gen_k3f.poll(a)
            a(f"s_branch k2_back_6")
            a.label("k2_side_6a")
            a(f"s_cmp_eq_u32 s{sW}, 4")
            a(f"s_cselect_b32 s{sHk+2+G}, 7, 99")
        if K3V != 1: SIDE[(2+G, 6)] = [s_e6] + SIDE[(2+G, 6)]
        SIDE[(0, 4)] = [s_e4] + SIDE[(0, 4)]
        SIDE[(0, 7)] = [s_e7] + SIDE[(0, 7)]
    HOOKS = {t: c for (c, t) in SIDE}
    assert len(HOOKS) == len(SIDE)
    def s_phi(regs, wait=None):
        if wait is not None: a(f"s_waitcnt vmcnt({wait})")
        T = KF
        n = len(regs)
        for i, r in enumerate(regs):
            a(f"v_lshlrev_b32 v{T+4*i}, 16, v{QBR+r}")
            a(f"v_and_b32 v{T+4*i+1}, s{cHi}, v{QBR+r}")
        for i in range(n):
            for j in range(2): a(f"v_mul_f32 v{T+4*i+2+j}, s{cL2E}, v{T+4*i+j}")
        for i in range(n):
            for j in range(2): a(f"v_exp_f32_e64 v{T+4*i+2+j}, v{T+4*i+2+j} clamp")
        for i in range(n):
            for j in range(2): a(f"v_max_f32 v{T+4*i+j}, s{cEps}, v{T+4*i+j}")
        for i in range(n):
            for j in range(2): a(f"v_add_f32 v{T+4*i+j}, v{T+4*i+j}, v{T+4*i+2+j}")
        for i, r in enumerate(regs):
            a(f"v_cvt_pk_bf16_f32 v{QBR+r}, v{T+4*i}, v{T+4*i+1}")
    PS = os.environ.get('K2PS', 'a')
    KV = [lambda: s_kvp(0), lambda: s_kvp(2)]
    MM = [lambda: s_mm(0), lambda: s_mm(1)]
    def PH(regs, w=None): return lambda: s_phi(regs, w)
    def WZ(t): return [s_wo, lambda: s_zld(t)]
    def RED(n, t): return lambda: s_red(n, t)
    if PS == 'a':
        SIDE2 = {
            0: [(0, 0, KV)],
            1: [(0, 0, WZ(1)), (2, 1, MM)],
            2: [(0, 0, [PH([0, 1], 14)]), (1, 0, [RED(4, 2)])],
            3: [(0, 0, [PH([2, 3])]), (2, 1, [s_norm])],
            4: [(0, 0, [PH([4])])],
            5: [(0, 0, [PH([5])])],
            6: [(0, 0, [PH([6])]), (1, 0, [s_kf, s_wost])],
            7: [(0, 0, [PH([7])])],
        }
    elif PS == 'd':
        SIDE2 = {
            0: [(1, 0, [PH([0])]), (2, 0, [RED(7, 0)])],
            1: [(1, 0, [PH([1])]), (3, 1, MM)],
            2: [(1, 0, [PH([2])])],
            3: [(1, 0, [PH([3])]), (3, 1, [s_norm])],
            4: [(0, 0, KV), (1, 0, [PH([4])])],
            5: [(0, 0, WZ(5)), (1, 0, [PH([5])])],
            6: [(1, 0, [PH([6])]), (2, 0, [s_kf, s_wost])],
            7: [(1, 0, [PH([7])])],
        }
    elif PS == 'e':
        SIDE2 = {
            0: [(1, 0, [PH([2])]), (2, 0, MM)],
            1: [(1, 0, [PH([3])])],
            2: [(1, 0, [PH([4])]), (2, 0, [s_norm])],
            3: [(1, 0, [PH([5])])],
            4: [(0, 0, KV), (1, 0, [PH([6, 7])])],
            5: [(0, 0, WZ(5)), (1, 0, [RED(4, 5)])],
            6: [(0, 0, [PH([0])]), (1, 0, [s_kf])],
            7: [(0, 0, [PH([1])]), (1, 0, [s_wost])],
        }
    elif PS == 'f':
        SIDE2 = {
            0: [(1, 0, [PH([3])]), (2, 0, MM)],
            1: [(1, 0, [PH([4])])],
            2: [(0, 0, KV), (1, 0, [PH([5])]), (2, 0, [s_norm])],
            3: [(0, 0, WZ(3)), (1, 0, [PH([6])])],
            4: [(1, 0, [PH([7])])],
            5: [(0, 0, [PH([0], 14)]), (1, 0, [RED(4, 5)])],
            6: [(0, 0, [PH([1])]), (1, 0, [s_kf])],
            7: [(0, 0, [PH([2])]), (1, 0, [s_wost])],
        }
    if PHI: HOOKS = {t: t for t in SIDE2}
    def side_blocks():
        for t in range(8 if RAMP else 0):
            a.label(f"k2_ramp_{t}")
            for c, n in enumerate(RAMP):
                a(f"s_cmp_eq_u32 s{sC}, {c}")
                a(f"s_cbranch_scc0 k2_ramp_{t}_{c}")
                a(f"s_sleep {n}")
                a.label(f"k2_ramp_{t}_{c}")
            a(f"s_branch k2_rampb_{t}")
        if PHI:
            for t in sorted(SIDE2):
                J = SIDE2[t]
                a.label(f"k2_side_{t}")
                for i, (c, g, fs) in enumerate(J):
                    if i: a.label(f"k2_side_{t}_{i}")
                    if i + 1 < len(J):
                        assert not g
                        a(f"s_cmp_lg_u32 s{sC}, {c}")
                        a(f"s_cbranch_scc1 k2_side_{t}_{i+1}")
                        nc, ng, _ = J[i + 1]
                        a(f"s_add_u32 s{sHk+t}, s{sG}, {nc}" if ng else f"s_mov_b32 s{sHk+t}, {nc}")
                    for f in fs: f()
                    a(f"s_branch k2_back_{t}")
            return
        for (c, t) in sorted(SIDE):
            a.label(f"k2_side_{t}")
            for f in SIDE[(c, t)]: f()
            a(f"s_branch k2_back_{t}")

    def mS(t, h):
        sb = S[(t + 1) & 1]; kn = KB[(t + 1) & 1]
        return f"v_mfma_f32_32x32x16_bf16 {vr(sb,16)}, {vr(kn+4*h,4)}, {vr(Q+4*h,4)}, {vr(C if h == 0 else sb,16)}"
    def mO(t, h):
        return f"v_smfmac_f32_32x32x32_bf16 {vr(O,16)}, {vr(VB[t&1]+4*h,4)}, {vr(S[t&1]+8*h,8)}, v{vIx}"
    def mL(t, h):
        return f"v_smfmac_f32_16x16x64_bf16 {vr(LS,4)}, {vr(SEL,4)}, {vr(S[t&1]+8*h,8)}, v{vIx}"

    def chunk(c):
        for t in range(8):
            sa = S[t & 1]
            kl = KB[t & 1]
            vl = VB[t & 1]
            P = PB[t & 1]
            ex = [f"v_exp_f32 v{sa+r}, v{sa+r}" for r in range(16)]
            cv = [f"v_cvt_pk_bf16_f32 v{P+r}, v{sa+2*r}, v{sa+2*r+1}" for r in range(8)]
            if t == 6:
                n = 4 if c is None else after(f'c{c+1}')
                a(f"s_waitcnt vmcnt({n}) lgkmcnt(0)")
                if not ('nobar' in DBG and c is None): a("s_barrier")
            else:
                a("s_waitcnt lgkmcnt(0)")
            if 'fine' in DBG and t % 2 == 0:
                a(f"s_lshl_b32 s72, s{sC}, 2")
                a(f"s_add_u32 s72, s72, {t//2}")
                a(f"v_cmp_eq_u32_e64 s[74:75], s72, v{vLane}")
                a(f"v_mov_b32 v{vCs+1}, s70")
                a(f"v_mov_b32 v{NV+1}, s86")
                a("s_nop 2")
                a(f"v_cndmask_b32_e64 v{vCs}, v{vCs}, v{vCs+1}, s[74:75]")
                a(f"v_cndmask_b32_e64 v{NV}, v{NV}, v{NV+1}, s[74:75]")
            if 'fine' in DBG and t % 2 == 1:
                a("s_memrealtime s[70:71]")
                a("s_memtime s[86:87]")
            if 'cst' in DBG and t in (0, 4):
                a(f"s_lshl_b32 s72, s{sC}, 1")
                if t == 4: a("s_add_u32 s72, s72, 1")
                a(f"v_cmp_eq_u32_e64 s[74:75], s72, v{vLane}")
                a(f"v_mov_b32 v{vCs+1}, s70")
                a("s_nop 3")
                a(f"v_cndmask_b32_e64 v{vCs}, v{vCs}, v{vCs+1}, s[74:75]")
            if 'cst' in DBG and t in (3, 7):
                a("s_memrealtime s[70:71]" if 'rt' in DBG else "s_memtime s[70:71]")
            a(ex[0]); a(ex[1])
            a(mO(t - 1, 1))
            if t == 6:
                a(f"s_add_u32 m0, s{sWr}, s{sM0off}")
                a(f"s_cmp_lt_u32 s{sC}, 5")
                a(f"s_cselect_b32 s6, s{sSize}, 0")
            for u in range(2):
                tt = t + 2
                a(f"ds_read_b128 {vr(kl+4*u,4)}, v{vRd if tt < 8 else vRdN} offset:{(tt & 7)*4096+u*1024}")
            for x in ex[2:5]: a(x)
            a(mL(t - 1, 1))
            if t in (6, 7):
                dma1(t - 6, 'cl')
            elif t in (0, 1):
                dma1(t + 2, 'cl')
            for x in ex[5:7]: a(x)
            a(mS(t, 0))
            for u in range(2):
                tt = t + 1
                a(f"ds_read_b128 {vr(VB[tt&1]+4*u,4)}, v{vRd if tt < 8 else vRdN} offset:{(tt & 7)*4096+2048+u*1024}")
            for x in ex[7:10]: a(x)
            a(mS(t, 1))
            for x in ex[10:13]: a(x)
            a(mO(t, 0))
            for x in ex[13:16]: a(x)
            a(mL(t, 0))
            if RAMP:
                R0 = int(os.environ.get('K2RAMP0', '0'))
                R1 = int(os.environ.get('K2RAMP1', str(8 * len(RAMP))))
                lo = (R0 - t + 7) // 8; hi = (R1 - t + 7) // 8
                a(f"s_sub_u32 s85, s{sC}, {lo}")
                a(f"s_cmp_lt_u32 s85, {max(hi - lo, 0)}")
                a(f"s_cbranch_scc1 k2_ramp_{t}")
                a.label(f"k2_rampb_{t}")
            if t in HOOKS:
                a(f"s_cmp_eq_u32 s{sC}, s{sHk+HOOKS[t]}")
                a(f"s_cbranch_scc1 k2_side_{t}")
                a.label(f"k2_back_{t}")
            if t == 7:
                a(f"""
                s_mov_b32 s{sWr}, s{sRd}
                s_mov_b32 s{sRd}, s{sRdN}
                s_add_u32 s{sRdN}, s{sRdN}, {CH}
                s_and_b32 s{sRdN}, s{sRdN}, {NCH*CH-1}
                v_mov_b32 v{vRd}, v{vRdN}
                v_add_u32 v{vRdN}, s{sRdN}, v{vSt}
                s_add_u32 s{sC}, s{sC}, 1
                """)
    if 'lst' in DBG: a('s_memtime s[52:53]')
    if 'cst' in DBG: a("s_memrealtime s[70:71]" if 'rt' in DBG else "s_memtime s[70:71]")
    if 'fine' in DBG:
        a("s_memrealtime s[70:71]")
        a("s_memtime s[86:87]")
    a.label("k2_loop")
    chunk(None)
    a(f"s_cmp_lt_u32 s{sC}, 8")
    a("s_cbranch_scc1 k2_loop")
    a("s_nop 0")
    a(mO(7, 1)); a(mL(7, 1))
    if st: a('s_memtime s[54:55]')
    if FUSE and 'stamp' in os.environ.get('K3DBG', ''): a('s_memrealtime s[54:55]')
    P = PB[0]
    a(f"""
    s_mov_b32 s{t0}, {f2u(2.0**40):#x}
    s_nop 8
    v_cmp_nle_f32 vcc, v{LS}, s{t0}
    s_cbranch_vccnz k2_fallback
    """)
    a.label("k2_fin")
    a(f"""
    v_rcp_f32 v{vTmp}, v{LS}
    s_nop 0
    """)
    for r in range(16):
        a(f"v_mul_f32 v{O+r}, v{O+r}, v{vTmp}")
    for r in range(8):
        a(f"v_cvt_pk_bf16_f32 v{P+r}, v{O+2*r}, v{O+2*r+1}")
    for u in range(2):
        a(f"buffer_store_dwordx4 {vr(P+4*u,4)}, v{vSt}, s[12:15], s{sOut} offen offset:{u*1024}")
    if st:
        a(f'''
        s_waitcnt vmcnt(0)
        s_memtime s[56:57]
        s_memrealtime s[60:61]
        s_waitcnt lgkmcnt(0)
        s_lshl_b32 s{t0}, s2, 3
        s_add_u32 s{t0}, s{t0}, s{sW}
        s_lshl_b32 s{t0}, s{t0}, 6
        s_add_u32 s{t0}, s{t0}, {65*MB}
        v_mov_b32 v20, s50
        v_mov_b32 v21, s52
        v_mov_b32 v22, s54
        v_mov_b32 v23, s56
        v_mov_b32 v24, s58
        v_mov_b32 v25, s60
        v_mov_b32 v26, s62
        v_mov_b32 v27, s64
        v_mov_b32 v28, 0
        v_mov_b32 v32, s66
        v_mov_b32 v33, s68
        buffer_store_dwordx4 v[20:23], v28, s[12:15], s{t0} offen
        buffer_store_dwordx4 v[24:27], v28, s[12:15], s{t0} offen offset:16
        buffer_store_dwordx2 v[32:33], v28, s[12:15], s{t0} offen offset:32
        s_add_u32 s{t0}, s{t0}, {2*MB}
        v_and_b32 v28, 15, v{vLane}
        v_lshlrev_b32 v28, 2, v28
        s_mov_b64 exec, 0xffff
        buffer_store_dword v{vCs}, v28, s[12:15], s{t0} offen
        ''')
        if 'fine' in DBG:
            a(f'''
            s_mov_b64 exec, -1
            s_sub_u32 s{t0}, s{t0}, {67*MB}
            s_lshl_b32 s{t0}, s{t0}, 2
            s_add_u32 s{t0}, s{t0}, {69*MB}
            v_and_b32 v28, 31, v{vLane}
            v_lshlrev_b32 v28, 2, v28
            s_mov_b32 exec_hi, 0
            buffer_store_dword v{vCs}, v28, s[12:15], s{t0} offen
            buffer_store_dword v{NV}, v28, s[12:15], s{t0} offen offset:128
            ''')
    if FUSE:
        gen_k3f.tail(a, end)
    a.label(end)
    a("s_endpgm")
    side_blocks()
    a.label("k2_fallback")
    k0, v0_ = KB[0], VB[0]
    a(f"""
    s_waitcnt vmcnt(0) lgkmcnt(0)
    s_lshl_b32 s{sKv}, s{sH}, 18
    s_add_u32 s{sKv}, s{sKv}, {WS_KV}
    s_mov_b32 s{t1}, s{sKv}
    s_mov_b32 s{sC}, 0
    v_mov_b32 v{vTmp}, 0xff800000
    """)
    a.label("k2_fb1")
    for u in range(2):
        a(f"buffer_load_dwordx4 {vr(k0+4*u,4)}, v{vSt}, s[12:15], s{t1} offen offset:{u*1024}")
    a(f"""
    s_waitcnt vmcnt(0)
    v_mfma_f32_32x32x16_bf16 {vr(s0,16)}, {vr(k0,4)}, {vr(Q,4)}, 0
    v_mfma_f32_32x32x16_bf16 {vr(s0,16)}, {vr(k0+4,4)}, {vr(Q+4,4)}, {vr(s0,16)}
    s_nop 15
    """)
    for r in range(0, 16, 2):
        a(f"v_max3_f32 v{vTmp}, v{vTmp}, v{s0+r}, v{s0+r+1}")
    a(f"""
    s_add_u32 s{t1}, s{t1}, 4096
    s_add_u32 s{sC}, s{sC}, 1
    s_cmp_lt_u32 s{sC}, 64
    s_cbranch_scc1 k2_fb1
    v_mov_b32 v{vTmp2}, v{vTmp}
    s_nop 1
    v_permlane32_swap_b32 v{vTmp}, v{vTmp2}
    s_nop 1
    v_max_f32 v{vTmp}, v{vTmp}, v{vTmp2}
    """)
    for r in range(16):
        a(f"v_sub_f32 v{C+r}, 0, v{vTmp}")
    for r in range(16):
        a(f"v_mov_b32 v{O+r}, 0")
    for r in range(4):
        a(f"v_mov_b32 v{LS+r}, 0")
    a(f"""
    s_mov_b32 s{t1}, s{sKv}
    s_mov_b32 s{sC}, 0
    """)
    a.label("k2_fb2")
    for u in range(2):
        a(f"buffer_load_dwordx4 {vr(k0+4*u,4)}, v{vSt}, s[12:15], s{t1} offen offset:{u*1024}")
    for u in range(2):
        a(f"buffer_load_dwordx4 {vr(v0_+4*u,4)}, v{vSt}, s[12:15], s{t1} offen offset:{2048+u*1024}")
    a(f"""
    s_waitcnt vmcnt(0)
    v_mfma_f32_32x32x16_bf16 {vr(s0,16)}, {vr(k0,4)}, {vr(Q,4)}, {vr(C,16)}
    v_mfma_f32_32x32x16_bf16 {vr(s0,16)}, {vr(k0+4,4)}, {vr(Q+4,4)}, {vr(s0,16)}
    s_nop 15
    """)
    for r in range(16):
        a(f"v_exp_f32 v{s0+r}, v{s0+r}")
    a(f"""
    s_nop 2
    {mO(0, 0)}
    {mL(0, 0)}
    {mO(0, 1)}
    {mL(0, 1)}
    s_add_u32 s{t1}, s{t1}, 4096
    s_add_u32 s{sC}, s{sC}, 1
    s_cmp_lt_u32 s{sC}, 64
    s_nop 7
    s_cbranch_scc1 k2_fb2
    s_nop 7
    s_branch k2_fin
    """)
    if PHI:
        i = [k for k, l in enumerate(a.lines) if '@HKI@' in l][0]
        a.lines[i:i+1] = [f"    s_mov_b32 s{sHk+t}, {SIDE2[t][0][0]}" for t in sorted(SIDE2)]
    return name, NV + (2 if 'fine' in DBG else 0)
```
